```python
import torch

def _softmax(x, axis=-1):
    return torch.softmax(x, dim=axis)
def _gelu(x):
    return torch.nn.functional.gelu(x, approximate="tanh")
def _silu(x):
    return torch.nn.functional.silu(x)
def _sigmoid(x):
    return torch.sigmoid(x)
def _layernorm(x, axis=-1, eps=1e-5):
    m = x.mean(dim=axis, keepdim=True)
    v = x.var(dim=axis, keepdim=True, unbiased=False)
    return (x - m) / torch.sqrt(v + eps)
def _scatter_add(tgt, idx, src, axis=0):
    return tgt.clone().index_add_(axis, idx, src)
def _segment_sum(src, seg, n):
    out = torch.zeros((n,) + src.shape[1:], dtype=src.dtype)
    return out.index_add_(0, seg, src)
def _pad(x, pw):
    flat = tuple(v for pair in reversed(pw) for v in pair)
    return torch.nn.functional.pad(x, flat)

kernel_name = 'gated_mix__linear_attn_block__dense_activation_mish__prompt'

def setup_inputs():

    _w = (lambda a: (lambda t: t.to(torch.bfloat16) if t.is_floating_point() else t)(torch.as_tensor(a)))
    def _A_setup():
        B, S, D = 1, 2048, 1024
        return {
            "x": _w((lambda *s: torch.randn(*s, dtype=torch.bfloat16) * 0.05)(B, S, D)),
            "wqkv": _w((lambda *s: torch.randn(*s, dtype=torch.bfloat16) * 0.8)(D, 3 * D)),
            "wo": _w((lambda *s: torch.randn(*s, dtype=torch.bfloat16) * 0.05)(D, D)),
        }
    _A_in = _A_setup()

    def _B_setup():
        B, S, D, F = 1, 2048, 1024, 3584
        return {
            "x": _w((lambda *s: torch.randn(*s, dtype=torch.bfloat16) * 0.05)(B, S, D)),
            "w1": _w((lambda *s: torch.randn(*s, dtype=torch.bfloat16) * 12.8)(D, F) * (D ** -0.5)),
            "b1": _w((lambda *s: torch.randn(*s, dtype=torch.bfloat16) * 0.4)(F)),
            "w2": _w((lambda *s: torch.randn(*s, dtype=torch.bfloat16) * 0.05)(F, D) * (F ** -0.5)),
        }
    _B_in = _B_setup()

    return {
        "A_x": _A_in["x"],
        "A_wqkv": _A_in["wqkv"],
        "A_wo": _A_in["wo"],
        "B_x": _B_in["x"],
        "B_w1": _B_in["w1"],
        "B_b1": _B_in["b1"],
        "B_w2": _B_in["w2"],
        "gate_w": _w((lambda *s: torch.randn(*s, dtype=torch.bfloat16) * 0.05)(1024) * 16.0),
    }

def reference(A_x, A_wqkv, A_wo, B_x, B_w1, B_b1, B_w2, gate_w):
    def _A_ref(x, wqkv, wo):
        B, S, D = x.shape
        H = 32; Dh = D // H
        qkv = (lambda x, *d: x.permute(*d))((x @ wqkv).reshape(B, S, 3, H, Dh), 2, 0, 3, 1, 4)
        q, k, v = qkv[0], qkv[1], qkv[2]
        phi = lambda t: torch.where(t > 0, t + 1, torch.exp(t)) + 1e-6
        pq, pk = phi(q), phi(k)
        kv = torch.einsum("bhsd,bhse->bhde", pk, v)
        z = torch.einsum("bhsd->bhd", pk)
        num = torch.einsum("bhqd,bhde->bhqe", pq, kv)
        den = torch.einsum("bhqd,bhd->bhq", pq, z)[..., None] + 1e-6
        o = num / den
        return (lambda x, *d: x.permute(*d))(o, 0, 2, 1, 3).reshape(B, S, D) @ wo

    def _B_ref(x, w1, b1, w2):
        h = torch.einsum("bsd,df->bsf", x, w1) + b1
        sp = torch.log1p(torch.exp(-torch.abs(h))) + torch.where(h > 0, h, torch.zeros_like(h))
        act = h * torch.tanh(sp)
        return torch.einsum("bsf,fd->bsd", act, w2)

    x = A_x
    g = _sigmoid((x * gate_w).sum(-1, keepdims=True))
    a = _A_ref(x, A_wqkv, A_wo)
    b = _B_ref(x, B_w1, B_b1, B_w2)
    return g * a + (1 - g) * b
```

```python
import re

REG_RE = re.compile(r'^(-?\|?)([vsa])(\d+|\[(\d+):(\d+)\])(\|?)$')


def regs_of(tok):
    tok = tok.strip()
    if tok in ('vcc',):
        return {('s', 106), ('s', 107)}
    if tok == 'exec':
        return {('x', 0)}
    if tok == 'm0':
        return {('m', 0)}
    m = REG_RE.match(tok)
    if not m:
        return set()
    f = m.group(2)
    if m.group(4) is not None:
        lo, hi = int(m.group(4)), int(m.group(5))
    else:
        lo = hi = int(m.group(3))
    return {(f, i) for i in range(lo, hi + 1)}


TRANS = ('v_exp_f32', 'v_rcp_f32', 'v_log_f32', 'v_rsq_f32', 'v_sqrt_f32', 'v_sin_f32', 'v_cos_f32')


class Ins:
    def __init__(self, text):
        self.text = text
        t = text.split(';')[0].strip()
        self.is_label = t.endswith(':')
        self.is_dir = t.startswith('.')
        self.op = ''
        self.defs = set()
        self.uses = set()
        self.kind = 'other'
        if self.is_label or self.is_dir or not t:
            self.kind = 'none'
            return
        parts = t.split(None, 1)
        op = parts[0]
        self.op = op
        ops = []
        if len(parts) > 1:
            cur = ''
            depth = 0
            for ch in parts[1]:
                if ch == '[':
                    depth += 1
                if ch == ']':
                    depth -= 1
                if ch == ',' and depth == 0:
                    ops.append(cur.strip())
                    cur = ''
                else:
                    cur += ch
            ops.append(cur.strip())
        toks = [o.split()[0] if o else o for o in ops]
        self.toks = toks
        base = op.replace('_e32', '').replace('_e64', '').replace('_dpp', '').replace('_sdwa', '')
        self.base = base
        self.dpp = 'row_' in t or 'quad_perm' in t or 'wave_' in t
        R = [regs_of(x) for x in toks]
        if op.startswith('v_mfma'):
            self.kind = 'mfma'
            self.defs = R[0]
            self.srcA, self.srcB, self.srcC = R[1], R[2], R[3]
            self.uses = R[1] | R[2] | R[3]
            self.passes = 4 if '16x16x32' in op else 8
        elif op.startswith('v_cmp'):
            self.kind = 'valu'
            self.defs = R[0]
            self.uses = set().union(*R[1:])
        elif base in ('v_readfirstlane_b32', 'v_readlane_b32'):
            self.kind = 'valu'
            self.defs = R[0]
            self.uses = set().union(*R[1:])
        elif op.startswith('v_permlane'):
            self.kind = 'valu'
            self.defs = R[0] | R[1]
            self.uses = R[0] | R[1]
        elif base in ('v_add_co_u32', 'v_sub_co_u32', 'v_addc_co_u32'):
            self.kind = 'valu'
            self.defs = R[0] | R[1]
            self.uses = set().union(*R[2:])
        elif op.startswith('v_'):
            self.kind = 'valu'
            self.defs = R[0]
            self.uses = set().union(*R[1:]) if len(R) > 1 else set()
            if base in ('v_fmac_f32', 'v_dot2c_f32_bf16') or self.dpp:
                self.uses |= R[0]
            if base == 'v_cndmask_b32' and len(R) == 3:
                self.uses |= regs_of('vcc')
        elif op.startswith('buffer_') or op.startswith('global_'):
            self.kind = 'vmem'
            lds = ' lds' in (' ' + t + ' ') or '_lds_' in op
            self.lds = lds
            if 'load' in op and not lds:
                self.defs = R[0]
                self.uses = set().union(*R[1:])
            else:
                self.uses = set().union(*R) if R else set()
                if lds:
                    self.uses |= {('m', 0)}
                if 'atomic' in op and ' sc0' in t:
                    self.defs = R[0]
            self.wide_store = ('store' in op and ('x4' in op or 'x3' in op))
            if self.wide_store:
                self.sdata = R[0] if op.startswith('buffer_') else R[1]
        elif op.startswith('ds_'):
            self.kind = 'ds'
            if 'read' in op or 'bpermute' in op or 'swizzle' in op:
                self.defs = R[0]
                self.uses = set().union(*R[1:])
            else:
                self.uses = set().union(*R)
        elif op.startswith('s_'):
            self.kind = 'salu'
            if op in ('s_waitcnt', 's_barrier', 's_nop', 's_endpgm', 's_sleep', 's_setprio') or op.startswith('s_cbranch') or op == 's_branch':
                self.kind = 'sctl'
            elif op.startswith('s_cmp') or op.startswith('s_bitcmp'):
                self.uses = set().union(*R)
            elif op.startswith('s_load'):
                self.kind = 'smem'
                self.defs = R[0]
                self.uses = set().union(*R[1:])
            else:
                self.defs = R[0] if R else set()
                self.uses = set().union(*R[1:]) if len(R) > 1 else set()
                if 'saveexec' in op:
                    self.defs = self.defs | {('x', 0)}

    def states(self):
        if self.kind == 'none':
            return 0
        if self.op == 's_nop':
            return int(self.toks[0]) + 1
        return 1


def required(prod, cons):
    need = 0
    pv = {r for r in prod.defs if r[0] in 'va'}
    ps = {r for r in prod.defs if r[0] == 's'}
    if prod.kind == 'valu':
        if cons.kind == 'mfma' and pv & cons.uses:
            need = max(need, 2)
        if cons.kind == 'valu':
            if cons.dpp and pv & cons.uses:
                need = max(need, 2)
            if cons.op.startswith('v_permlane') and pv & cons.uses:
                need = max(need, 2)
            if cons.base in ('v_readfirstlane_b32', 'v_readlane_b32') and pv & cons.uses:
                need = max(need, 1)
            if prod.base in TRANS and cons.base not in TRANS and pv & cons.uses:
                need = max(need, 1)
            if ps & cons.uses:
                need = max(need, 2)
                if cons.base in ('v_readlane_b32', 'v_writelane_b32'):
                    need = max(need, 4)
        if cons.kind == 'vmem' and ps & cons.uses:
            need = max(need, 5)
        if cons.kind in ('salu', 'smem', 'sctl') and ps & cons.uses:
            need = max(need, 2)
        if prod.base in TRANS and cons.kind in ('vmem', 'ds') and pv & cons.uses:
            need = max(need, 1)
    if prod.kind == 'mfma':
        p = prod.passes
        tab_ab = {4: 8, 8: 12}[p]
        tab_ovl = {4: 6, 8: 10}[p]
        if cons.kind == 'mfma':
            if prod.defs & (cons.srcA | cons.srcB):
                need = max(need, tab_ab)
            if prod.defs & cons.srcC:
                if not (cons.srcC == prod.defs and cons.passes == p):
                    need = max(need, tab_ovl)
            elif prod.defs & cons.defs:
                need = max(need, tab_ovl)
        elif cons.kind in ('valu', 'vmem', 'ds'):
            if prod.defs & (cons.uses | cons.defs):
                need = max(need, tab_ab)
        if cons.kind == 'valu' and prod.srcC & cons.defs:
            need = max(need, {4: 3, 8: 7}[p])
    if prod.kind == 'salu' and ('m', 0) in prod.defs:
        if cons.kind == 'vmem' and ('m', 0) in cons.uses:
            need = max(need, 1)
    if prod.kind == 'vmem' and getattr(prod, 'wide_store', False):
        if cons.kind in ('valu', 'mfma') and prod.sdata & cons.defs:
            need = max(need, 2)
        elif cons.kind in ('vmem', 'ds') and prod.sdata & cons.defs:
            need = max(need, 1)
    if prod.kind in ('valu',) and ('x', 0) in prod.defs:
        need = max(need, 5)
    if prod.kind == 'salu' and ('x', 0) in prod.defs and cons.kind == 'valu' and cons.dpp:
        need = max(need, 1)
    return need


class Asm:
    def __init__(self):
        self.lines = []

    def __call__(self, s):
        for ln in s.split('\n'):
            ln = ln.strip()
            if ln:
                self.lines.append(ln)

    def label(self, name):
        self.lines.append(name + ':')

    def raw(self, s):
        self.lines.append('\x00' + s)

    def finalize(self):
        out = []
        hist = []
        npad = 0
        for ln in self.lines:
            if ln.startswith('\x00'):
                out.append(ln[1:])
                continue
            ins = Ins(ln)
            if ins.kind == 'none':
                out.append(ln if ins.is_label else '    ' + ln)
                continue
            dist = 0
            need = 0
            for p in reversed(hist):
                r = required(p, ins)
                if r > dist:
                    need = max(need, r - dist)
                dist += p.states()
                if dist >= 20:
                    break
            while need > 0:
                k = min(need, 16)
                nop = Ins('s_nop %d' % (k - 1))
                out.append('    s_nop %d' % (k - 1))
                hist.append(nop)
                need -= k
                npad += 1
            out.append('    ' + ln)
            hist.append(ins)
            if len(hist) > 40:
                hist = hist[-30:]
        self.npad = npad
        return '\n'.join(out) + '\n'


def v(n, cnt=1):
    return 'v%d' % n if cnt == 1 else 'v[%d:%d]' % (n, n + cnt - 1)


def s(n, cnt=1):
    return 's%d' % n if cnt == 1 else 's[%d:%d]' % (n, n + cnt - 1)
```

```python
import sys
from asmlib import Asm, v, s

NAME = 'gated_mix__linear_attn_block__dense_activation_mish__prompt'

A2_OFF = 0
A2_SIZE = 128 * 144 * 1024
E_OFF = 0x1300000
FLG_OFF = 0x1310000
KVP_OFF = 0x1400000
XCH_OFF = 0x1800000
WS_SIZE = 268435456

LOG2E = 0x3fb8aa3b

OPT = dict(a2_flags='', k1_prefetch=True)


def srd(a, base, ptr, nbytes):
    a(f's_mov_b32 {s(base)}, {s(ptr)}')
    a(f's_and_b32 {s(base+1)}, {s(ptr+1)}, 0xffff')
    a(f's_mov_b32 {s(base+2)}, {nbytes}')
    a(f's_mov_b32 {s(base+3)}, 0x00020000')


S_X, S_W, S_WS, S_DBG, S_B1, S_B1Z, S_G, S_PF = 28, 32, 36, 40, 44, 48, 52, 88
sI, sT, sTyp, sWave, sW3, sGrp = 56, 57, 58, 59, 60, 61
sP0, sP1, sS, sZ2 = 62, 63, 64, 65
sWstr, sWoff, sWstep = 66, 67, 68
sXK, sXD, sXR, sCnt = 69, 70, 71, 72
sT0, sT1, sT2, sT3 = 73, 74, 75, 76
sM0W, sM0X = 77, 78
sL2E, sC = 80, 79
sA2, sH = 92, 82
sPFo, sPFs = 83, 84
sC60, sEps = 85, 86
sPFn = 87
sPFu, sPFlo, sPFhi, sPFnr = 93, 94, 95, 96
WF, XF = 8, 64
vXA0c, vXA1c, vXA0, vXA1 = 96, 97, 98, 99
vWZ12, vWZ3 = 100, 102
vXV, vWV = 105, 109
vL16 = 113
vPF = 114
vT = 116
ACC = 128
vE = 240


def acc(n, m):
    return ACC + (n * 4 + m) * 4


def wf(buf, n):
    return WF + buf * 28 + n * 4


def xf(buf, m):
    return XF + buf * 16 + m * 4


def k1_reads(grp, buf, wslot, kk):
    nt = 7 if grp == 0 else 6
    r = []
    xa = vXA0 if kk == 0 else vXA1
    xs = [f'ds_read_b128 {v(xf(buf, m), 4)}, {v(xa)} offset:{m * 2048}' for m in range(4)]
    ws = []
    for n in range(nt):
        if n < 4:
            addr = vWZ12 + (n & 1)
            off = wslot * 16384 + (4096 if n >= 2 else 0)
            d2 = 512
        else:
            addr = vWZ3 + (n - 4)
            off = wslot * 16384
            d2 = 1024
        ws.append(f'ds_read_b64_tr_b16 {v(wf(buf, n), 2)}, {v(addr)} offset:{off}')
        ws.append(f'ds_read_b64_tr_b16 {v(wf(buf, n) + 2, 2)}, {v(addr)} offset:{off + d2}')
    r = ws[:2] + xs + ws[2:]
    return r


def k1_dma_w(slot):
    out = [f's_add_u32 m0, {s(sM0W)}, {slot * 16384}']
    for j in range(4):
        out.append(f'buffer_load_dwordx4 {v(vWV + j)}, {s(S_W, 4)}, {s(sWoff)} offen offset:{j * 1024} lds')
    out.append(f's_add_u32 {s(sWoff)}, {s(sWoff)}, {s(sWstep)}')
    return out


def k1_dma_x(par):
    out = []
    if par == 0:
        out.append(f's_add_u32 {s(sXK)}, {s(sXK)}, 128')
        out.append(f's_add_u32 {s(sXD)}, {s(sXD)}, 32768')
        out.append(f's_cmp_eq_u32 {s(sXD)}, 98304')
        out.append(f's_cselect_b32 {s(sXD)}, 0, {s(sXD)}')
        out.append(f's_add_u32 m0, {s(sXD)}, {s(sM0X)}')
        so = sXK
    else:
        out.append(f's_add_u32 {s(sT0)}, {s(sXK)}, 262144')
        out.append(f's_add_u32 {s(sT1)}, {s(sXD)}, {s(sM0X)}')
        out.append(f's_add_u32 m0, {s(sT1)}, 16384')
        so = sT0
    for j in range(4):
        out.append(f'buffer_load_dwordx4 {v(vXV + j)}, {s(S_X, 4)}, {s(so)} offen offset:{j * 1024} lds')
    return out


def k1_adv_xread():
    return [f's_add_u32 {s(sXR)}, {s(sXR)}, 32768',
            f's_cmp_eq_u32 {s(sXR)}, 98304',
            f's_cselect_b32 {s(sXR)}, 0, {s(sXR)}',
            f'v_add_u32 {v(vXA0)}, {s(sXR)}, {v(vXA0c)}',
            f'v_add_u32 {v(vXA1)}, {s(sXR)}, {v(vXA1c)}']


def k1_mfmas(grp, typ, buf):
    nt = 7 if grp == 0 else 6
    out = []
    for n in range(nt):
        for m in range(4):
            d = v(acc(n, m), 4)
            W = v(wf(buf, n), 4)
            X = v(xf(buf, m), 4)
            if typ == 0 and n < 4:
                out.append(f'v_mfma_f32_16x16x32_bf16 {d}, {X}, {W}, {d}')
            else:
                out.append(f'v_mfma_f32_16x16x32_bf16 {d}, {W}, {X}, {d}')
    return out


def group_dma(lst):
    units = []
    cur = []
    for x in lst:
        cur.append(x)
        if x.startswith('buffer_'):
            units.append(cur)
            cur = []
    if cur:
        units[-1] = units[-1] + cur
    return units


def k1_substep(a, grp, typ, b, dma=True, reads=True, last=False, pf=None):
    cur, nxt = b & 1, (b + 1) & 1
    mf = k1_mfmas(grp, typ, cur)
    pre = []
    rd = []
    if reads:
        if b & 1:
            pre += k1_adv_xread()
        rd = k1_reads(grp, nxt, (b + 1) % 4, (b + 1) & 1)
    units = []
    if dma and grp == 1:
        units = group_dma(k1_dma_w(b) + k1_dma_x(0 if (b & 1) else 1))
    if pf:
        units = units + pf
    for x in pre:
        a(x)
    ri = 0
    ui = 0
    for k, mm in enumerate(mf):
        a(mm)
        if ri < len(rd):
            a(rd[ri])
            ri += 1
        if ui < len(units) and k % 2 == 0:
            for x in units[ui]:
                a(x)
            ui += 1
    assert ri == len(rd) and ui == len(units)
    if last:
        return
    if grp == 1 and dma:
        a('s_waitcnt vmcnt(16) lgkmcnt(0)')
    elif grp == 1:
        a('s_waitcnt vmcnt(0) lgkmcnt(0)')
    else:
        a('s_waitcnt lgkmcnt(0)')
    a('s_barrier')


def mish4(a, r, t):
    T, N2, W = t, t + 4, t + 8
    for h in (0, 2):
        a(f'v_pk_mul_f32 {v(T + h, 2)}, {v(r + h, 2)}, {s(sL2E, 2)} op_sel_hi:[1,0]')
    for i in range(4):
        a(f'v_min_f32 {v(T + i)}, {s(sC60)}, {v(T + i)}')
    for i in range(4):
        a(f'v_exp_f32 {v(T + i)}, {v(T + i)}')
    for h in (0, 2):
        a(f'v_pk_add_f32 {v(N2 + h, 2)}, {v(T + h, 2)}, 2.0 op_sel_hi:[1,0]')
    for h in (0, 2):
        a(f'v_pk_mul_f32 {v(W + h, 2)}, {v(T + h, 2)}, {v(N2 + h, 2)}')
    for h in (0, 2):
        a(f'v_pk_fma_f32 {v(N2 + h, 2)}, {v(T + h, 2)}, {v(N2 + h, 2)}, 2.0 op_sel_hi:[1,1,0]')
    for i in range(4):
        a(f'v_rcp_f32 {v(N2 + i)}, {v(N2 + i)}')
    for h in (0, 2):
        a(f'v_pk_mul_f32 {v(W + h, 2)}, {v(W + h, 2)}, {v(N2 + h, 2)}')
    for h in (0, 2):
        a(f'v_pk_mul_f32 {v(r + h, 2)}, {v(r + h, 2)}, {v(W + h, 2)}')


def phi4(a, r, t):
    for h in (0, 2):
        a(f'v_pk_mul_f32 {v(t + h, 2)}, {v(r + h, 2)}, {s(sL2E, 2)} op_sel_hi:[1,0]')
    for i in range(4):
        a(f'v_min_f32 {v(t + i)}, 0, {v(t + i)}')
    for i in range(4):
        a(f'v_exp_f32 {v(t + i)}, {v(t + i)}')
    for i in range(4):
        a(f'v_max_f32 {v(r + i)}, 0, {v(r + i)}')
    for h in (0, 2):
        a(f'v_pk_add_f32 {v(r + h, 2)}, {v(r + h, 2)}, {v(t + h, 2)}')
    for i in range(4):
        a(f'v_add_f32 {v(r + i)}, {s(sEps)}, {v(r + i)}')


def k1_store_pair(a, n0, s_tau, plus, outregs):
    a(f's_add_u32 {s(sT2)}, {s(s_tau)}, {plus}')
    a(f's_lshr_b32 {s(sT2)}, {s(sT2)}, 1')
    a(f's_lshl_b32 {s(sT2)}, {s(sT2)}, 10')
    a(f's_add_u32 {s(sT2)}, {s(sT2)}, {s(sA2)}')
    for m in range(4):
        o = outregs + (m & 1) * 4
        mish4(a, acc(n0, m), vE)
        mish4(a, acc(n0 + 1, m), vT)
        a(f'v_cvt_pk_bf16_f32 {v(o)}, {v(acc(n0, m))}, {v(acc(n0, m) + 1)}')
        a(f'v_cvt_pk_bf16_f32 {v(o + 1)}, {v(acc(n0, m) + 2)}, {v(acc(n0, m) + 3)}')
        a(f'v_cvt_pk_bf16_f32 {v(o + 2)}, {v(acc(n0 + 1, m))}, {v(acc(n0 + 1, m) + 1)}')
        a(f'v_cvt_pk_bf16_f32 {v(o + 3)}, {v(acc(n0 + 1, m) + 2)}, {v(acc(n0 + 1, m) + 3)}')
        a(f'buffer_store_dwordx4 {v(o, 4)}, {v(vL16)}, {s(S_WS, 4)}, {s(sT2)} offen{OPT["a2_flags"]}')
        if m < 3:
            a(f's_add_u32 {s(sT2)}, {s(sT2)}, {144 * 1024}')
    return 4


def k1_store_single(a, n0, outregs):
    a(f's_lshr_b32 {s(sT2)}, {s(sS)}, 1')
    a(f's_lshl_b32 {s(sT2)}, {s(sT2)}, 10')
    a(f's_add_u32 {s(sT2)}, {s(sT2)}, {s(sA2)}')
    a(f's_and_b32 {s(sT3)}, {s(sS)}, 1')
    a(f's_lshl_b32 {s(sT3)}, {s(sT3)}, 3')
    a(f's_add_u32 {s(sT2)}, {s(sT2)}, {s(sT3)}')
    for m in range(4):
        o = outregs + (m & 1) * 4
        mish4(a, acc(n0, m), vE if (m & 1) == 0 else vT)
        a(f'v_cvt_pk_bf16_f32 {v(o)}, {v(acc(n0, m))}, {v(acc(n0, m) + 1)}')
        a(f'v_cvt_pk_bf16_f32 {v(o + 1)}, {v(acc(n0, m) + 2)}, {v(acc(n0, m) + 3)}')
        a(f'buffer_store_dwordx2 {v(o, 2)}, {v(vL16)}, {s(S_WS, 4)}, {s(sT2)} offen{OPT["a2_flags"]}')
        if m < 3:
            a(f's_add_u32 {s(sT2)}, {s(sT2)}, {144 * 1024}')
    return 4


def k1_epilogue_A(a, grp, L):
    PK, VV, ONES, KV = 8, 24, 40, 44
    OUT = 96
    a('s_nop 7')
    for n in range(2):
        for m in range(4):
            phi4(a, acc(n, m), vE + (m & 1) * 4)
    for i in range(4):
        a(f'v_mov_b32 {v(ONES + i)}, 0x3f803f80')
    for src, dst in ((2, VV), (0, PK)):
        for n in range(2):
            for c in range(2):
                d = dst + (n * 2 + c) * 4
                for hh in range(2):
                    r = acc(src + n, 2 * c + hh)
                    a(f'v_cvt_pk_bf16_f32 {v(d + 2 * hh)}, {v(r)}, {v(r + 1)}')
                    a(f'v_cvt_pk_bf16_f32 {v(d + 2 * hh + 1)}, {v(r + 2)}, {v(r + 3)}')
    for c in range(2):
        for b in range(3):
            for aa in range(2):
                d = v(KV + (b * 2 + aa) * 4, 4)
                B = v(VV + (b * 2 + c) * 4, 4) if b < 2 else v(ONES, 4)
                a(f'v_mfma_f32_16x16x32_bf16 {d}, {v(PK + (aa * 2 + c) * 4, 4)}, {B}, {d if c else "0"}')
    a(f's_mul_i32 {s(sT0)}, {s(sWave)}, 6144')
    a(f'v_add_u32 {v(vT)}, {s(sT0)}, {v(vL16)}')
    for q in range(6):
        a(f'ds_write_b128 {v(vT)}, {v(KV + q * 4, 4)} offset:{q * 1024}')
    a('s_waitcnt lgkmcnt(0)')
    a('s_barrier')
    a(f's_cmp_lg_u32 {s(sW3)}, 0')
    a(f's_cbranch_scc1 {L}_nosum')
    RD = 8
    bases = (68, 8, 128)
    for w in range(3):
        for q in range(6):
            a(f'ds_read_b128 {v(bases[w] + q * 4, 4)}, {v(vT)} offset:{(w + 1) * 6144 + q * 1024}')
    a('s_waitcnt lgkmcnt(0)')
    for w in range(3):
        for q in range(12):
            a(f'v_pk_add_f32 {v(KV + q * 2, 2)}, {v(KV + q * 2, 2)}, {v(bases[w] + q * 2, 2)}')
    a(f's_lshl_b32 {s(sT0)}, {s(sH)}, 3')
    a(f's_add_u32 {s(sT0)}, {s(sT0)}, {s(sI)}')
    a(f's_mul_i32 {s(sT1)}, {s(sT0)}, 6144')
    a(f's_add_u32 {s(sT1)}, {s(sT1)}, {KVP_OFF}')
    a(f's_add_u32 {s(sT3)}, {s(sT1)}, 4096')
    for q in range(6):
        so, off = (sT1, q * 1024) if q < 4 else (sT3, (q - 4) * 1024)
        a(f'buffer_store_dwordx4 {v(KV + q * 4, 4)}, {v(vL16)}, {s(S_WS, 4)}, {s(so)} offen offset:{off} sc1')
    a(f'v_mov_b32 {v(vE)}, 1')
    a('s_waitcnt vmcnt(0)')
    a(f'buffer_store_byte {v(vE)}, off, {s(S_DBG, 4)}, {s(sT0)} sc1')
    a.label(f'{L}_nosum')
    if grp == 0:
        k1_store_pair(a, 4, sP0, 0, 72)
        k1_store_single(a, 6, 72)
    else:
        k1_store_pair(a, 4, sP1, 0, 72)


def k1_epilogue_B(a, grp, L):
    LD = 8
    OUT = 72
    PQ = 80
    KF = 96
    a('s_nop 7')
    k1_store_pair(a, 2, sZ2, 2 * grp, OUT)
    a(f's_cmp_eq_u32 {s(sW3)}, 3')
    a(f's_cbranch_scc1 {L}_nopoll')
    a(f's_lshl_b32 {s(sT0)}, {s(sH)}, 3')
    a(f's_mov_b32 {s(sC)}, 0')
    a.label(f'{L}_poll')
    a(f'buffer_load_dwordx2 {v(vE, 2)}, off, {s(S_DBG, 4)}, {s(sT0)} sc1')
    a(f's_add_u32 {s(sC)}, {s(sC)}, 1')
    a('s_waitcnt vmcnt(0)')
    a(f'v_and_b32 {v(vE)}, {v(vE)}, {v(vE + 1)}')
    a(f'v_readfirstlane_b32 {s(sT1)}, {v(vE)}')
    a(f's_cmp_eq_u32 {s(sT1)}, 0x01010101')
    a(f's_cbranch_scc1 {L}_polled')
    a('s_sleep 2')
    a(f's_cmp_lt_u32 {s(sC)}, 200000')
    a(f's_cbranch_scc1 {L}_poll')
    a.label(f'{L}_polled')
    a(f's_mul_i32 {s(sT1)}, {s(sT0)}, 6144')
    a(f's_lshl_b32 {s(sT3)}, {s(sW3)}, 11')
    a(f's_add_u32 {s(sT1)}, {s(sT1)}, {s(sT3)}')
    a(f's_add_u32 {s(sT1)}, {s(sT1)}, {KVP_OFF}')
    for i in range(8):
        for hh in range(2):
            a(f'buffer_load_dwordx4 {v(LD + (i * 2 + hh) * 4, 4)}, {v(vL16)}, {s(S_WS, 4)}, {s(sT1)} offen offset:{hh * 1024} sc1')
        if i < 7:
            a(f's_add_u32 {s(sT1)}, {s(sT1)}, 6144')
    a.label(f'{L}_nopoll')
    nst = 0
    if grp == 0:
        nst += k1_store_pair(a, 4, sP0, 0, OUT)
        nst += k1_store_single(a, 6, OUT)
    else:
        nst += k1_store_pair(a, 4, sP1, 0, OUT)
    for n in range(2):
        for m in range(4):
            phi4(a, acc(n, m), vE + (m & 1) * 4)
    for m in range(4):
        for n in range(2):
            r = acc(n, m)
            a(f'v_cvt_pk_bf16_f32 {v(PQ + m * 4 + 2 * n)}, {v(r)}, {v(r + 1)}')
            a(f'v_cvt_pk_bf16_f32 {v(PQ + m * 4 + 2 * n + 1)}, {v(r + 2)}, {v(r + 3)}')
    a(f'v_add_u32 {v(vT)}, {grp * 3072}, {v(vL16)}')
    a(f's_cmp_eq_u32 {s(sW3)}, 3')
    a(f's_cbranch_scc1 {L}_nosum')
    a(f's_waitcnt vmcnt({nst})')
    for i in range(1, 8):
        for q in range(4):
            a(f'v_pk_add_f32 {v(LD + q * 2, 2)}, {v(LD + q * 2, 2)}, {v(LD + i * 8 + q * 2, 2)}')
    for q in range(4):
        a(f'v_cvt_pk_bf16_f32 {v(KF + q)}, {v(LD + 2 * q)}, {v(LD + 2 * q + 1)}')
    a(f's_lshl_b32 {s(sT3)}, {s(sW3)}, 10')
    a(f'v_add_u32 {v(vT + 1)}, {s(sT3)}, {v(vT)}')
    a(f'ds_write_b128 {v(vT + 1)}, {v(KF, 4)}')
    a('s_waitcnt lgkmcnt(0)')
    a.label(f'{L}_nosum')
    a('s_barrier')
    for f in range(3):
        a(f'ds_read_b128 {v(KF + f * 4, 4)}, {v(vT)} offset:{f * 1024}')
    a('s_waitcnt lgkmcnt(0)')
    for m in range(4):
        for b in range(3):
            a(f'v_mfma_f32_16x16x32_bf16 {v(acc(2 + b, m), 4)}, {v(KF + b * 4, 4)}, {v(PQ + m * 4, 4)}, 0')
    a(f's_mul_i32 {s(sT2)}, {s(sT)}, 7')
    a(f's_add_u32 {s(sT2)}, {s(sT2)}, 32')
    a(f's_sub_u32 {s(sT2)}, {s(sH)}, {s(sT2)}')
    a(f's_lshl_b32 {s(sT2)}, {s(sT2)}, 10')
    a(f's_add_u32 {s(sT2)}, {s(sT2)}, {s(sA2)}')
    a('s_nop 7')
    for m in range(4):
        o = OUT + (m & 1) * 4
        dn = acc(4, m)
        a(f'v_add_f32 {v(dn)}, {s(sEps)}, {v(dn)}')
        a(f'v_rcp_f32 {v(dn)}, {v(dn)}')
        for b in range(2):
            r = acc(2 + b, m)
            for h in (0, 2):
                a(f'v_pk_mul_f32 {v(r + h, 2)}, {v(r + h, 2)}, {v(dn, 2)} op_sel_hi:[1,0]')
            a(f'v_cvt_pk_bf16_f32 {v(o + 2 * b)}, {v(r)}, {v(r + 1)}')
            a(f'v_cvt_pk_bf16_f32 {v(o + 2 * b + 1)}, {v(r + 2)}, {v(r + 3)}')
        a(f'buffer_store_dwordx4 {v(o, 4)}, {v(vL16)}, {s(S_WS, 4)}, {s(sT2)} offen{OPT["a2_flags"]}')
        if m < 3:
            a(f's_add_u32 {s(sT2)}, {s(sT2)}, {144 * 1024}')


def k1_pf_unit():
    return [[f's_cmp_ge_u32 {s(sPFu)}, {s(sPFlo)}',
             f's_cselect_b32 {s(S_PF + 2)}, {s(sPFnr)}, 0',
             f's_cmp_ge_u32 {s(sPFu)}, {s(sPFhi)}',
             f's_cselect_b32 {s(S_PF + 2)}, 0, {s(S_PF + 2)}',
             f'buffer_load_dword v3, {v(vPF)}, {s(S_PF, 4)}, {s(sPFo)} offen'],
            [f'buffer_load_dword v3, {v(vPF + 1)}, {s(S_PF, 4)}, {s(sPFo)} offen',
             f's_add_u32 {s(sPFo)}, {s(sPFo)}, {s(sPFs)}',
             f's_add_u32 {s(sPFu)}, {s(sPFu)}, 1']]


def gen_k1(a):
    a.label('k1_kernel')
    a('s_cmp_ge_u32 s2, 256')
    a('s_cbranch_scc1 K1_end')
    a('s_load_dwordx16 s[4:19], s[0:1], 0')
    a('s_load_dwordx4 s[20:23], s[0:1], 64')
    a('s_load_dwordx2 s[24:25], s[0:1], 80')
    a('v_and_b32 v1, 63, v0')
    a('v_lshrrev_b32 v2, 6, v0')
    a(f'v_readfirstlane_b32 {s(sWave)}, v2')
    a(f's_and_b32 {s(sT0)}, s2, 7')
    a(f's_lshr_b32 {s(sT1)}, s2, 3')
    a(f's_and_b32 {s(sI)}, {s(sT0)}, 1')
    a(f's_lshl_b32 {s(sI)}, {s(sI)}, 2')
    a(f's_and_b32 {s(sT2)}, {s(sT1)}, 3')
    a(f's_add_u32 {s(sI)}, {s(sI)}, {s(sT2)}')
    a(f's_lshr_b32 {s(sC)}, {s(sT0)}, 1')
    a(f's_lshl_b32 {s(sC)}, {s(sC)}, 3')
    a(f's_lshr_b32 {s(sT2)}, {s(sT1)}, 2')
    a(f's_add_u32 {s(sC)}, {s(sC)}, {s(sT2)}')
    a(f's_lshr_b32 {s(sT)}, {s(sC)}, 1')
    a(f's_and_b32 {s(sTyp)}, {s(sC)}, 1')
    a(f's_and_b32 {s(sW3)}, {s(sWave)}, 3')
    a(f's_lshr_b32 {s(sGrp)}, {s(sWave)}, 2')
    a(f's_lshl_b32 {s(sH)}, {s(sT)}, 1')
    a(f's_add_u32 {s(sH)}, {s(sH)}, {s(sGrp)}')
    a(f's_cmp_eq_u32 {s(sTyp)}, 0')
    a(f's_mov_b32 {s(sT2)}, 0x286085C6')
    a(f's_cselect_b32 {s(sT2)}, 0x09CA0420, {s(sT2)}')
    a(f's_and_b32 {s(sT3)}, {s(sT)}, 1')
    a(f's_lshl_b32 {s(sT3)}, {s(sT3)}, 4')
    a(f's_lshr_b32 {s(sT2)}, {s(sT2)}, {s(sT3)}')
    a(f's_and_b32 {s(sP0)}, {s(sT2)}, 15')
    a(f's_bfe_u32 {s(sP1)}, {s(sT2)}, 0x40004')
    a(f's_bfe_u32 {s(sS)}, {s(sT2)}, 0x40008')
    a(f's_bfe_u32 {s(sZ2)}, {s(sT2)}, 0x4000c')
    a(f's_mov_b32 {s(sL2E)}, {LOG2E}')
    a(f's_mov_b32 {s(sC60)}, 0x42700000')
    a(f's_mov_b32 {s(sEps)}, 0x358637bd')
    a(f's_lshl_b32 {s(sA2)}, {s(sI)}, 2')
    a(f's_add_u32 {s(sA2)}, {s(sA2)}, {s(sW3)}')
    a(f's_mul_i32 {s(sA2)}, {s(sA2)}, {4 * 144}')
    a(f's_mul_i32 {s(sT2)}, {s(sT)}, 7')
    a(f's_add_u32 {s(sA2)}, {s(sA2)}, {s(sT2)}')
    a(f's_add_u32 {s(sA2)}, {s(sA2)}, 32')
    a(f's_lshl_b32 {s(sA2)}, {s(sA2)}, 10')
    a(f'v_lshlrev_b32 {v(vL16)}, 4, v1')
    a('v_lshrrev_b32 v2, 4, v1')
    a('v_bfe_u32 v3, v1, 2, 2')
    a('v_and_b32 v4, 3, v1')
    a('v_lshl_add_u32 v5, v2, 3, v3')
    a('v_lshrrev_b32 v6, 1, v3')
    a('v_and_b32 v7, 1, v2')
    a('v_lshl_or_b32 v6, v7, 1, v6')
    a(f's_lshl_b32 {s(sT2)}, {s(sGrp)}, 1')
    for q in range(2):
        a(f's_add_u32 {s(sT3)}, {s(sT2)}, {q}')
        a(f'v_xor_b32 {v(vT)}, {s(sT3)}, v6')
        a(f'v_lshlrev_b32 {v(vT)}, 5, {v(vT)}')
        a(f'v_lshl_add_u32 {v(vT)}, v5, 7, {v(vT)}')
        a(f'v_lshl_add_u32 {v(vWZ12 + q)}, v4, 3, {v(vT)}')
    a('v_lshl_or_b32 v6, v7, 2, v3')
    for q in range(3):
        if q < 2:
            a(f's_add_u32 {s(sT3)}, {s(sT2)}, {q}')
        else:
            a(f's_mov_b32 {s(sT3)}, 4')
        a(f'v_xor_b32 {v(vT)}, {s(sT3)}, v6')
        a(f'v_lshlrev_b32 {v(vT)}, 5, {v(vT)}')
        a(f'v_lshl_add_u32 {v(vT)}, v5, 8, {v(vT)}')
        a(f'v_lshl_add_u32 {v(vT)}, v4, 3, {v(vT)}')
        a(f'v_add_u32 {v(vWZ3 + q)}, 8192, {v(vT)}')
    a('v_and_b32 v5, 15, v1')
    a('v_bfe_u32 v6, v1, 1, 3')
    a('v_xor_b32 v6, v6, v2')
    a(f's_lshl_b32 {s(sT3)}, {s(sW3)}, 13')
    a(f's_add_u32 {s(sT3)}, {s(sT3)}, 65536')
    a(f'v_lshlrev_b32 v5, 7, v5')
    a(f'v_lshl_add_u32 v5, v6, 4, v5')
    a(f'v_add_u32 {v(vXA0c)}, {s(sT3)}, v5')
    a(f'v_xor_b32 {v(vXA1c)}, 64, {v(vXA0c)}')
    a(f'v_mov_b32 {v(vXA0)}, {v(vXA0c)}')
    a(f'v_mov_b32 {v(vXA1)}, {v(vXA1c)}')
    a(f's_mov_b32 {s(sXR)}, 0')
    for r in range(vXV, vPF + 2):
        if r != vL16:
            a(f'v_mov_b32 {v(r)}, 0')
    a('s_waitcnt lgkmcnt(0)')
    srd(a, S_X, 4, 2048 * 1024 * 2)
    srd(a, S_WS, 24, WS_SIZE)
    srd(a, S_DBG, 22, 256)
    srd(a, S_B1, 14, 3584 * 2)
    srd(a, S_B1Z, 14, 3584 * 2)
    srd(a, S_G, 18, 2048)
    a(f's_cmp_eq_u32 {s(sTyp)}, 0')
    a(f's_cselect_b32 {s(S_B1Z + 2)}, 0, {s(S_B1Z + 2)}')
    a(f's_lshl_b32 {s(sT2)}, {s(sI)}, 8')
    a(f's_lshl_b32 {s(sT3)}, {s(sC)}, 3')
    a(f's_add_u32 {s(sT2)}, {s(sT2)}, {s(sT3)}')
    a(f's_add_u32 {s(sPFn)}, {s(sT2)}, {s(sWave)}')
    a(f's_lshl_b32 {s(sT2)}, {s(sPFn)}, 11')
    GX, GW = 8, 16
    a(f'buffer_load_dwordx4 {v(GX, 4)}, {v(vL16)}, {s(S_X, 4)}, {s(sT2)} offen')
    a(f'buffer_load_dwordx4 {v(GX + 4, 4)}, {v(vL16)}, {s(S_X, 4)}, {s(sT2)} offen offset:1024')
    a(f'buffer_load_dwordx4 {v(GW, 4)}, {v(vL16)}, {s(S_G, 4)}, 0 offen')
    a(f'buffer_load_dwordx4 {v(GW + 4, 4)}, {v(vL16)}, {s(S_G, 4)}, 0 offen offset:1024')
    BI = 24
    a('v_lshlrev_b32 v5, 3, v2')
    a(f's_mul_i32 {s(sT2)}, {s(sT)}, 448')
    a(f's_lshl_b32 {s(sT3)}, {s(sGrp)}, 1')
    a(f's_add_u32 {s(sT3)}, {s(sT3)}, {s(sZ2)}')
    a(f's_lshl_b32 {s(sT3)}, {s(sT3)}, 5')
    a(f's_add_u32 {s(sT3)}, {s(sT3)}, {s(sT2)}')
    a(f'buffer_load_dwordx2 {v(BI, 2)}, v5, {s(S_B1Z, 4)}, {s(sT3)} offen')
    a(f'buffer_load_dwordx2 {v(BI + 2, 2)}, v5, {s(S_B1Z, 4)}, {s(sT3)} offen offset:32')
    a(f's_cmp_eq_u32 {s(sGrp)}, 0')
    a(f's_cselect_b32 {s(sT3)}, {s(sP0)}, {s(sP1)}')
    a(f's_lshl_b32 {s(sT3)}, {s(sT3)}, 5')
    a(f's_add_u32 {s(sT3)}, {s(sT3)}, {s(sT2)}')
    a(f'buffer_load_dwordx2 {v(BI + 4, 2)}, v5, {s(S_B1, 4)}, {s(sT3)} offen')
    a(f'buffer_load_dwordx2 {v(BI + 6, 2)}, v5, {s(S_B1, 4)}, {s(sT3)} offen offset:32')
    a(f's_lshl_b32 {s(sT3)}, {s(sS)}, 5')
    a(f's_add_u32 {s(sT3)}, {s(sT3)}, {s(sT2)}')
    a(f'buffer_load_dwordx2 {v(BI + 8, 2)}, v5, {s(S_B1, 4)}, {s(sT3)} offen')
    srd(a, S_W, 6, 1024 * 3072 * 2)
    srd(a, S_PF, 4, 2048 * 1024 * 2)
    a(f's_cmp_eq_u32 {s(sGrp)}, 0')
    a('s_cbranch_scc1 K1_setup_g0')
    a('v_lshrrev_b32 v3, 3, v1')
    a('v_and_b32 v4, 7, v1')
    a(f's_lshl_b32 {s(sT2)}, {s(sW3)}, 16')
    for j in range(4):
        a(f'v_xor_b32 v5, {4 * (j & 1)}, v2')
        a('v_xor_b32 v5, v5, v4')
        a('v_lshlrev_b32 v5, 4, v5')
        a('v_lshl_add_u32 v5, v3, 11, v5')
        a(f's_add_u32 {s(sT3)}, {s(sT2)}, {j * 8 * 2048 - j * 1024}')
        a(f'v_add_u32 {v(vXV + j)}, {s(sT3)}, v5')
    a(f's_lshl_b32 {s(sM0W)}, {s(sW3)}, 12')
    a(f's_add_u32 {s(sM0X)}, {s(sM0W)}, 65536')
    a(f's_lshl_b32 {s(sXK)}, {s(sI)}, 19')
    a(f's_mov_b32 {s(sWoff)}, 0')
    a(f's_cmp_ge_u32 {s(sW3)}, 2')
    a('s_cbranch_scc1 K1_setup_z3')
    a(f's_lshl_b32 {s(sT2)}, {s(sT)}, 7')
    a(f's_add_u32 {s(sT3)}, {s(sW3)}, 1')
    a(f's_lshl_b32 {s(sT3)}, {s(sT3)}, 11')
    a(f's_cmp_eq_u32 {s(sTyp)}, 0')
    a(f's_cselect_b32 {s(sT3)}, {s(sT3)}, 0')
    a(f's_add_u32 {s(sT2)}, {s(sT2)}, {s(sT3)}')
    a(f's_mov_b32 {s(sWstr)}, 6144')
    a(f's_and_b32 {s(sT3)}, {s(sTyp)}, {s(sW3)}')
    a(f's_cmp_eq_u32 {s(sT3)}, 1')
    a('s_cbranch_scc0 K1_z12_go')
    srd(a, S_W, 12, 1024 * 3584 * 2)
    a(f's_mov_b32 {s(sWstr)}, 7168')
    a(f's_mul_i32 {s(sT2)}, {s(sT)}, 448')
    a(f's_lshl_b32 {s(sT3)}, {s(sZ2)}, 5')
    a(f's_add_u32 {s(sT2)}, {s(sT2)}, {s(sT3)}')
    a.label('K1_z12_go')
    a('v_lshrrev_b32 v5, 1, v4')
    a('v_and_b32 v6, 1, v2')
    a('v_xor_b32 v5, v5, v6')
    a('v_and_b32 v6, 1, v1')
    a(f'v_mul_lo_u32 v7, v3, {s(sWstr)}')
    for j in range(4):
        a(f'v_xor_b32 {v(vT)}, {2 * (j & 1)}, v5')
        a(f'v_lshlrev_b32 {v(vT)}, 5, {v(vT)}')
        a(f'v_lshl_add_u32 {v(vT)}, v6, 4, {v(vT)}')
        a(f'v_add_u32 {v(vT)}, {v(vT)}, v7')
        a(f's_mul_i32 {s(sT3)}, {s(sWstr)}, {8 * j}')
        a(f's_add_u32 {s(sT3)}, {s(sT3)}, {s(sT2)}')
        a(f's_sub_u32 {s(sT3)}, {s(sT3)}, {1024 * j}')
        a(f'v_add_u32 {v(vWV + j)}, {s(sT3)}, {v(vT)}')
    a('s_branch K1_setup_w_done')
    a.label('K1_setup_z3')
    srd(a, S_W, 12, 1024 * 3584 * 2)
    a(f's_mov_b32 {s(sWstr)}, 7168')
    a('v_bfe_u32 v5, v1, 1, 3')
    a('v_xor_b32 v5, v5, v2')
    a('v_and_b32 v6, 1, v1')
    a(f'v_mul_u32_u24 v7, 7168, v2')
    a('v_lshl_add_u32 v7, v6, 4, v7')
    a(f's_mul_i32 {s(sT2)}, {s(sT)}, 448')
    a(f's_sub_u32 {s(sT3)}, {s(sW3)}, 2')
    a(f's_mul_i32 {s(sT3)}, {s(sT3)}, {16 * 7168}')
    a(f's_add_u32 {s(sT2)}, {s(sT2)}, {s(sT3)}')
    a(f's_sub_u32 {s(sT0)}, {s(sP1)}, 2')
    a(f's_sub_u32 {s(sT1)}, {s(sS)}, 4')
    for j in range(4):
        a(f'v_xor_b32 {v(vT)}, {4 * ((j >> 1) & 1)}, v5')
        a(f'v_mov_b32 {v(vT + 1)}, {s(sP0)}')
        a(f'v_mov_b32 {v(vT + 2)}, {s(sT0)}')
        a(f'v_cmp_lt_u32 vcc, 1, {v(vT)}')
        a(f'v_cndmask_b32 {v(vT + 1)}, {v(vT + 1)}, {v(vT + 2)}, vcc')
        a(f'v_mov_b32 {v(vT + 2)}, {s(sT1)}')
        a(f'v_cmp_lt_u32 vcc, 3, {v(vT)}')
        a(f'v_cndmask_b32 {v(vT + 1)}, {v(vT + 1)}, {v(vT + 2)}, vcc')
        a(f'v_add_u32 {v(vT + 1)}, {v(vT + 1)}, {v(vT)}')
        a(f'v_lshl_add_u32 {v(vT + 1)}, {v(vT + 1)}, 5, v7')
        a(f's_add_u32 {s(sT3)}, {s(sT2)}, {4 * j * 7168 - 1024 * j}')
        a(f'v_add_u32 {v(vT + 1)}, {s(sT3)}, {v(vT + 1)}')
        a(f'v_mov_b32 {v(vT + 2)}, 0x40000000')
        a(f'v_cmp_lt_u32 vcc, 4, {v(vT)}')
        a(f'v_cndmask_b32 {v(vWV + j)}, {v(vT + 1)}, {v(vT + 2)}, vcc')
    a.label('K1_setup_w_done')
    a(f's_lshl_b32 {s(sWstep)}, {s(sWstr)}, 5')
    a(f's_sub_u32 {s(sXK)}, {s(sXK)}, 128')
    a(f's_mov_b32 {s(sXD)}, 65536')
    for x in k1_dma_w(0) + k1_dma_x(0) + k1_dma_x(1) + k1_dma_w(1) + k1_dma_w(2) + k1_dma_x(0) + k1_dma_x(1) + k1_dma_w(3) + k1_dma_x(0):
        a(x)
    a('s_waitcnt vmcnt(36)')
    a('s_branch K1_common')
    a.label('K1_setup_g0')
    if OPT['k1_prefetch']:
        gen_k1_pf_setup(a)
    a('s_waitcnt vmcnt(%d)' % (4 if OPT['k1_prefetch'] else 0))
    a.label('K1_common')
    a('v_mov_b32 v5, 0')
    for i in range(8):
        a(f'v_dot2_f32_bf16 v5, {v(GX + i)}, {v(GW + i)}, v5')
    a('s_nop 2')
    for sh in (1, 2, 4, 8):
        a(f'v_add_f32_dpp v5, v5, v5 row_shr:{sh} row_mask:0xf bank_mask:0xf bound_ctrl:0')
    a('v_add_f32_dpp v5, v5, v5 row_bcast:15 row_mask:0xa bank_mask:0xf')
    a('v_add_f32_dpp v5, v5, v5 row_bcast:31 row_mask:0xc bank_mask:0xf')
    a(f'v_mov_b32 v6, 0x42200000')
    a(f'v_med3_f32 v5, v5, -v6, v6')
    a(f'v_mul_f32 v5, {s(sL2E)}, v5')
    a('v_exp_f32 v5, v5')
    a(f's_lshl_b32 {s(sT2)}, {s(sPFn)}, 2')
    a(f's_add_u32 {s(sT2)}, {s(sT2)}, {E_OFF}')
    a(f'v_readlane_b32 {s(sT3)}, v5, 63')
    a(f'v_mov_b32 {v(vE + 15)}, {s(sT3)}')
    a(f's_mov_b32 {s(sPFn)}, {s(sT2)}')
    for n in range(2):
        for r in range(16):
            a(f'v_mov_b32 {v(acc(n, 0) + r)}, 0')
    for n in range(2, 7):
        b = BI + (n - 2) * 2
        r0 = acc(n, 0)
        a(f'v_lshlrev_b32 {v(r0)}, 16, {v(b)}')
        a(f'v_and_b32 {v(r0 + 1)}, 0xffff0000, {v(b)}')
        a(f'v_lshlrev_b32 {v(r0 + 2)}, 16, {v(b + 1)}')
        a(f'v_and_b32 {v(r0 + 3)}, 0xffff0000, {v(b + 1)}')
        for m in range(1, 4):
            for h in (0, 2):
                a(f'v_pk_mov_b32 {v(acc(n, m) + h, 2)}, {v(r0 + h, 2)}, {v(r0 + h, 2)} op_sel:[0,1]')
    a(f's_lshl_b32 {s(sT2)}, {s(sTyp)}, 1')
    a(f's_add_u32 {s(sT2)}, {s(sT2)}, {s(sGrp)}')
    a(f's_cmp_eq_u32 {s(sT2)}, 1')
    a('s_cbranch_scc1 K1_v01')
    a(f's_cmp_eq_u32 {s(sT2)}, 2')
    a('s_cbranch_scc1 K1_v10')
    a(f's_cmp_eq_u32 {s(sT2)}, 3')
    a('s_cbranch_scc1 K1_v11')
    for typ in range(2):
        for grp in range(2):
            L = f'K1_v{typ}{grp}'
            a.label(L)
            if grp == 1:
                a('s_waitcnt vmcnt(24)')
            a('s_barrier')
            for x in k1_reads(grp, 0, 0, 0):
                a(x)
            a(f's_mov_b32 {s(sCnt)}, 0')
            if grp == 1:
                a('s_waitcnt vmcnt(20) lgkmcnt(0)')
            else:
                a('s_waitcnt lgkmcnt(0)')
            a('s_barrier')
            a.label(L + '_loop')
            for b in range(4):
                pf = None
                if grp == 0 and b == 0 and OPT['k1_prefetch']:
                    pf = k1_pf_unit()
                k1_substep(a, grp, typ, b, pf=pf)
            a(f's_add_u32 {s(sCnt)}, {s(sCnt)}, 1')
            a(f's_cmp_lt_u32 {s(sCnt)}, 7')
            a(f's_cbranch_scc1 {L}_loop')
            for b in range(4):
                k1_substep(a, grp, typ, b, dma=False, reads=(b < 3), last=(b == 3))
            if typ == 0:
                k1_epilogue_A(a, grp, L)
            else:
                k1_epilogue_B(a, grp, L)
            a('s_branch K1_fin')
    a.label('K1_fin')
    a('s_mov_b64 exec, 1')
    a(f'buffer_store_dword {v(vE + 15)}, off, {s(S_WS, 4)}, {s(sPFn)}')
    a(f's_cmp_lg_u32 {s(sWave)}, 0')
    a('s_cbranch_scc1 K1_end')
    a('s_mov_b64 exec, 0xff')
    a('v_mov_b32 v5, 0')
    a('v_lshlrev_b32 v6, 2, v1')
    a(f's_lshl_b32 {s(sT2)}, s2, 7')
    a(f's_add_u32 {s(sT2)}, {s(sT2)}, {FLG_OFF}')
    a(f'buffer_store_dword v5, v6, {s(S_WS, 4)}, {s(sT2)} offen')
    a.label('K1_end')
    a('s_endpgm')


def gen_k1_pf_setup(a):
    a(f's_and_b32 {s(sT0)}, s2, 7')
    a(f's_lshr_b32 {s(sT1)}, s2, 3')
    a(f's_mov_b32 {s(sPFo)}, 0')
    a(f's_mov_b32 {s(sPFu)}, 0')
    a(f's_mov_b32 {s(sPFlo)}, 0')
    a(f's_mov_b32 {s(sPFhi)}, 4')
    a(f's_cmp_eq_u32 {s(sW3)}, 1')
    a('s_cbranch_scc1 K1_pf1')
    a(f's_cmp_eq_u32 {s(sW3)}, 2')
    a('s_cbranch_scc1 K1_pf2')
    a(f's_cmp_eq_u32 {s(sW3)}, 3')
    a('s_cbranch_scc1 K1_pf3')
    a(f's_and_b32 {s(sT2)}, {s(sT0)}, 1')
    a(f's_lshl_b32 {s(sT2)}, {s(sT2)}, 10')
    a(f's_lshl_b32 {s(sT3)}, {s(sT1)}, 5')
    a(f's_add_u32 {s(sT2)}, {s(sT2)}, {s(sT3)}')
    a(f's_lshl_b32 {s(sT2)}, {s(sT2)}, 11')
    a('v_lshrrev_b32 v5, 2, v1')
    a('v_and_b32 v6, 3, v1')
    a('v_lshlrev_b32 v6, 7, v6')
    a('v_lshl_add_u32 v5, v5, 11, v6')
    a(f'v_add_u32 {v(vPF)}, {s(sT2)}, v5')
    a(f'v_add_u32 {v(vPF + 1)}, {16 * 2048}, {v(vPF)}')
    a(f's_mov_b32 {s(sPFs)}, 512')
    a('s_branch K1_pf_go')
    a.label('K1_pf1')
    srd(a, S_PF, 6, 1024 * 3072 * 2)
    a(f's_lshr_b32 {s(sT2)}, {s(sT0)}, 1')
    a(f's_lshl_b32 {s(sT2)}, {s(sT2)}, 9')
    a(f's_mul_i32 {s(sT3)}, {s(sT1)}, {8 * 6144}')
    a(f's_add_u32 {s(sT2)}, {s(sT2)}, {s(sT3)}')
    a('v_lshrrev_b32 v5, 3, v1')
    a('v_mul_u32_u24 v5, 6144, v5')
    a('v_and_b32 v6, 3, v1')
    a('v_lshl_add_u32 v5, v6, 7, v5')
    a('v_bfe_u32 v6, v1, 2, 1')
    a(f'v_add_u32 v5, {s(sT2)}, v5')
    a(f'v_lshl_add_u32 {v(vPF)}, v6, 11, v5')
    a(f'v_add_u32 {v(vPF + 1)}, 4096, v5')
    a(f's_mov_b32 {s(sPFs)}, {256 * 6144}')
    a('s_branch K1_pf_go')
    a.label('K1_pf2')
    srd(a, S_PF, 12, 1024 * 3584 * 2)
    a(f's_lshr_b32 {s(sT2)}, {s(sT0)}, 1')
    a(f's_mul_i32 {s(sT2)}, {s(sT2)}, 1792')
    a(f's_mul_i32 {s(sT3)}, {s(sT1)}, {8 * 7168}')
    a(f's_add_u32 {s(sT2)}, {s(sT2)}, {s(sT3)}')
    a('v_mul_u32_u24 v5, 7168, v2')
    a('v_and_b32 v6, 15, v1')
    a('v_min_u32 v6, 13, v6')
    a('v_lshl_add_u32 v5, v6, 7, v5')
    a(f'v_add_u32 {v(vPF)}, {s(sT2)}, v5')
    a(f'v_add_u32 {v(vPF + 1)}, {4 * 7168}, {v(vPF)}')
    a(f's_mov_b32 {s(sPFs)}, {256 * 7168}')
    a('s_branch K1_pf_go')
    a.label('K1_pf3')
    srd(a, S_PF, 16, 3584 * 1024 * 2)
    a(f's_mul_i32 {s(sT2)}, s2, 28672')
    a('v_lshlrev_b32 v5, 7, v1')
    a(f'v_add_u32 {v(vPF)}, {s(sT2)}, v5')
    a(f'v_add_u32 {v(vPF + 1)}, 8192, {v(vPF)}')
    a(f's_mov_b32 {s(sPFs)}, 16384')
    a(f's_mov_b32 {s(sPFlo)}, 4')
    a(f's_mov_b32 {s(sPFhi)}, 6')
    a(f's_mov_b32 {s(sPFo)}, {(-4 * 16384) & 0xffffffff}')
    a.label('K1_pf_go')
    a(f's_mov_b32 {s(sPFnr)}, {s(S_PF + 2)}')
    for u in range(2):
        for unit in k1_pf_unit():
            for x in unit:
                a(x)


K2_U = 9
S2_A, S2_B, S2_OUT, S2_AL, S2_W2 = 28, 32, 36, 40, 44
s2Rb, s2Cb, s2Ks, s2Wave, s2W3, s2P = 56, 57, 58, 59, 60, 61
s2Aoff, s2Boff, s2Jd, s2Cnt, s2M0 = 62, 63, 64, 65, 66
s2T0, s2T1, s2T2, s2T3 = 67, 68, 69, 70
s2Sw = 71
s2Aend = 72
k2ACC = 0 + 8
k2A = 72
k2BF = 144
k2RA = 208
k2AV = 232
k2BV = 234
k2E = 236
k2T = 238


def k2acc(n, m):
    return k2ACC + (n * 2 + m) * 4


def k2_reads(buf, slot):
    out = []
    for n in range(8):
        addr = k2RA + (slot // 4) * 8 + n
        off = (slot % 4) * 16384
        d = k2BF + buf * 32 + n * 4
        out.append(f'ds_read_b64_tr_b16 {v(d, 2)}, {v(addr)} offset:{off}')
        out.append(f'ds_read_b64_tr_b16 {v(d + 2, 2)}, {v(addr)} offset:{off + 4096}')
    return out


def k2_dma_b(slot):
    out = [f's_add_u32 m0, {s(s2M0)}, {slot * 16384}']
    for j in range(2):
        out.append(f'buffer_load_dwordx4 {v(k2BV + j)}, {s(S2_B, 4)}, {s(s2Boff)} offen offset:{j * 1024} lds')
    out.append(f's_add_u32 {s(s2Boff)}, {s(s2Boff)}, 131072')
    out.append(f's_add_u32 {s(s2Jd)}, {s(s2Jd)}, 1')
    out.append(f's_cmp_eq_u32 {s(s2Jd)}, {s(s2Sw)}')
    out.append(f's_cselect_b32 {s(s2Boff)}, 0, {s(s2Boff)}')
    out.append(f's_cselect_b32 {s(S2_B)}, {s(S2_W2)}, {s(S2_B)}')
    out.append(f's_cselect_b32 {s(S2_B + 1)}, {s(S2_W2 + 1)}, {s(S2_B + 1)}')
    out.append(f's_cselect_b32 {s(S2_B + 2)}, {s(S2_W2 + 2)}, {s(S2_B + 2)}')
    out.append(f's_cmp_eq_u32 {s(s2Jd)}, 36')
    out.append(f's_cselect_b32 {s(S2_B + 2)}, 0, {s(S2_B + 2)}')
    return out


def k2_load_a(aset):
    out = []
    for m in range(2):
        out.append(f'buffer_load_dwordx4 {v(k2A + aset * 8 + m * 4, 4)}, {v(k2AV + m)}, {s(S2_AL, 4)}, {s(s2Aoff)} offen')
    out.append(f's_add_u32 {s(s2Aoff)}, {s(s2Aoff)}, 2048')
    out.append(f's_cmp_eq_u32 {s(s2Aoff)}, {s(s2Aend)}')
    out.append(f's_cselect_b32 {s(S2_AL + 2)}, 0, {s(S2_AL + 2)}')
    return out


def gen_k2(a):
    U = K2_U
    a.label('k2_kernel')
    a('s_cmp_ge_u32 s2, 256')
    a('s_cbranch_scc1 K2_end')
    a('s_load_dwordx2 s[8:9], s[0:1], 16')
    a('s_load_dwordx2 s[16:17], s[0:1], 48')
    a('s_load_dwordx2 s[20:21], s[0:1], 64')
    a('s_load_dwordx2 s[24:25], s[0:1], 80')
    a('v_and_b32 v1, 63, v0')
    a('v_lshrrev_b32 v2, 6, v0')
    a(f'v_readfirstlane_b32 {s(s2Wave)}, v2')
    a(f's_and_b32 {s(s2T0)}, s2, 7')
    a(f's_lshr_b32 {s(s2T1)}, s2, 3')
    a(f's_and_b32 {s(s2Ks)}, {s(s2T0)}, 1')
    a(f's_lshr_b32 {s(s2T2)}, {s(s2T0)}, 2')
    a(f's_lshl_b32 {s(s2Rb)}, {s(s2T2)}, 3')
    a(f's_and_b32 {s(s2T2)}, {s(s2T1)}, 7')
    a(f's_add_u32 {s(s2Rb)}, {s(s2Rb)}, {s(s2T2)}')
    a(f's_bfe_u32 {s(s2T2)}, {s(s2T0)}, 0x10001')
    a(f's_lshl_b32 {s(s2Cb)}, {s(s2T2)}, 2')
    a(f's_lshr_b32 {s(s2T2)}, {s(s2T1)}, 3')
    a(f's_add_u32 {s(s2Cb)}, {s(s2Cb)}, {s(s2T2)}')
    a(f's_and_b32 {s(s2W3)}, {s(s2Wave)}, 3')
    a(f's_lshr_b32 {s(s2P)}, {s(s2Wave)}, 2')
    a('v_lshrrev_b32 v2, 4, v1')
    a('v_bfe_u32 v3, v1, 2, 2')
    a('v_and_b32 v4, 3, v1')
    a('v_lshl_add_u32 v5, v2, 2, v3')
    a('v_and_b32 v6, 7, v5')
    a(f's_lshl_b32 {s(s2T2)}, {s(s2P)}, 13')
    a('v_lshlrev_b32 v5, 8, v5')
    a('v_lshl_add_u32 v5, v4, 3, v5')
    a(f'v_add_u32 v5, {s(s2T2)}, v5')
    for n in range(8):
        a(f'v_xor_b32 v7, {n}, v6')
        a(f'v_lshl_add_u32 {v(k2RA + n)}, v7, 5, v5')
        a(f'v_add_u32 {v(k2RA + 8 + n)}, 65536, {v(k2RA + n)}')
        a(f'v_add_u32 {v(k2RA + 16 + n)}, 131072, {v(k2RA + n)}')
    a(f's_lshl_b32 {s(s2T2)}, {s(s2Rb)}, 3')
    a(f's_lshl_b32 {s(s2T3)}, {s(s2W3)}, 1')
    a(f's_add_u32 {s(s2T2)}, {s(s2T2)}, {s(s2T3)}')
    a(f's_mul_i32 {s(s2T3)}, {s(s2T2)}, 144')
    a(f's_add_u32 {s(s2T3)}, {s(s2T3)}, {s(s2P)}')
    a(f's_lshl_b32 {s(s2T3)}, {s(s2T3)}, 10')
    a('v_lshlrev_b32 v7, 4, v1')
    a(f'v_add_u32 {v(k2AV)}, {s(s2T3)}, v7')
    a(f'v_add_u32 {v(k2AV + 1)}, {144 * 1024}, {v(k2AV)}')
    a(f's_mul_i32 {s(s2Aoff)}, {s(s2Ks)}, {72 * 1024}')
    a(f's_add_u32 {s(s2Aend)}, {s(s2Aoff)}, {72 * 1024}')
    a('v_bfe_u32 v5, v1, 1, 3')
    a('v_xor_b32 v5, v5, v2')
    a('v_and_b32 v6, 1, v1')
    a('v_lshlrev_b32 v6, 4, v6')
    a('v_lshl_add_u32 v6, v2, 11, v6')
    a(f's_lshl_b32 {s(s2T3)}, {s(s2Wave)}, 14')
    a(f's_lshl_b32 {s(s2T0)}, {s(s2Cb)}, 8')
    a(f's_add_u32 {s(s2T3)}, {s(s2T3)}, {s(s2T0)}')
    for j in range(2):
        a(f'v_xor_b32 v7, {4 * j}, v5')
        a('v_lshl_add_u32 v7, v7, 5, v6')
        a(f's_add_u32 {s(s2T0)}, {s(s2T3)}, {j * (4 * 2048 - 1024)}')
        a(f'v_add_u32 {v(k2BV + j)}, {s(s2T0)}, v7')
    a(f's_lshl_b32 {s(s2M0)}, {s(s2Wave)}, 11')
    a('s_waitcnt lgkmcnt(0)')
    srd(a, S2_A, 24, WS_SIZE)
    srd(a, S2_AL, 24, WS_SIZE)
    srd(a, S2_OUT, 20, 2048 * 1024 * 2)
    srd(a, S2_W2, 16, 3584 * 1024 * 2)
    srd(a, S2_B, 8, 1024 * 1024 * 2)
    a(f's_mov_b32 {s(s2Jd)}, 0')
    a(f's_mov_b32 {s(s2Boff)}, 0')
    a(f's_mov_b32 {s(s2Sw)}, 16')
    a(f's_cmp_eq_u32 {s(s2Ks)}, 0')
    a('s_cbranch_scc1 K2_ks0')
    srd(a, S2_B, 16, 3584 * 1024 * 2)
    a(f's_mov_b32 {s(s2Boff)}, {40 * 32 * 2048}')
    a(f's_mov_b32 {s(s2Sw)}, 1000')
    a.label('K2_ks0')
    a('v_and_b32 v5, 15, v1')
    a('v_lshlrev_b32 v5, 2, v5')
    a(f's_lshl_b32 {s(s2T2)}, {s(s2T2)}, 6')
    a(f's_add_u32 {s(s2T2)}, {s(s2T2)}, {E_OFF}')
    a(f'buffer_load_dword {v(k2E)}, v5, {s(S2_A, 4)}, {s(s2T2)} offen')
    a(f'buffer_load_dword {v(k2E + 1)}, v5, {s(S2_A, 4)}, {s(s2T2)} offen offset:64')
    for x in k2_dma_b(0):
        a(x)
    for j in range(U - 1):
        for x in k2_dma_b(j + 1) + k2_load_a(j):
            a(x)
    for r in range(64):
        a(f'v_mov_b32 {v(k2ACC + r)}, 0')
    a(f's_waitcnt vmcnt({(U - 1) * 4})')
    a('s_barrier')
    for x in k2_reads(0, 0):
        a(x)
    a(f's_mov_b32 {s(s2Cnt)}, 0')
    a(f's_waitcnt vmcnt({(U - 2) * 4}) lgkmcnt(0)')
    a('s_barrier')
    a.label('K2_loop')
    for jj in range(2 * U):
        j = jj % U
        cur, nxt = jj & 1, (jj + 1) & 1
        if jj == 16:
            a(f's_or_b32 {s(s2T0)}, {s(s2Cnt)}, {s(s2Ks)}')
            a(f's_cmp_lg_u32 {s(s2T0)}, 0')
            a('s_cbranch_scc1 K2_noswitch')
            a('s_nop 7')
            for n in range(8):
                for m in range(2):
                    for h in range(4):
                        a(f'v_mul_f32 {v(k2acc(n, m) + h)}, {v(k2E + m)}, {v(k2acc(n, m) + h)}')
            a('s_nop 1')
            a.label('K2_noswitch')
        units = group_dma(k2_dma_b(j)) + group_dma(k2_load_a((j + U - 1) % U))
        rd = k2_reads(nxt, (j + 1) % U)
        k = 0
        ui = 0
        for n in range(8):
            for m in range(2):
                d = v(k2acc(n, m), 4)
                a(f'v_mfma_f32_16x16x32_bf16 {d}, {v(k2BF + cur * 32 + n * 4, 4)}, {v(k2A + j * 8 + m * 4, 4)}, {d}')
                a(rd[k])
                if k % 3 == 0 and ui < len(units):
                    for x in units[ui]:
                        a(x)
                    ui += 1
                k += 1
        assert ui == len(units)
        a(f's_waitcnt vmcnt({(U - 2) * 4}) lgkmcnt(0)')
        a('s_barrier')
    a(f's_add_u32 {s(s2Cnt)}, {s(s2Cnt)}, 1')
    a(f's_cmp_lt_u32 {s(s2Cnt)}, 2')
    a('s_cbranch_scc1 K2_loop')
    a('s_waitcnt vmcnt(0)')
    a('s_barrier')
    for m in range(2):
        a(f'v_add_f32 {v(k2E + m)}, 1.0, {v(k2E + m)}')
        a(f'v_rcp_f32 {v(k2E + m)}, {v(k2E + m)}')
    a('v_and_b32 v5, 15, v1')
    a(f's_lshl_b32 {s(s2T0)}, {s(s2W3)}, 5')
    a(f'v_add_u32 v5, {s(s2T0)}, v5')
    a('v_mul_u32_u24 v5, 528, v5')
    a('v_lshl_add_u32 v5, v2, 4, v5')
    a(f's_mul_i32 {s(s2T0)}, {s(s2P)}, 67584')
    a(f'v_add_u32 v5, {s(s2T0)}, v5')
    for n in range(8):
        for m in range(2):
            r = k2acc(n, m)
            for h in range(4):
                a(f'v_mul_f32 {v(r + h)}, {v(k2E + m)}, {v(r + h)}')
            a(f'ds_write_b128 v5, {v(r, 4)} offset:{m * 16 * 528 + n * 64}')
    a('s_waitcnt lgkmcnt(0)')
    a('s_barrier')
    a('v_and_b32 v5, 15, v1')
    a('v_lshlrev_b32 v5, 5, v5')
    a(f's_lshl_b32 {s(s2T0)}, {s(s2Wave)}, 3')
    a(f'v_add_u32 v6, {s(s2T0)}, v2')
    a('v_mul_u32_u24 v7, 528, v6')
    a('v_add_u32 v5, v5, v7')
    a(f's_mul_i32 {s(s2T0)}, {s(s2Ks)}, {64 * 528}')
    a(f's_sub_u32 {s(s2T1)}, {64 * 528}, {s(s2T0)}')
    a(f'v_add_u32 {v(k2T)}, {s(s2T1)}, v5')
    a(f'v_add_u32 {v(k2T + 1)}, {s(s2T0)}, v5')
    a(f'v_add_u32 {v(k2T + 2)}, 67584, {v(k2T)}')
    a(f'v_add_u32 {v(k2T + 3)}, 67584, {v(k2T + 1)}')
    SD, KP, RX = 8, 40, 72
    for it in range(2):
        for hh in range(2):
            a(f'ds_read_b128 {v(SD + (it * 2 + hh) * 4, 4)}, {v(k2T)} offset:{it * 4 * 528 + hh * 16}')
            a(f'ds_read_b128 {v(SD + 16 + (it * 2 + hh) * 4, 4)}, {v(k2T + 2)} offset:{it * 4 * 528 + hh * 16}')
    for it in range(2):
        for hh in range(2):
            a(f'ds_read_b128 {v(KP + (it * 2 + hh) * 4, 4)}, {v(k2T + 1)} offset:{it * 4 * 528 + hh * 16}')
            a(f'ds_read_b128 {v(KP + 16 + (it * 2 + hh) * 4, 4)}, {v(k2T + 3)} offset:{it * 4 * 528 + hh * 16}')
    a('v_lshlrev_b32 v7, 4, v1')
    a(f's_xor_b32 {s(s2T0)}, s2, 1')
    a(f's_lshl_b32 {s(s2T1)}, {s(s2T0)}, 15')
    a(f's_lshl_b32 {s(s2T2)}, {s(s2Wave)}, 12')
    a(f's_add_u32 {s(s2T1)}, {s(s2T1)}, {s(s2T2)}')
    a(f's_add_u32 {s(s2T1)}, {s(s2T1)}, {XCH_OFF}')
    a('s_waitcnt lgkmcnt(8)')
    for q in range(8):
        a(f'v_pk_add_f32 {v(SD + q * 2, 2)}, {v(SD + q * 2, 2)}, {v(SD + 16 + q * 2, 2)}')
    for q in range(4):
        a(f'buffer_store_dwordx4 {v(SD + q * 4, 4)}, v7, {s(S2_A, 4)}, {s(s2T1)} offen offset:{q * 1024} sc1')
    a(f's_lshl_b32 {s(s2T0)}, {s(s2T0)}, 7')
    a(f's_lshl_b32 {s(s2T3)}, {s(s2Wave)}, 2')
    a(f's_add_u32 {s(s2T0)}, {s(s2T0)}, {s(s2T3)}')
    a(f's_add_u32 {s(s2T0)}, {s(s2T0)}, {FLG_OFF}')
    a(f'v_mov_b32 {v(k2T + 4)}, 1')
    a('s_waitcnt lgkmcnt(0)')
    for q in range(8):
        a(f'v_pk_add_f32 {v(KP + q * 2, 2)}, {v(KP + q * 2, 2)}, {v(KP + 16 + q * 2, 2)}')
    a('s_waitcnt vmcnt(0)')
    a(f'buffer_store_dword {v(k2T + 4)}, off, {s(S2_A, 4)}, {s(s2T0)} sc1')
    a(f's_lshl_b32 {s(s2T0)}, s2, 7')
    a(f's_add_u32 {s(s2T0)}, {s(s2T0)}, {s(s2T3)}')
    a(f's_add_u32 {s(s2T0)}, {s(s2T0)}, {FLG_OFF}')
    a(f's_lshl_b32 {s(s2T1)}, s2, 15')
    a(f's_add_u32 {s(s2T1)}, {s(s2T1)}, {s(s2T2)}')
    a(f's_add_u32 {s(s2T1)}, {s(s2T1)}, {XCH_OFF}')
    a(f's_mov_b32 {s(s2Cnt)}, 0')
    a.label('K2_poll')
    a(f'buffer_load_dword {v(k2T + 5)}, off, {s(S2_A, 4)}, {s(s2T0)} sc1')
    a(f's_add_u32 {s(s2Cnt)}, {s(s2Cnt)}, 1')
    a('s_waitcnt vmcnt(0)')
    a(f'v_readfirstlane_b32 {s(s2T3)}, {v(k2T + 5)}')
    a(f's_cmp_eq_u32 {s(s2T3)}, 1')
    a('s_cbranch_scc1 K2_polled')
    a('s_sleep 1')
    a(f's_cmp_lt_u32 {s(s2Cnt)}, 200000')
    a('s_cbranch_scc1 K2_poll')
    a.label('K2_polled')
    for q in range(4):
        a(f'buffer_load_dwordx4 {v(RX + q * 4, 4)}, v7, {s(S2_A, 4)}, {s(s2T1)} offen offset:{q * 1024} sc1')
    a(f's_lshl_b32 {s(s2T0)}, {s(s2Rb)}, 7')
    a(f's_lshl_b32 {s(s2T2)}, {s(s2Ks)}, 6')
    a(f's_add_u32 {s(s2T0)}, {s(s2T0)}, {s(s2T2)}')
    a(f's_lshl_b32 {s(s2T0)}, {s(s2T0)}, 11')
    a(f's_lshl_b32 {s(s2T2)}, {s(s2Cb)}, 8')
    a(f's_add_u32 {s(s2T0)}, {s(s2T0)}, {s(s2T2)}')
    a(f's_add_u32 {s(s2T2)}, {s(s2T0)}, {4 * 2048}')
    a('v_and_b32 v5, 15, v1')
    a('v_lshlrev_b32 v5, 4, v5')
    a('v_lshl_add_u32 v5, v6, 11, v5')
    for it in range(2):
        a(f's_waitcnt vmcnt({2 if it == 0 else 1})')
        for q in range(4):
            r = KP + it * 8 + q * 2
            a(f'v_pk_add_f32 {v(r, 2)}, {v(r, 2)}, {v(RX + it * 8 + q * 2, 2)}')
        o = SD + it * 4
        for q in range(4):
            r = KP + it * 8 + q * 2
            a(f'v_cvt_pk_bf16_f32 {v(o + q)}, {v(r)}, {v(r + 1)}')
        a(f'buffer_store_dwordx4 {v(o, 4)}, v5, {s(S2_OUT, 4)}, {s(s2T0 if it == 0 else s2T2)} offen')
    a.label('K2_end')
    a('s_endpgm')


HEADER = open('cdna_kernels/%s.s.ref' % NAME).read().split('; Override launch')[0]


def kd(name, vgpr=256, sgpr=102):
    return f'''.p2align 6
.amdhsa_kernel {name}
  .amdhsa_next_free_vgpr {vgpr}
  .amdhsa_next_free_sgpr {sgpr}
  .amdhsa_accum_offset {vgpr}
  .amdhsa_group_segment_fixed_size 0
  .amdhsa_kernarg_size 88
  .amdhsa_user_sgpr_count 2
  .amdhsa_user_sgpr_kernarg_segment_ptr 1
  .amdhsa_system_sgpr_workgroup_id_x 1
.end_amdhsa_kernel
'''


def build():
    out = HEADER
    out += '; @launch kernel=k1_kernel grid=(256,1,1) block=(512,1,1) lds=163840\n'
    out += '; @launch kernel=k2_kernel grid=(256,1,1) block=(512,1,1) lds=147456\n'
    out += '.amdgcn_target "amdgcn-amd-amdhsa--gfx950"\n.text\n'
    for nm, g in (('k1_kernel', gen_k1), ('k2_kernel', gen_k2)):
        a = Asm()
        g(a)
        out += f'.globl {nm}\n.p2align 8\n.type {nm},@function\n'
        out += a.finalize()
    out += '.section .rodata,"a"\n'
    out += kd('k1_kernel') + kd('k2_kernel')
    return out


if __name__ == '__main__':
    path = sys.argv[1] if len(sys.argv) > 1 else f'cdna_kernels/{NAME}.s'
    for kv in sys.argv[2:]:
        k, val = kv.split('=', 1)
        if val in ('True', 'False'):
            val = val == 'True'
        elif val.lstrip('-').isdigit():
            val = int(val)
        OPT[k] = val
    open(path, 'w').write(build())
```

```python
import sys
from asmlib import Asm, v, s

NAME = 'gated_mix__linear_attn_block__dense_activation_mish__prompt'
KN = NAME + '_kernel'

A2_OFF = 0
E_OFF = 0x1300000
FLG_OFF = 0x1310000
F_KV = FLG_OFF
F_ACT = FLG_OFF + 0x1000
F_O = FLG_OFF + 0x1800
F_X = FLG_OFF + 0x2000
EP_OFF = FLG_OFF + 0xF000
KVP_OFF = 0x1400000
XCH_OFF = 0x1800000
STAMP_OFF = 0x3000000
WS_SIZE = 268435456
LOG2E = 0x3fb8aa3b
SPIN_MAX = 100000

OPT = dict(stamp=False, dma_every=3, b2pf=True, codepf=True, p1pf=True, b2u=4, probar=False, xp_same=False, u1=(0,0,0,1,1,2,2,2), p2pos=(3,7,10,13))

S_X, S_W, S_WS, S_DBG, S_B1, S_B1Z, S_G, S_PF = 28, 32, 36, 40, 44, 48, 52, 88
S2_B, S2_OUT, S2_AL = 44, 48, 52
sI, sT, sTyp, sWave, sW3, sGrp = 56, 57, 58, 59, 60, 61
sP0, sP1, sS, sZ2 = 62, 63, 64, 65
sWstr, sWoff, sWstep = 66, 67, 68
sXK, sXD, sXR, sCnt = 69, 70, 71, 72
sT0, sT1, sT2, sT3 = 73, 74, 75, 76
sM0W, sM0X = 77, 78
sC, sL2E = 79, 80
sH, sNon = 82, 83
sPFo = 84
sPFu, sPFu1, sPFnr = 3, 10, 11
sPF2b, sPF2nr, sPF2o = 14, 4, 5
sC60, sEps, sEoff = 85, 86, 87
sA2 = 92
s2Rb, s2Cb, s2Ks = 93, 94, 95
s2Aoff, s2Boff, s2Jd, s2Sw, s2Aend, s2Sp = 96, 97, 98, 99, 100, 101
s2Asw = 81
s2Aa, s2Ba = 18, 19
vOF = 111
vOFa = 112
vSt = 4
WF, XF = 8, 64
vXA0c, vXA1c, vXA0, vXA1 = 96, 97, 98, 99
vWZ12, vWZ3 = 100, 102
vXV, vWV = 105, 107
vPF = 109
vNon = 110
vL16 = 113
vBV = 114
vT = 116
ACC = 128
vE = 240
K2_U = 6
k2A = 8
k2RA = 80
k2AV = 104
k2E = 106
k2T = 116
k2ACC = 128
k2BF = 192


def stamp(a, idx):
    if not OPT['stamp']:
        return
    a('s_memtime s[26:27]')
    a('s_waitcnt lgkmcnt(0)')
    a(f'v_writelane_b32 v{vSt}, s26, {idx}')


def srd(a, base, ptr, nbytes):
    a(f's_mov_b32 {s(base)}, {s(ptr)}')
    a(f's_and_b32 {s(base+1)}, {s(ptr+1)}, 0xffff')
    a(f's_mov_b32 {s(base+2)}, {nbytes}')
    a(f's_mov_b32 {s(base+3)}, 0x00020000')


def acc(n, m):
    return ACC + (n * 4 + m) * 4


def wf(buf, n):
    return WF + buf * 28 + n * 4


def xf(buf, m):
    return XF + buf * 16 + m * 4


def k1_reads(grp, buf, wslot, kk):
    nt = 7 if grp == 0 else 6
    xa = vXA0 if kk == 0 else vXA1
    xs = [f'ds_read_b128 {v(xf(buf, m), 4)}, {v(xa)} offset:{m * 2048}' for m in range(4)]
    ws = []
    for n in range(nt):
        if n < 4:
            addr = vWZ12 + (n & 1)
            off = wslot * 16384 + (4096 if n >= 2 else 0)
            d2 = 512
        else:
            addr = vWZ3 + (n - 4)
            off = wslot * 16384
            d2 = 1024
        ws.append(f'ds_read_b64_tr_b16 {v(wf(buf, n), 2)}, {v(addr)} offset:{off}')
        ws.append(f'ds_read_b64_tr_b16 {v(wf(buf, n) + 2, 2)}, {v(addr)} offset:{off + d2}')
    return ws[:2] + xs + ws[2:]


def k1_dma_w(slot):
    out = [f's_add_u32 m0, {s(sM0W)}, {slot * 16384}']
    for j in range(2):
        out.append(f'buffer_load_dwordx4 {v(vWV + j)}, {s(S_W, 4)}, {s(sWoff)} offen offset:{j * 1024} lds')
    out.append(f's_add_u32 {s(sWoff)}, {s(sWoff)}, {s(sWstep)}')
    return out


def k1_dma_x(par):
    out = []
    if par == 0:
        out.append(f's_add_u32 {s(sXK)}, {s(sXK)}, 128')
        out.append(f's_add_u32 {s(sXD)}, {s(sXD)}, 32768')
        out.append(f's_cmp_eq_u32 {s(sXD)}, 98304')
        out.append(f's_cselect_b32 {s(sXD)}, 0, {s(sXD)}')
        out.append(f's_add_u32 m0, {s(sXD)}, {s(sM0X)}')
        so = sXK
    else:
        out.append(f's_add_u32 {s(sT0)}, {s(sXK)}, 262144')
        out.append(f's_add_u32 {s(sT1)}, {s(sXD)}, {s(sM0X)}')
        out.append(f's_add_u32 m0, {s(sT1)}, 16384')
        so = sT0
    for j in range(2):
        out.append(f'buffer_load_dwordx4 {v(vXV + j)}, {s(S_X, 4)}, {s(so)} offen offset:{j * 1024} lds')
    return out


def k1_adv_xread():
    return [f's_add_u32 {s(sXR)}, {s(sXR)}, 32768',
            f's_cmp_eq_u32 {s(sXR)}, 98304',
            f's_cselect_b32 {s(sXR)}, 0, {s(sXR)}',
            f'v_add_u32 {v(vXA0)}, {s(sXR)}, {v(vXA0c)}',
            f'v_add_u32 {v(vXA1)}, {s(sXR)}, {v(vXA1c)}']


def k1_mfmas(grp, typ, buf):
    nt = 7 if grp == 0 else 6
    out = []
    for n in range(nt):
        for m in range(4):
            d = v(acc(n, m), 4)
            W = v(wf(buf, n), 4)
            X = v(xf(buf, m), 4)
            if typ == 0 and n < 4:
                out.append(f'v_mfma_f32_16x16x32_bf16 {d}, {X}, {W}, {d}')
            else:
                out.append(f'v_mfma_f32_16x16x32_bf16 {d}, {W}, {X}, {d}')
    return out


def group_dma(lst):
    units = []
    cur = []
    for x in lst:
        cur.append(x)
        if x.startswith('buffer_'):
            units.append(cur)
            cur = []
    if cur:
        units[-1] = units[-1] + cur
    return units


def b2_touch():
    return [[f's_cmp_eq_u32 {s(sPFu)}, {s(sPFu1)}',
             f's_cselect_b32 {s(S_PF + 2)}, {s(sPFnr)}, 0',
             f'buffer_load_dword v3, {v(vPF)}, {s(S_PF, 4)}, {s(sPFo)} offen',
             f's_cselect_b32 {s(S_PF)}, {s(sPF2b)}, {s(S_PF)}',
             f's_cselect_b32 {s(S_PF + 1)}, {s(sPF2b + 1)}, {s(S_PF + 1)}',
             f's_cselect_b32 {s(sPFnr)}, {s(sPF2nr)}, {s(sPFnr)}',
             f's_cselect_b32 {s(sPFo)}, {s(sPF2o)}, {s(sPFo)}',
             f's_cselect_b32 {s(sPFu1)}, {OPT["b2u"]}, {s(sPFu1)}',
             f's_add_u32 {s(sPFu)}, {s(sPFu)}, 1']]


def pf_setup(a):
    a(f'v_lshlrev_b32 {v(vPF)}, 7, v1')
    a(f's_mov_b32 {s(sPFu)}, 0')
    tbl = 0
    for w, u in enumerate(OPT['u1']):
        tbl |= u << (4 * w)
    a(f's_lshl_b32 {s(sT2)}, {s(sWave)}, 2')
    a(f's_lshr_b32 {s(sPFu1)}, {tbl}, {s(sT2)}')
    a(f's_and_b32 {s(sPFu1)}, {s(sPFu1)}, 15')
    srd(a, S_PF, 4, 2048 * 2048)
    a(f's_lshl_b32 {s(sT2)}, {s(sWave)}, 8')
    a(f's_add_u32 {s(sT2)}, {s(sT2)}, s2')
    a(f's_lshl_b32 {s(sPFo)}, {s(sT2)}, 13')
    a(f's_cmp_lt_u32 {s(sWave)}, 2')
    a('s_cbranch_scc1 PF_p2')
    a(f's_sub_u32 {s(sT3)}, {s(sT2)}, {512 - 208}')
    a(f's_mul_i32 {s(sT0)}, {s(sT3)}, 20165')
    a(f's_lshr_b32 {s(sT0)}, {s(sT0)}, 22')
    a(f's_mul_i32 {s(sT1)}, {s(sT0)}, 208')
    a(f's_sub_u32 {s(sT1)}, {s(sT3)}, {s(sT1)}')
    a(f's_cmp_lt_u32 {s(sT1)}, 112')
    a('s_cbranch_scc1 PF_w1')
    srd(a, S_PF, 6, 1024 * 6144)
    a(f's_mul_i32 {s(sT0)}, {s(sT0)}, 96')
    a(f's_add_u32 {s(sT0)}, {s(sT0)}, {s(sT1)}')
    a(f's_sub_u32 {s(sT0)}, {s(sT0)}, 112')
    a(f's_lshl_b32 {s(sPFo)}, {s(sT0)}, 13')
    a('s_branch PF_p2')
    a.label('PF_w1')
    srd(a, S_PF, 12, 1024 * 7168)
    a(f's_mul_i32 {s(sT0)}, {s(sT0)}, 112')
    a(f's_add_u32 {s(sT0)}, {s(sT0)}, {s(sT1)}')
    a(f's_lshl_b32 {s(sPFo)}, {s(sT0)}, 13')
    a.label('PF_p2')
    a(f's_mov_b32 {s(sPFnr)}, {s(S_PF + 2) if OPT["p1pf"] else 0}')
    a(f's_mov_b32 {s(sPF2b)}, s16')
    a(f's_and_b32 {s(sPF2b + 1)}, s17, 0xffff')
    a(f's_mov_b32 {s(sPF2nr)}, {3584 * 2048}')
    a(f's_lshl_b32 {s(sPF2o)}, {s(sT2)}, 13')
    a(f's_cmp_eq_u32 {s(sWave)}, 4')
    a(f's_cselect_b32 {s(sPF2b)}, s8, {s(sPF2b)}')
    a(f's_cselect_b32 {s(sPF2b + 1)}, s9, {s(sPF2b + 1)}')
    a(f's_cselect_b32 {s(sPF2nr)}, {1024 * 2048}, {s(sPF2nr)}')
    a(f's_lshl_b32 {s(sT0)}, s2, 13')
    a(f's_cmp_eq_u32 {s(sWave)}, 4')
    a(f's_cselect_b32 {s(sPF2o)}, {s(sT0)}, {s(sPF2o)}')
    for x in b2_touch()[0]:
        a(x)


def k1_substep(a, grp, typ, b, dma=True, reads=True, last=False, extra=None, fill=None, vm=None):
    cur, nxt = b & 1, (b + 1) & 1
    mf = k1_mfmas(grp, typ, cur)
    pre = []
    rd = []
    if reads:
        if b & 1:
            pre += k1_adv_xread()
        rd = k1_reads(grp, nxt, (b + 1) % 4, (b + 1) & 1)
    units = []
    if dma:
        units = group_dma(k1_dma_w(b) + k1_dma_x(0 if (b & 1) else 1))
    if extra:
        units = units + extra
    fill = list(fill or [])
    for x in pre:
        a(x)
    ri = ui = 0
    ev = OPT['dma_every']
    ph = 0 if grp == 0 else 1
    for k, mm in enumerate(mf):
        a(mm)
        if ri < len(rd):
            a(rd[ri])
            ri += 1
        if ui < len(units) and k % ev == ph:
            for x in units[ui]:
                a(x)
            ui += 1
        for _ in range(2):
            if fill:
                a(fill.pop(0))
    assert ri == len(rd) and ui == len(units), (ri, ui, len(units))
    for x in fill:
        a(x)
    if last:
        return
    a(f's_waitcnt vmcnt({vm}) lgkmcnt(0)')
    a('s_barrier')


def mish4(a, r, t):
    T, N2, W = t, t + 4, t + 8
    for h in (0, 2):
        a(f'v_pk_mul_f32 {v(T + h, 2)}, {v(r + h, 2)}, {s(sL2E, 2)} op_sel_hi:[1,0]')
    for i in range(4):
        a(f'v_min_f32 {v(T + i)}, {s(sC60)}, {v(T + i)}')
    for i in range(4):
        a(f'v_exp_f32 {v(T + i)}, {v(T + i)}')
    for h in (0, 2):
        a(f'v_pk_add_f32 {v(N2 + h, 2)}, {v(T + h, 2)}, 2.0 op_sel_hi:[1,0]')
    for h in (0, 2):
        a(f'v_pk_mul_f32 {v(W + h, 2)}, {v(T + h, 2)}, {v(N2 + h, 2)}')
    for h in (0, 2):
        a(f'v_pk_fma_f32 {v(N2 + h, 2)}, {v(T + h, 2)}, {v(N2 + h, 2)}, 2.0 op_sel_hi:[1,1,0]')
    for i in range(4):
        a(f'v_rcp_f32 {v(N2 + i)}, {v(N2 + i)}')
    for h in (0, 2):
        a(f'v_pk_mul_f32 {v(W + h, 2)}, {v(W + h, 2)}, {v(N2 + h, 2)}')
    for h in (0, 2):
        a(f'v_pk_mul_f32 {v(r + h, 2)}, {v(r + h, 2)}, {v(W + h, 2)}')


def phi4(a, r, t):
    for h in (0, 2):
        a(f'v_pk_mul_f32 {v(t + h, 2)}, {v(r + h, 2)}, {s(sL2E, 2)} op_sel_hi:[1,0]')
    for i in range(4):
        a(f'v_min_f32 {v(t + i)}, 0, {v(t + i)}')
    for i in range(4):
        a(f'v_exp_f32 {v(t + i)}, {v(t + i)}')
    for i in range(4):
        a(f'v_max_f32 {v(r + i)}, 0, {v(r + i)}')
    for h in (0, 2):
        a(f'v_pk_add_f32 {v(r + h, 2)}, {v(r + h, 2)}, {v(t + h, 2)}')
    for i in range(4):
        a(f'v_add_f32 {v(r + i)}, {s(sEps)}, {v(r + i)}')


def cvt4(a, o, r):
    a(f'v_cvt_pk_bf16_f32 {v(o)}, {v(r)}, {v(r + 1)}')
    a(f'v_cvt_pk_bf16_f32 {v(o + 1)}, {v(r + 2)}, {v(r + 3)}')


def k1_store_pair(a, n0, s_tau, plus, outregs):
    a(f's_add_u32 {s(sT2)}, {s(s_tau)}, {plus}')
    a(f's_lshr_b32 {s(sT2)}, {s(sT2)}, 1')
    a(f's_lshl_b32 {s(sT2)}, {s(sT2)}, 10')
    a(f's_add_u32 {s(sT2)}, {s(sT2)}, {s(sA2)}')
    for m in range(4):
        o = outregs + (m & 1) * 4
        mish4(a, acc(n0, m), vE)
        mish4(a, acc(n0 + 1, m), vT)
        cvt4(a, o, acc(n0, m))
        cvt4(a, o + 2, acc(n0 + 1, m))
        a(f'buffer_store_dwordx4 {v(o, 4)}, {v(vL16)}, {s(S_WS, 4)}, {s(sT2)} offen sc1')
        if m < 3:
            a(f's_add_u32 {s(sT2)}, {s(sT2)}, {144 * 1024}')
    return 4


def k1_store_single(a, n0, outregs):
    a(f's_lshr_b32 {s(sT2)}, {s(sS)}, 1')
    a(f's_lshl_b32 {s(sT2)}, {s(sT2)}, 10')
    a(f's_add_u32 {s(sT2)}, {s(sT2)}, {s(sA2)}')
    a(f's_and_b32 {s(sT3)}, {s(sS)}, 1')
    a(f's_mul_i32 {s(sT3)}, {s(sT3)}, {144 * 1024}')
    a(f's_add_u32 {s(sT2)}, {s(sT2)}, {s(sT3)}')
    for mp in range(2):
        o = outregs + mp * 4
        mish4(a, acc(n0, 2 * mp), vE)
        mish4(a, acc(n0, 2 * mp + 1), vT)
        cvt4(a, o, acc(n0, 2 * mp))
        cvt4(a, o + 2, acc(n0, 2 * mp + 1))
        a(f'buffer_store_dwordx4 {v(o, 4)}, {v(vL16)}, {s(S_WS, 4)}, {s(sT2)} offen sc1')
        if mp == 0:
            a(f's_add_u32 {s(sT2)}, {s(sT2)}, {2 * 144 * 1024}')
    return 2


def get_nonce(a, L):
    a(f's_mov_b32 {s(sC)}, 0')
    a.label(f'{L}_nchk')
    a(f'v_readfirstlane_b32 {s(sNon)}, {v(vNon)}')
    a(f's_cmp_lg_u32 {s(sNon)}, 0')
    a(f's_cbranch_scc1 {L}_nok')
    a('s_sleep 8')
    a(f'buffer_load_dword {v(vNon)}, off, {s(S_DBG, 4)}, 0 sc1')
    a(f's_add_u32 {s(sC)}, {s(sC)}, 1')
    a('s_waitcnt vmcnt(0)')
    a(f's_cmp_lt_u32 {s(sC)}, {SPIN_MAX}')
    a(f's_cbranch_scc1 {L}_nchk')
    a.label(f'{L}_nok')


def poll_line(a, L, soff, nlanes, vtmp, sleep=4):
    a(f'v_and_b32 {v(vtmp + 1)}, {nlanes - 1}, v1')
    a(f'v_lshlrev_b32 {v(vtmp + 1)}, 2, {v(vtmp + 1)}')
    a(f's_mov_b32 {s(sC)}, 0')
    a.label(f'{L}_poll')
    a(f'buffer_load_dword {v(vtmp)}, {v(vtmp + 1)}, {s(S_WS, 4)}, {s(soff)} offen sc1')
    a(f's_add_u32 {s(sC)}, {s(sC)}, 1')
    a('s_waitcnt vmcnt(0)')
    a(f'v_cmp_ne_u32 vcc, {s(sNon)}, {v(vtmp)}')
    a('s_nop 4')
    a(f's_cbranch_vccz {L}_polled')
    a(f's_sleep {sleep}')
    a(f's_cmp_lt_u32 {s(sC)}, {SPIN_MAX}')
    a(f's_cbranch_scc1 {L}_poll')
    a.label(f'{L}_polled')


KVL = 98304
KFL = 147456


def k1_epilogue_A(a, grp, L):
    PK, VV, ONES, KV = 8, 24, 40, 44
    a('s_nop 7')
    for n in range(2):
        for m in range(4):
            phi4(a, acc(n, m), vE + (m & 1) * 4)
    for i in range(4):
        a(f'v_mov_b32 {v(ONES + i)}, 0x3f803f80')
    for src, dst in ((2, VV), (0, PK)):
        for n in range(2):
            for c in range(2):
                d = dst + (n * 2 + c) * 4
                for hh in range(2):
                    cvt4(a, d + 2 * hh, acc(src + n, 2 * c + hh))
    for c in range(2):
        for b in range(3):
            for aa in range(2):
                d = v(KV + (b * 2 + aa) * 4, 4)
                B = v(VV + (b * 2 + c) * 4, 4) if b < 2 else v(ONES, 4)
                a(f'v_mfma_f32_16x16x32_bf16 {d}, {v(PK + (aa * 2 + c) * 4, 4)}, {B}, {d if c else "0"}')
    a(f's_mul_i32 {s(sT0)}, {s(sWave)}, 6144')
    a(f's_add_u32 {s(sT0)}, {s(sT0)}, {KVL}')
    a(f'v_add_u32 {v(vT)}, {s(sT0)}, {v(vL16)}')
    for q in range(6):
        a(f'ds_write_b128 {v(vT)}, {v(KV + q * 4, 4)} offset:{q * 1024}')
    a('s_waitcnt lgkmcnt(0)')
    a('s_barrier')
    stamp(a, 7)
    a(f's_cmp_lg_u32 {s(sW3)}, 0')
    a(f's_cbranch_scc1 {L}_nosum')
    bases = (68, 8, 128)
    for w in range(3):
        for q in range(6):
            a(f'ds_read_b128 {v(bases[w] + q * 4, 4)}, {v(vT)} offset:{(w + 1) * 6144 + q * 1024}')
    a(f's_lshl_b32 {s(sT0)}, {s(sH)}, 3')
    a(f's_add_u32 {s(sT0)}, {s(sT0)}, {s(sI)}')
    a(f's_mul_i32 {s(sT1)}, {s(sT0)}, 6144')
    a(f's_add_u32 {s(sT1)}, {s(sT1)}, {KVP_OFF}')
    a(f's_add_u32 {s(sT3)}, {s(sT1)}, 4096')
    for w in range(3):
        a(f's_waitcnt lgkmcnt({12 - 6 * w})')
        for q in range(12):
            a(f'v_pk_add_f32 {v(KV + q * 2, 2)}, {v(KV + q * 2, 2)}, {v(bases[w] + q * 2, 2)}')
    for q in range(6):
        so, off = (sT1, q * 1024) if q < 4 else (sT3, (q - 4) * 1024)
        a(f'buffer_store_dwordx4 {v(KV + q * 4, 4)}, {v(vL16)}, {s(S_WS, 4)}, {s(so)} offen offset:{off} sc1')
    a(f's_lshl_b32 {s(sT0)}, {s(sT)}, 7')
    a(f's_lshl_b32 {s(sT1)}, {s(sI)}, 2')
    a(f's_add_u32 {s(sT0)}, {s(sT0)}, {s(sT1)}')
    a(f's_add_u32 {s(sT0)}, {s(sT0)}, {F_KV + grp * 32}')
    a('s_waitcnt vmcnt(0)')
    get_nonce(a, L + 'a')
    a(f'buffer_store_dword {v(vNon)}, off, {s(S_WS, 4)}, {s(sT0)} sc1')
    stamp(a, 8)
    a.label(f'{L}_nosum')
    if grp == 0:
        k1_store_pair(a, 4, sP0, 0, 72)
        k1_store_single(a, 6, 72)
    else:
        k1_store_pair(a, 4, sP1, 0, 72)


PQ, LD, KF, NUM, OOUT = 240, 128, 192, 128, 56


def k1_epilogue_B(a, grp, L):
    OUT = 72
    a('s_nop 7')
    k1_store_pair(a, 2, sZ2, 2 * grp, OUT)
    if grp == 0:
        k1_store_pair(a, 4, sP0, 0, OUT)
        k1_store_single(a, 6, OUT)
    else:
        k1_store_pair(a, 4, sP1, 0, OUT)
    stamp(a, 7)
    for n in range(2):
        for m in range(4):
            phi4(a, acc(n, m), vT + (m & 1) * 4)
    for m in range(4):
        for n in range(2):
            cvt4(a, PQ + m * 4 + 2 * n, acc(n, m))
    if grp == 0:
        b_kv_fetch(a, L)


def b_kv_fetch(a, L):
    LD2 = 8
    a('s_waitcnt vmcnt(0)')
    get_nonce(a, L + 'b')
    a(f's_lshl_b32 {s(sT0)}, {s(sT)}, 7')
    a(f's_add_u32 {s(sT0)}, {s(sT0)}, {F_KV}')
    poll_line(a, L + 'kv', sT0, 16, k2T, sleep=4)
    stamp(a, 8)
    a(f's_mul_i32 {s(sT1)}, {s(sT)}, {2 * 49152}')
    a(f's_add_u32 {s(sT1)}, {s(sT1)}, {KVP_OFF}')
    a(f's_lshl_b32 {s(sT3)}, {s(sW3)}, 11')
    a(f's_add_u32 {s(sT2)}, {s(sT1)}, {s(sT3)}')
    a(f's_add_u32 {s(sT0)}, {s(sT2)}, {49152 + 2048}')
    a(f's_add_u32 {s(sT1)}, {s(sT1)}, 49152')
    a(f's_cmp_eq_u32 {s(sW3)}, 3')
    a(f's_cselect_b32 {s(sT1)}, {s(sT1)}, {s(sT2)}')
    for i in range(8):
        for hh in range(2):
            a(f'buffer_load_dwordx4 {v(LD + (i * 2 + hh) * 4, 4)}, {v(vL16)}, {s(S_WS, 4)}, {s(sT1)} offen offset:{hh * 1024} sc1')
        if i < 7:
            a(f's_add_u32 {s(sT1)}, {s(sT1)}, 6144')
    a(f's_lshl_b32 {s(sT3)}, {s(sW3)}, 10')
    a(f's_add_u32 {s(sT3)}, {s(sT3)}, {KFL}')
    a(f'v_add_u32 {v(k2T)}, {s(sT3)}, {v(vL16)}')
    a(f's_cmp_ge_u32 {s(sW3)}, 2')
    a(f's_cbranch_scc1 {L}_one')
    for i in range(8):
        for hh in range(2):
            a(f'buffer_load_dwordx4 {v(LD2 + (i * 2 + hh) * 4, 4)}, {v(vL16)}, {s(S_WS, 4)}, {s(sT0)} offen offset:{hh * 1024} sc1')
        if i < 7:
            a(f's_add_u32 {s(sT0)}, {s(sT0)}, 6144')
    for i in range(1, 8):
        a(f's_waitcnt vmcnt({14 - 2 * i})')
        for q in range(4):
            a(f'v_pk_add_f32 {v(LD2 + q * 2, 2)}, {v(LD2 + q * 2, 2)}, {v(LD2 + i * 8 + q * 2, 2)}')
    for q in range(4):
        a(f'v_cvt_pk_bf16_f32 {v(KF + 4 + q)}, {v(LD2 + 2 * q)}, {v(LD2 + 2 * q + 1)}')
    a(f'ds_write_b128 {v(k2T)}, {v(KF + 4, 4)} offset:4096')
    a.label(f'{L}_one')
    for i in range(1, 8):
        a(f's_waitcnt vmcnt({14 - 2 * i})')
        for q in range(4):
            a(f'v_pk_add_f32 {v(LD + q * 2, 2)}, {v(LD + q * 2, 2)}, {v(LD + i * 8 + q * 2, 2)}')
    for q in range(4):
        a(f'v_cvt_pk_bf16_f32 {v(KF + q)}, {v(LD + 2 * q)}, {v(LD + 2 * q + 1)}')
    a(f'ds_write_b128 {v(k2T)}, {v(KF, 4)}')
    a('s_waitcnt lgkmcnt(0)')


def b_o_compute(a):
    a(f's_mul_i32 {s(sT3)}, {s(sGrp)}, 3072')
    a(f's_add_u32 {s(sT3)}, {s(sT3)}, {KFL}')
    a(f'v_add_u32 {v(k2T)}, {s(sT3)}, {v(vL16)}')
    for f in range(3):
        a(f'ds_read_b128 {v(KF + f * 4, 4)}, {v(k2T)} offset:{f * 1024}')
    a(f's_mul_i32 {s(sT2)}, {s(sT)}, 7')
    a(f's_add_u32 {s(sT2)}, {s(sT2)}, 32')
    a(f's_sub_u32 {s(sT2)}, {s(sH)}, {s(sT2)}')
    a(f's_lshl_b32 {s(sT2)}, {s(sT2)}, 10')
    a(f's_add_u32 {s(sT2)}, {s(sT2)}, {s(sA2)}')
    a('s_waitcnt lgkmcnt(0)')
    for m in range(4):
        for b in range(3):
            a(f'v_mfma_f32_16x16x32_bf16 {v(NUM + (m * 3 + b) * 4, 4)}, {v(KF + b * 4, 4)}, {v(PQ + m * 4, 4)}, 0')
    for m in range(4):
        o = OOUT + m * 4
        dn = NUM + (m * 3 + 2) * 4
        a(f'v_add_f32 {v(dn)}, {s(sEps)}, {v(dn)}')
        a(f'v_rcp_f32 {v(dn)}, {v(dn)}')
        for b in range(2):
            r = NUM + (m * 3 + b) * 4
            for h in (0, 2):
                a(f'v_pk_mul_f32 {v(r + h, 2)}, {v(r + h, 2)}, {v(dn, 2)} op_sel_hi:[1,0]')
            cvt4(a, o + 2 * b, r)
        a(f'buffer_store_dwordx4 {v(o, 4)}, {v(vL16)}, {s(S_WS, 4)}, {s(sT2)} offen sc1')
        if m < 3:
            a(f's_add_u32 {s(sT2)}, {s(sT2)}, {144 * 1024}')


def gate_code():
    GX, GW = vE, vE + 8
    o = ['v_mov_b32 v5, 0']
    for i in range(8):
        o.append(f'v_dot2_f32_bf16 v5, {v(GX + i)}, {v(GW + i)}, v5')
    o.append('s_nop 2')
    for sh in (1, 2, 4, 8):
        o.append(f'v_add_f32_dpp v5, v5, v5 row_shr:{sh} row_mask:0xf bank_mask:0xf bound_ctrl:0')
    o.append('v_add_f32_dpp v5, v5, v5 row_bcast:15 row_mask:0xa bank_mask:0xf')
    o.append('v_add_f32_dpp v5, v5, v5 row_bcast:31 row_mask:0xc bank_mask:0xf')
    o.append('v_mov_b32 v6, 0x42200000')
    o.append('v_med3_f32 v5, v5, -v6, v6')
    o.append(f'v_mul_f32 v5, {s(sL2E)}, v5')
    o.append('v_exp_f32 v5, v5')
    o.append(f'v_readlane_b32 {s(sT3)}, v5, 63')
    o.append(f'v_mov_b32 v5, {s(sT3)}')
    o.append(f'buffer_store_dword v5, off, {s(S_WS, 4)}, {s(sEoff)} sc1')
    return o


def k2acc(n, m):
    return k2ACC + (n * 2 + m) * 4


def k2_reads(buf, slot):
    out = []
    for n in range(8):
        addr = k2RA + (slot // 4) * 8 + n
        off = (slot % 4) * 16384
        d = k2BF + buf * 32 + n * 4
        out.append(f'ds_read_b64_tr_b16 {v(d, 2)}, {v(addr)} offset:{off}')
        out.append(f'ds_read_b64_tr_b16 {v(d + 2, 2)}, {v(addr)} offset:{off + 4096}')
    return out


def k2_dma_b(slot):
    out = [f's_add_u32 m0, {s(sM0W)}, {slot * 16384}']
    for j in range(2):
        out.append(f'buffer_load_dwordx4 {v(vBV + j)}, {s(S2_B, 4)}, {s(s2Boff)} offen offset:{j * 1024} lds')
    out.append(f's_add_u32 {s(s2Boff)}, {s(s2Boff)}, 131072')
    out.append(f's_add_u32 {s(s2Jd)}, {s(s2Jd)}, 1')
    out.append(f's_cmp_eq_u32 {s(s2Jd)}, 28')
    out.append(f's_cselect_b32 {s(s2Boff)}, {s(s2Ba)}, {s(s2Boff)}')
    out.append(f's_cselect_b32 {s(S2_B)}, s8, {s(S2_B)}')
    out.append(f's_cselect_b32 {s(S2_B + 1)}, s9, {s(S2_B + 1)}')
    out.append(f's_cselect_b32 {s(S2_B + 2)}, {1024 * 2048}, {s(S2_B + 2)}')
    out.append(f's_cmp_eq_u32 {s(s2Jd)}, 36')
    out.append(f's_cselect_b32 {s(S2_B + 2)}, 0, {s(S2_B + 2)}')
    return out


def k2_load_a(aset):
    out = []
    for m in range(2):
        out.append(f'buffer_load_dwordx4 {v(k2A + aset * 8 + m * 4, 4)}, {v(k2AV + m)}, {s(S2_AL, 4)}, {s(s2Aoff)} offen sc1')
    out.append(f's_add_u32 {s(s2Aoff)}, {s(s2Aoff)}, 2048')
    out.append(f's_cmp_eq_u32 {s(s2Aoff)}, {s(s2Asw)}')
    out.append(f's_cselect_b32 {s(s2Aoff)}, {s(s2Aa)}, {s(s2Aoff)}')
    out.append(f's_cmp_eq_u32 {s(s2Aoff)}, {s(s2Aend)}')
    out.append(f's_cselect_b32 {s(S2_AL + 2)}, 0, {s(S2_AL + 2)}')
    return out


def gen(a):
    U = K2_U
    a.label(KN)
    a('s_cmp_ge_u32 s2, 256')
    a('s_cbranch_scc1 K_end')
    a('s_load_dwordx16 s[4:19], s[0:1], 0')
    a('s_load_dwordx4 s[20:23], s[0:1], 64')
    a('s_load_dwordx2 s[24:25], s[0:1], 80')
    if OPT['codepf']:
        a('s_getpc_b64 s[26:27]')
        a('s_lshr_b32 s3, s2, 3')
        a('s_and_b32 s3, s3, 1')
        a('s_lshl_b32 s3, s3, 16')
        a('v_lshlrev_b32 v5, 7, v0')
        a('v_add_u32 v5, s3, v5')
        a('v_min_u32 v5, CODE_LAST, v5')
        a('global_load_dword v3, v5, s[26:27]')
    stamp(a, 0)
    a('v_and_b32 v1, 63, v0')
    a('v_lshrrev_b32 v2, 6, v0')
    a(f'v_readfirstlane_b32 {s(sWave)}, v2')
    a(f's_and_b32 {s(sT0)}, s2, 7')
    a(f's_lshr_b32 {s(sT1)}, s2, 3')
    a(f's_and_b32 {s(sI)}, {s(sT0)}, 1')
    a(f's_lshl_b32 {s(sI)}, {s(sI)}, 2')
    a(f's_and_b32 {s(sT2)}, {s(sT1)}, 3')
    a(f's_add_u32 {s(sI)}, {s(sI)}, {s(sT2)}')
    a(f's_lshr_b32 {s(sC)}, {s(sT0)}, 1')
    a(f's_lshl_b32 {s(sC)}, {s(sC)}, 3')
    a(f's_lshr_b32 {s(sT2)}, {s(sT1)}, 2')
    a(f's_add_u32 {s(sC)}, {s(sC)}, {s(sT2)}')
    a(f's_lshr_b32 {s(sT)}, {s(sC)}, 1')
    a(f's_and_b32 {s(sTyp)}, {s(sC)}, 1')
    a(f's_and_b32 {s(sW3)}, {s(sWave)}, 3')
    a(f's_lshr_b32 {s(sGrp)}, {s(sWave)}, 2')
    a(f's_cmp_eq_u32 {s(sTyp)}, 0')
    a(f's_mov_b32 {s(sT2)}, 0x286085C6')
    a(f's_cselect_b32 {s(sT2)}, 0x09CA0420, {s(sT2)}')
    a(f's_and_b32 {s(sT3)}, {s(sT)}, 1')
    a(f's_lshl_b32 {s(sT3)}, {s(sT3)}, 4')
    a(f's_lshr_b32 {s(sT2)}, {s(sT2)}, {s(sT3)}')
    a(f's_and_b32 {s(sP0)}, {s(sT2)}, 15')
    a(f's_bfe_u32 {s(sP1)}, {s(sT2)}, 0x40004')
    a(f's_bfe_u32 {s(sS)}, {s(sT2)}, 0x40008')
    a(f's_bfe_u32 {s(sZ2)}, {s(sT2)}, 0x4000c')
    a('v_lshrrev_b32 v2, 4, v1')
    a('v_lshrrev_b32 v6, 3, v1')
    a('v_and_b32 v7, 7, v1')
    a(f's_lshl_b32 {s(sT2)}, {s(sWave)}, 15')
    for j in range(2):
        a(f'v_xor_b32 v5, {4 * j}, v2')
        a('v_xor_b32 v5, v5, v7')
        a('v_lshlrev_b32 v5, 4, v5')
        a('v_lshl_add_u32 v5, v6, 11, v5')
        a(f's_add_u32 {s(sT3)}, {s(sT2)}, {j * (8 * 2048 - 1024)}')
        a(f'v_add_u32 {v(vXV + j)}, {s(sT3)}, v5')
    a(f's_lshl_b32 {s(sM0W)}, {s(sWave)}, 11')
    a(f's_add_u32 {s(sM0X)}, {s(sM0W)}, 65536')
    a(f's_lshl_b32 {s(sXK)}, {s(sI)}, 19')
    if OPT['xp_same']:
        a(f's_mov_b32 {s(sXK)}, 0')
    a(f's_sub_u32 {s(sXK)}, {s(sXK)}, 128')
    a(f's_mov_b32 {s(sXD)}, 65536')
    a(f's_mov_b32 {s(sWoff)}, 0')
    a(f's_mul_i32 {s(sA2)}, {s(sT)}, 448')
    if OPT['xp_same']:
        a(f's_and_b32 {s(sA2)}, {s(sT)}, 1')
        a(f's_mul_i32 {s(sA2)}, {s(sA2)}, 448')
    a(f's_cmp_ge_u32 {s(sWave)}, 4')
    a('s_cbranch_scc1 K1_setup_z3')
    a(f's_lshr_b32 {s(sT0)}, {s(sWave)}, 1')
    a(f's_lshl_b32 {s(sT2)}, {s(sT)}, 7')
    if OPT['xp_same']:
        a(f's_mov_b32 {s(sT2)}, 0')
    a(f's_add_u32 {s(sT3)}, {s(sT0)}, 1')
    a(f's_lshl_b32 {s(sT3)}, {s(sT3)}, 11')
    a(f's_cmp_eq_u32 {s(sTyp)}, 0')
    a(f's_cselect_b32 {s(sT3)}, {s(sT3)}, 0')
    a(f's_add_u32 {s(sT2)}, {s(sT2)}, {s(sT3)}')
    a(f's_lshl_b32 {s(sT3)}, {s(sZ2)}, 5')
    a(f's_add_u32 {s(sT3)}, {s(sT3)}, {s(sA2)}')
    a(f's_and_b32 {s(sT0)}, {s(sTyp)}, {s(sT0)}')
    a(f's_cselect_b32 {s(sT2)}, {s(sT3)}, {s(sT2)}')
    a(f's_movk_i32 {s(sWstr)}, 6144')
    a(f's_cselect_b32 {s(sWstr)}, 7168, {s(sWstr)}')
    a('v_lshrrev_b32 v5, 1, v7')
    a('v_and_b32 v7, 1, v2')
    a('v_xor_b32 v5, v5, v7')
    a('v_and_b32 v7, 1, v1')
    a(f'v_mul_lo_u32 v6, v6, {s(sWstr)}')
    a('v_lshl_add_u32 v6, v7, 4, v6')
    a(f's_and_b32 {s(sT3)}, {s(sWave)}, 1')
    a(f's_lshl_b32 {s(sT3)}, {s(sT3)}, 4')
    a(f's_mul_i32 {s(sT3)}, {s(sT3)}, {s(sWstr)}')
    a(f's_add_u32 {s(sT2)}, {s(sT2)}, {s(sT3)}')
    for j in range(2):
        a(f'v_xor_b32 v7, {2 * j}, v5')
        a(f'v_lshl_add_u32 v7, v7, 5, v6')
        if j:
            a(f's_lshl_b32 {s(sT3)}, {s(sWstr)}, 3')
            a(f's_add_u32 {s(sT2)}, {s(sT2)}, {s(sT3)}')
            a(f's_sub_u32 {s(sT2)}, {s(sT2)}, 1024')
        a(f'v_add_u32 {v(vWV + j)}, {s(sT2)}, v7')
    a('s_branch K1_setup_w_done')
    a.label('K1_setup_z3')
    a(f's_mov_b32 {s(sWstr)}, 7168')
    a(f's_mov_b32 {s(sT0)}, 1')
    a('v_bfe_u32 v5, v1, 1, 3')
    a('v_xor_b32 v5, v5, v2')
    a(f's_and_b32 {s(sT3)}, {s(sWave)}, 1')
    a(f's_lshl_b32 {s(sT3)}, {s(sT3)}, 2')
    a(f'v_xor_b32 v5, {s(sT3)}, v5')
    a('v_and_b32 v6, 1, v1')
    a('v_mul_u32_u24 v7, 7168, v2')
    a('v_lshl_add_u32 v7, v6, 4, v7')
    a(f's_mul_i32 {s(sT3)}, {s(sW3)}, {8 * 7168}')
    a(f's_add_u32 {s(sT2)}, {s(sA2)}, {s(sT3)}')
    a(f's_sub_u32 {s(sT3)}, {s(sP1)}, 2')
    a(f's_sub_u32 {s(sT1)}, {s(sS)}, 4')
    a(f'v_mov_b32 {v(vT + 1)}, {s(sP0)}')
    a(f'v_mov_b32 {v(vT + 2)}, {s(sT3)}')
    a('v_cmp_lt_u32 vcc, 1, v5')
    a(f'v_cndmask_b32 {v(vT + 1)}, {v(vT + 1)}, {v(vT + 2)}, vcc')
    a(f'v_mov_b32 {v(vT + 2)}, {s(sT1)}')
    a('v_cmp_lt_u32 vcc, 3, v5')
    a(f'v_cndmask_b32 {v(vT + 1)}, {v(vT + 1)}, {v(vT + 2)}, vcc')
    a(f'v_add_u32 {v(vT + 1)}, {v(vT + 1)}, v5')
    a(f'v_lshl_add_u32 {v(vT + 1)}, {v(vT + 1)}, 5, v7')
    a(f'v_add_u32 {v(vT + 1)}, {s(sT2)}, {v(vT + 1)}')
    a(f'v_mov_b32 {v(vT + 2)}, 0x40000000')
    a('v_cmp_lt_u32 vcc, 4, v5')
    a(f'v_cndmask_b32 {v(vWV)}, {v(vT + 1)}, {v(vT + 2)}, vcc')
    a(f'v_add_u32 {v(vWV + 1)}, {4 * 7168 - 1024}, {v(vWV)}')
    a.label('K1_setup_w_done')
    a(f's_lshl_b32 {s(sWstep)}, {s(sWstr)}, 5')
    a('v_lshlrev_b32 v5, 3, v2')
    a('s_waitcnt lgkmcnt(0)')
    srd(a, S_X, 4, 2048 * 1024 * 2)
    srd(a, S_W, 6, 1024 * 3072 * 2)
    a(f's_cmp_eq_u32 {s(sT0)}, 1')
    a(f's_cselect_b32 {s(S_W)}, s12, {s(S_W)}')
    a(f's_cselect_b32 {s(S_W + 1)}, s13, {s(S_W + 1)}')
    a(f's_cselect_b32 {s(S_W + 2)}, {1024 * 3584 * 2}, {s(S_W + 2)}')
    a(f's_and_b32 {s(S_W + 1)}, {s(S_W + 1)}, 0xffff')
    stamp(a, 11)
    for x in k1_dma_w(0) + k1_dma_x(0) + k1_dma_x(1):
        a(x)
    srd(a, S_B1, 14, 3584 * 2)
    srd(a, S_B1Z, 14, 3584 * 2)
    a(f's_cmp_eq_u32 {s(sTyp)}, 0')
    a(f's_cselect_b32 {s(S_B1Z + 2)}, 0, {s(S_B1Z + 2)}')
    BI = 36
    a(f's_lshl_b32 {s(sT3)}, {s(sGrp)}, 1')
    a(f's_add_u32 {s(sT3)}, {s(sT3)}, {s(sZ2)}')
    a(f's_lshl_b32 {s(sT3)}, {s(sT3)}, 5')
    a(f's_add_u32 {s(sT3)}, {s(sT3)}, {s(sA2)}')
    a(f'buffer_load_dwordx2 {v(BI, 2)}, v5, {s(S_B1Z, 4)}, {s(sT3)} offen')
    a(f'buffer_load_dwordx2 {v(BI + 2, 2)}, v5, {s(S_B1Z, 4)}, {s(sT3)} offen offset:32')
    a(f's_cmp_eq_u32 {s(sGrp)}, 0')
    a(f's_cselect_b32 {s(sT3)}, {s(sP0)}, {s(sP1)}')
    a(f's_lshl_b32 {s(sT3)}, {s(sT3)}, 5')
    a(f's_add_u32 {s(sT3)}, {s(sT3)}, {s(sA2)}')
    a(f'buffer_load_dwordx2 {v(BI + 4, 2)}, v5, {s(S_B1, 4)}, {s(sT3)} offen')
    a(f'buffer_load_dwordx2 {v(BI + 6, 2)}, v5, {s(S_B1, 4)}, {s(sT3)} offen offset:32')
    a(f's_lshl_b32 {s(sT3)}, {s(sS)}, 5')
    a(f's_add_u32 {s(sT3)}, {s(sT3)}, {s(sA2)}')
    a(f'buffer_load_dwordx2 {v(BI + 8, 2)}, v5, {s(S_B1, 4)}, {s(sT3)} offen')
    srd(a, S_WS, 24, WS_SIZE)
    srd(a, S_DBG, 22, 256)
    a(f's_mov_b32 {s(sT3)}, {EP_OFF}')
    a(f'buffer_load_dword {v(vNon)}, off, {s(S_WS, 4)}, {s(sT3)} sc1')
    if OPT['probar']:
        a('s_barrier')
    for x in k1_dma_w(1) + k1_dma_w(2) + k1_dma_x(0) + k1_dma_x(1) + k1_dma_w(3) + k1_dma_x(0):
        a(x)
    stamp(a, 12)
    srd(a, S_G, 18, 2048)
    a(f'v_lshlrev_b32 {v(vL16)}, 4, v1')
    a(f's_lshl_b32 {s(sT2)}, {s(sI)}, 8')
    a(f's_lshl_b32 {s(sT3)}, {s(sC)}, 3')
    a(f's_add_u32 {s(sT2)}, {s(sT2)}, {s(sT3)}')
    a(f's_add_u32 {s(sT2)}, {s(sT2)}, {s(sWave)}')
    a(f's_lshl_b32 {s(sEoff)}, {s(sT2)}, 2')
    a(f's_add_u32 {s(sEoff)}, {s(sEoff)}, {E_OFF}')
    a(f's_lshl_b32 {s(sT2)}, {s(sT2)}, 11')
    a(f'buffer_load_dwordx4 {v(vE, 4)}, {v(vL16)}, {s(S_X, 4)}, {s(sT2)} offen')
    a(f'buffer_load_dwordx4 {v(vE + 4, 4)}, {v(vL16)}, {s(S_X, 4)}, {s(sT2)} offen offset:1024')
    a(f'buffer_load_dwordx4 {v(vE + 8, 4)}, {v(vL16)}, {s(S_G, 4)}, 0 offen')
    a(f'buffer_load_dwordx4 {v(vE + 12, 4)}, {v(vL16)}, {s(S_G, 4)}, 0 offen offset:1024')
    a(f's_lshl_b32 {s(sH)}, {s(sT)}, 1')
    a(f's_add_u32 {s(sH)}, {s(sH)}, {s(sGrp)}')
    a(f's_mov_b32 {s(sL2E)}, {LOG2E}')
    a(f's_mov_b32 {s(sC60)}, 0x42700000')
    a(f's_mov_b32 {s(sEps)}, 0x358637bd')
    a(f's_lshl_b32 {s(sA2)}, {s(sI)}, 2')
    a(f's_add_u32 {s(sA2)}, {s(sA2)}, {s(sW3)}')
    a(f's_mul_i32 {s(sA2)}, {s(sA2)}, {4 * 144}')
    a(f's_mul_i32 {s(sT2)}, {s(sT)}, 7')
    a(f's_add_u32 {s(sA2)}, {s(sA2)}, {s(sT2)}')
    a(f's_add_u32 {s(sA2)}, {s(sA2)}, 32')
    a(f's_lshl_b32 {s(sA2)}, {s(sA2)}, 10')
    a(f'v_bfe_u32 {v(vT + 3)}, v1, 2, 2')
    a(f'v_and_b32 {v(vT + 4)}, 3, v1')
    a(f'v_lshl_add_u32 v5, v2, 3, {v(vT + 3)}')
    a(f'v_lshrrev_b32 v6, 1, {v(vT + 3)}')
    a('v_and_b32 v7, 1, v2')
    a('v_lshl_or_b32 v6, v7, 1, v6')
    a(f's_lshl_b32 {s(sT2)}, {s(sGrp)}, 1')
    for q in range(2):
        a(f's_add_u32 {s(sT3)}, {s(sT2)}, {q}')
        a(f'v_xor_b32 {v(vT)}, {s(sT3)}, v6')
        a(f'v_lshlrev_b32 {v(vT)}, 5, {v(vT)}')
        a(f'v_lshl_add_u32 {v(vT)}, v5, 7, {v(vT)}')
        a(f'v_lshl_add_u32 {v(vWZ12 + q)}, {v(vT + 4)}, 3, {v(vT)}')
    a(f'v_lshl_or_b32 v6, v7, 2, {v(vT + 3)}')
    for q in range(3):
        if q < 2:
            a(f's_add_u32 {s(sT3)}, {s(sT2)}, {q}')
        else:
            a(f's_mov_b32 {s(sT3)}, 4')
        a(f'v_xor_b32 {v(vT)}, {s(sT3)}, v6')
        a(f'v_lshlrev_b32 {v(vT)}, 5, {v(vT)}')
        a(f'v_lshl_add_u32 {v(vT)}, v5, 8, {v(vT)}')
        a(f'v_lshl_add_u32 {v(vT)}, {v(vT + 4)}, 3, {v(vT)}')
        a(f'v_add_u32 {v(vWZ3 + q)}, 8192, {v(vT)}')
    a('v_and_b32 v5, 15, v1')
    a('v_bfe_u32 v6, v1, 1, 3')
    a('v_xor_b32 v6, v6, v2')
    a(f's_lshl_b32 {s(sT3)}, {s(sW3)}, 13')
    a(f's_add_u32 {s(sT3)}, {s(sT3)}, 65536')
    a('v_lshlrev_b32 v5, 7, v5')
    a('v_lshl_add_u32 v5, v6, 4, v5')
    a(f'v_add_u32 {v(vXA0c)}, {s(sT3)}, v5')
    a(f'v_xor_b32 {v(vXA1c)}, 64, {v(vXA0c)}')
    a(f'v_mov_b32 {v(vXA0)}, {v(vXA0c)}')
    a(f'v_mov_b32 {v(vXA1)}, {v(vXA1c)}')
    a(f's_mov_b32 {s(sXR)}, 0')
    a(f's_and_b32 {s(sT0)}, s2, 7')
    a(f's_lshr_b32 {s(sT1)}, s2, 3')
    a(f's_and_b32 {s(s2Ks)}, {s(sT0)}, 1')
    a(f's_lshr_b32 {s(sT2)}, {s(sT0)}, 2')
    a(f's_lshl_b32 {s(s2Rb)}, {s(sT2)}, 3')
    a(f's_and_b32 {s(sT2)}, {s(sT1)}, 7')
    a(f's_add_u32 {s(s2Rb)}, {s(s2Rb)}, {s(sT2)}')
    a(f's_bfe_u32 {s(sT2)}, {s(sT0)}, 0x10001')
    a(f's_lshl_b32 {s(s2Cb)}, {s(sT2)}, 2')
    a(f's_lshr_b32 {s(sT2)}, {s(sT1)}, 3')
    a(f's_add_u32 {s(s2Cb)}, {s(s2Cb)}, {s(sT2)}')
    a('s_and_b32 s9, s9, 0xffff')
    pf_setup(a)
    a('v_and_b32 v5, 1, v1')
    a('v_lshlrev_b32 v5, 4, v5')
    a('v_lshl_add_u32 v5, v2, 11, v5')
    a(f's_lshl_b32 {s(sT3)}, {s(sWave)}, 14')
    a(f's_lshl_b32 {s(sT0)}, {s(s2Cb)}, 8')
    if OPT['xp_same']:
        a(f's_mov_b32 {s(sT0)}, 0')
    a(f's_add_u32 {s(sT3)}, {s(sT3)}, {s(sT0)}')
    for j in range(2):
        a(f'v_xor_b32 v7, {4 * j}, v6')
        a('v_lshl_add_u32 v7, v7, 5, v5')
        a(f's_add_u32 {s(sT0)}, {s(sT3)}, {j * (4 * 2048 - 1024)}')
        a(f'v_add_u32 {v(vBV + j)}, {s(sT0)}, v7')
    for n in range(2):
        for r in range(0, 16, 2):
            a(f'v_pk_mov_b32 {v(acc(n, 0) + r, 2)}, 0, 0')
    stamp(a, 1)
    a('s_waitcnt vmcnt(17)')
    for n in range(2, 7):
        b = BI + (n - 2) * 2
        r0 = acc(n, 0)
        a(f'v_lshlrev_b32 {v(r0)}, 16, {v(b)}')
        a(f'v_and_b32 {v(r0 + 1)}, 0xffff0000, {v(b)}')
        a(f'v_lshlrev_b32 {v(r0 + 2)}, 16, {v(b + 1)}')
        a(f'v_and_b32 {v(r0 + 3)}, 0xffff0000, {v(b + 1)}')
        for m in range(1, 4):
            for h in (0, 2):
                a(f'v_pk_mov_b32 {v(acc(n, m) + h, 2)}, {v(r0 + h, 2)}, {v(r0 + h, 2)} op_sel:[0,1]')
    a(f's_lshl_b32 {s(sT2)}, s2, 3')
    a(f's_add_u32 {s(sT2)}, {s(sT2)}, {s(sWave)}')
    a(f's_cmp_lg_u32 {s(sT2)}, 7')
    a('s_cbranch_scc1 K1_nopub')
    a(f'v_add_u32 {v(vNon)}, 1, {v(vNon)}')
    a(f'v_or_b32 {v(vNon)}, 0x80000000, {v(vNon)}')
    a(f's_mov_b32 {s(sT3)}, {EP_OFF}')
    a(f'buffer_store_dword {v(vNon)}, off, {s(S_DBG, 4)}, 0 sc1')
    a(f'buffer_store_dword {v(vNon)}, off, {s(S_WS, 4)}, {s(sT3)} sc1')
    a('s_waitcnt vmcnt(0)')
    a.label('K1_nopub')
    srd(a, S2_B, 16, 3584 * 1024 * 2)
    a(f's_mov_b32 {s(s2Jd)}, 0')
    a(f's_mul_i32 {s(s2Boff)}, {s(s2Ks)}, {1792 * 2048}')
    a(f's_mul_i32 {s(s2Ba)}, {s(s2Ks)}, {512 * 2048}')
    a(f's_lshl_b32 {s(sT2)}, {s(sTyp)}, 1')
    a(f's_add_u32 {s(sT2)}, {s(sT2)}, {s(sGrp)}')
    a(f's_cmp_eq_u32 {s(sT2)}, 1')
    a('s_cbranch_scc1 K1_v01')
    a(f's_cmp_eq_u32 {s(sT2)}, 2')
    a('s_cbranch_scc1 K1_v10')
    a(f's_cmp_eq_u32 {s(sT2)}, 3')
    a('s_cbranch_scc1 K1_v11')
    for typ in range(2):
        for grp in range(2):
            L = f'K1_v{typ}{grp}'
            a.label(L)
            stamp(a, 2)
            a('s_barrier')
            stamp(a, 3)
            for x in k1_reads(grp, 0, 0, 0):
                a(x)
            a(f's_mov_b32 {s(sCnt)}, 0')
            a('s_waitcnt vmcnt(15) lgkmcnt(0)')
            a('s_barrier')
            stamp(a, 4)
            a.label(L + '_loop')
            pf = OPT['b2pf']
            for b in range(4):
                extra = b2_touch() if (pf and b == 0) else None
                vm = 8 + (1 if (pf and b < 2) else 0)
                k1_substep(a, grp, typ, b, extra=extra, vm=vm)
            a(f's_add_u32 {s(sCnt)}, {s(sCnt)}, 1')
            a(f's_cmp_lt_u32 {s(sCnt)}, 7')
            a(f's_cbranch_scc1 {L}_loop')
            stamp(a, 5)
            nl = [[f'buffer_load_dword {v(vNon)}, off, {s(S_DBG, 4)}, 0 sc1']]
            k1_substep(a, grp, typ, 0, dma=False, vm=4)
            k1_substep(a, grp, typ, 1, dma=False, vm=0, fill=gate_code()[:-1])
            k1_substep(a, grp, typ, 2, dma=False, vm=63, extra=nl + [[gate_code()[-1]]])
            bd = []
            for j in range(3):
                bd += k2_dma_b(j)
            k1_substep(a, grp, typ, 3, dma=False, reads=False, last=True, extra=group_dma(bd))
            stamp(a, 6)
            if typ == 0:
                k1_epilogue_A(a, grp, L)
            else:
                k1_epilogue_B(a, grp, L)
            a('s_branch P2_start')
    a.label('P2_start')
    stamp(a, 9)
    a(f'v_bfe_u32 v3, v1, 2, 2')
    a(f'v_lshl_add_u32 v5, v2, 2, v3')
    a('v_and_b32 v6, 7, v5')
    a(f's_lshl_b32 {s(sT2)}, {s(sGrp)}, 13')
    a('v_lshlrev_b32 v5, 8, v5')
    a('v_and_b32 v3, 3, v1')
    a('v_lshl_add_u32 v5, v3, 3, v5')
    a(f'v_add_u32 v5, {s(sT2)}, v5')
    for n in range(8):
        a(f'v_xor_b32 v7, {n}, v6')
        a(f'v_lshl_add_u32 {v(k2RA + n)}, v7, 5, v5')
        a(f'v_add_u32 {v(k2RA + 8 + n)}, 65536, {v(k2RA + n)}')
    a(f's_lshl_b32 {s(sT2)}, {s(s2Rb)}, 3')
    a(f's_lshl_b32 {s(sT3)}, {s(sW3)}, 1')
    a(f's_add_u32 {s(sT2)}, {s(sT2)}, {s(sT3)}')
    a(f's_mul_i32 {s(sT3)}, {s(sT2)}, 144')
    if OPT['xp_same']:
        a(f's_and_b32 {s(sT3)}, {s(sT2)}, 7')
        a(f's_mul_i32 {s(sT3)}, {s(sT3)}, 144')
    a(f's_add_u32 {s(sT3)}, {s(sT3)}, {s(sGrp)}')
    a(f's_lshl_b32 {s(sT3)}, {s(sT3)}, 10')
    a(f'v_add_u32 {v(k2AV)}, {s(sT3)}, {v(vL16)}')
    a(f'v_add_u32 {v(k2AV + 1)}, {144 * 1024}, {v(k2AV)}')
    a(f's_lshl_b32 {s(sEoff)}, {s(sT2)}, 6')
    a(f's_add_u32 {s(sEoff)}, {s(sEoff)}, {E_OFF}')
    a(f's_mul_i32 {s(s2Aoff)}, {s(s2Ks)}, {56 * 1024}')
    a(f's_add_u32 {s(s2Aoff)}, {s(s2Aoff)}, {32 * 1024}')
    a(f's_add_u32 {s(s2Asw)}, {s(s2Aoff)}, {56 * 1024}')
    a(f's_lshl_b32 {s(s2Aa)}, {s(s2Ks)}, 14')
    a(f's_add_u32 {s(s2Aend)}, {s(s2Aa)}, {16 * 1024}')
    a(f's_cmp_eq_u32 {s(sGrp)}, 1')
    a(f's_cselect_b32 {s(s2Sp)}, 5, 1')
    srd(a, S2_OUT, 20, 2048 * 1024 * 2)
    srd(a, S2_AL, 24, WS_SIZE)
    a(f's_lshr_b32 {s(sT0)}, {s(s2Rb)}, 1')
    a(f's_lshl_b32 {s(sT0)}, {s(sT0)}, 7')
    a(f's_lshl_b32 {s(sT1)}, {s(s2Ks)}, 5')
    a(f's_add_u32 {s(sT0)}, {s(sT0)}, {s(sT1)}')
    a(f's_add_u32 {s(sT0)}, {s(sT0)}, {F_O}')
    a(f'v_and_b32 {v(vOFa)}, 7, v1')
    a(f'v_lshlrev_b32 {v(vOFa)}, 2, {v(vOFa)}')
    a(f'v_add_u32 {v(vOFa)}, {s(sT0)}, {v(vOFa)}')
    a(f's_lshl_b32 {s(sT0)}, {s(s2Rb)}, 6')
    a(f's_add_u32 {s(sT0)}, {s(sT0)}, {F_ACT}')
    a('v_and_b32 v5, 15, v1')
    a('v_lshlrev_b32 v5, 2, v5')
    a(f'v_add_u32 v6, {s(sT0)}, v5')
    a('v_cmp_lt_u32 vcc, 31, v1')
    a(f'v_cndmask_b32 {v(vOFa)}, {v(vOFa)}, v6, vcc')
    a(f'v_add_u32 {v(k2E)}, {s(sEoff)}, v5')
    a('s_waitcnt vmcnt(0)')
    get_nonce(a, 'P2n')
    a('s_barrier')
    stamp(a, 10)
    a(f's_cmp_lg_u32 {s(sWave)}, 7')
    a('s_cbranch_scc1 P2_noflag')
    a(f's_lshl_b32 {s(sT0)}, {s(sT)}, 1')
    a(f's_add_u32 {s(sT0)}, {s(sT0)}, {s(sTyp)}')
    a(f's_lshl_b32 {s(sT0)}, {s(sT0)}, 2')
    a(f's_lshl_b32 {s(sT1)}, {s(sI)}, 7')
    a(f's_add_u32 {s(sT0)}, {s(sT0)}, {s(sT1)}')
    a(f's_add_u32 {s(sT0)}, {s(sT0)}, {F_ACT}')
    a(f'buffer_store_dword {v(vNon)}, off, {s(S_WS, 4)}, {s(sT0)} sc1')
    a.label('P2_noflag')
    a(f's_cmp_eq_u32 {s(sTyp)}, 0')
    a('s_cbranch_scc1 P2_noo')
    b_o_compute(a)
    a.label('P2_noo')
    stamp(a, 15)
    for x in k2_reads(0, 0):
        a(x)
    for r in range(0, 64, 2):
        a(f'v_pk_mov_b32 {v(k2ACC + r, 2)}, 0, 0')
    a(f's_mov_b32 {s(sCnt)}, 0')
    a(f's_cmp_lg_u32 {s(sWave)}, 7')
    a('s_cbranch_scc1 P2_nopoll')
    a(f's_lshr_b32 {s(sT0)}, {s(s2Rb)}, 1')
    a(f's_lshl_b32 {s(sT0)}, {s(sT0)}, 7')
    a(f's_lshl_b32 {s(sT1)}, {s(s2Ks)}, 6')
    a(f's_add_u32 {s(sT0)}, {s(sT0)}, {s(sT1)}')
    a(f's_add_u32 {s(sT0)}, {s(sT0)}, {F_ACT}')
    poll_line(a, 'P2act', sT0, 16, k2T, sleep=2)
    a.label('P2_nopoll')
    a('s_waitcnt vmcnt(0) lgkmcnt(0)')
    a('s_barrier')
    stamp(a, 13)
    for x in k2_load_a(0):
        a(x)
    a(f's_lshl_b32 {s(sT0)}, {s(sWave)}, 1')
    a(f's_or_b32 {s(sT0)}, {s(sT0)}, {s(sTyp)}')
    a(f's_cmp_eq_u32 {s(sT0)}, 13')
    a('s_cbranch_scc0 P2_nooflag')
    a(f's_lshl_b32 {s(sT0)}, {s(sT)}, 2')
    a(f's_lshl_b32 {s(sT1)}, {s(sI)}, 7')
    a(f's_add_u32 {s(sT0)}, {s(sT0)}, {s(sT1)}')
    a(f's_add_u32 {s(sT0)}, {s(sT0)}, {F_O}')
    a(f'buffer_store_dword {v(vNon)}, off, {s(S_WS, 4)}, {s(sT0)} sc1')
    a.label('P2_nooflag')
    for x in k2_dma_b(3) + k2_load_a(1) + k2_dma_b(4) + k2_load_a(2):
        a(x)
    a('s_waitcnt vmcnt(8)')
    stamp(a, 14)
    a.label('K2_loop')
    for j in range(U):
        cur, nxt = j & 1, (j + 1) & 1
        if j == 3:
            a(f's_cmp_eq_u32 {s(sCnt)}, 3')
            a('s_cbranch_scc0 K2_nofl')
            a(f'buffer_load_dword {v(vOF)}, {v(vOFa)}, {s(S_WS, 4)}, 0 offen sc1')
            a.label('K2_nofl')
        if j == 1:
            a(f's_cmp_eq_u32 {s(sCnt)}, 4')
            a('s_cbranch_scc0 K2_ook')
            a(f's_mov_b32 {s(sC)}, 0')
            a.label('K2_ochk2')
            a(f'v_cmp_ne_u32 vcc, {s(sNon)}, {v(vOF)}')
            a('s_nop 4')
            a('s_cbranch_vccz K2_ogood')
            a('s_sleep 4')
            a(f'buffer_load_dword {v(vOF)}, {v(vOFa)}, {s(S_WS, 4)}, 0 offen sc1')
            a(f's_add_u32 {s(sC)}, {s(sC)}, 1')
            a('s_waitcnt vmcnt(0)')
            a(f's_cmp_lt_u32 {s(sC)}, {SPIN_MAX}')
            a('s_cbranch_scc1 K2_ochk2')
            a.label('K2_ogood')
            a(f'buffer_load_dword {v(k2E + 1)}, {v(k2E)}, {s(S_WS, 4)}, 0 offen offset:64 sc1')
            a(f'buffer_load_dword {v(k2E)}, {v(k2E)}, {s(S_WS, 4)}, 0 offen sc1')
            a.label('K2_ook')
        if j == 4:
            a(f's_cmp_eq_u32 {s(sCnt)}, 4')
            a('s_cbranch_scc0 K2_noswitch')
            a(f's_mov_b32 {s(s2Sp)}, 1000')
            for m in range(2):
                a(f'v_rcp_f32 {v(k2E + m)}, {v(k2E + m)}')
            a('s_nop 7')
            for n in range(8):
                for m in range(2):
                    for h in range(4):
                        a(f'v_mul_f32 {v(k2acc(n, m) + h)}, {v(k2E + m)}, {v(k2acc(n, m) + h)}')
            a('s_nop 1')
            a.label('K2_noswitch')
        a(f's_sub_u32 {s(s2Sp)}, {s(s2Sp)}, 1')
        a(f's_cbranch_scc0 K2_nosp{j}')
        a(f's_mov_b32 {s(s2Sp)}, 6')
        A0 = k2A + j * 8
        a(f'v_swap_b32 {v(A0 + 2)}, {v(A0 + 4)}')
        a(f'v_swap_b32 {v(A0 + 3)}, {v(A0 + 5)}')
        a('s_nop 1')
        a.label(f'K2_nosp{j}')
        units = group_dma(k2_dma_b((j + 5) % U)) + group_dma(k2_load_a((j + 3) % U))
        rd = k2_reads(nxt, (j + 1) % U)
        k = ui = 0
        for n in range(8):
            for m in range(2):
                d = v(k2acc(n, m), 4)
                a(f'v_mfma_f32_16x16x32_bf16 {d}, {v(k2BF + cur * 32 + n * 4, 4)}, {v(k2A + j * 8 + m * 4, 4)}, {d}')
                for _ in range(2):
                    if rd:
                        a(rd.pop(0))
                if k in OPT['p2pos'] and ui < len(units):
                    for x in units[ui]:
                        a(x)
                    ui += 1
                k += 1
        assert ui == len(units)
        a('s_waitcnt vmcnt(8) lgkmcnt(0)')
        if j & 1:
            a('s_barrier')
    a(f's_add_u32 {s(sCnt)}, {s(sCnt)}, 1')
    a(f's_cmp_lt_u32 {s(sCnt)}, 6')
    a('s_cbranch_scc1 K2_loop')
    stamp(a, 16)
    a('s_waitcnt vmcnt(0)')
    a('s_barrier')
    for m in range(2):
        a(f'v_add_f32 {v(k2E + m)}, 1.0, {v(k2E + m)}')
        a(f'v_rcp_f32 {v(k2E + m)}, {v(k2E + m)}')
    a('v_and_b32 v5, 15, v1')
    a(f's_lshl_b32 {s(sT0)}, {s(sW3)}, 5')
    a(f'v_add_u32 v5, {s(sT0)}, v5')
    a('v_mul_u32_u24 v5, 528, v5')
    a('v_lshl_add_u32 v5, v2, 4, v5')
    a(f's_mul_i32 {s(sT0)}, {s(sGrp)}, 67584')
    a(f'v_add_u32 v5, {s(sT0)}, v5')
    for n in range(8):
        for m in range(2):
            r = k2acc(n, m)
            for h in range(4):
                a(f'v_mul_f32 {v(r + h)}, {v(k2E + m)}, {v(r + h)}')
            a(f'ds_write_b128 v5, {v(r, 4)} offset:{m * 16 * 528 + n * 64}')
    a('s_waitcnt lgkmcnt(0)')
    a('s_barrier')
    stamp(a, 17)
    a('v_and_b32 v5, 15, v1')
    a('v_lshlrev_b32 v5, 5, v5')
    a(f's_lshl_b32 {s(sT0)}, {s(sWave)}, 3')
    a(f'v_add_u32 v6, {s(sT0)}, v2')
    a('v_mul_u32_u24 v7, 528, v6')
    a('v_add_u32 v5, v5, v7')
    a(f's_mul_i32 {s(sT0)}, {s(s2Ks)}, {64 * 528}')
    a(f's_sub_u32 {s(sT1)}, {64 * 528}, {s(sT0)}')
    a(f'v_add_u32 {v(k2T)}, {s(sT1)}, v5')
    a(f'v_add_u32 {v(k2T + 1)}, {s(sT0)}, v5')
    a(f'v_add_u32 {v(k2T + 2)}, 67584, {v(k2T)}')
    a(f'v_add_u32 {v(k2T + 3)}, 67584, {v(k2T + 1)}')
    SD, KP, RX = 8, 40, 72
    for it in range(2):
        for hh in range(2):
            a(f'ds_read_b128 {v(SD + (it * 2 + hh) * 4, 4)}, {v(k2T)} offset:{it * 4 * 528 + hh * 16}')
            a(f'ds_read_b128 {v(SD + 16 + (it * 2 + hh) * 4, 4)}, {v(k2T + 2)} offset:{it * 4 * 528 + hh * 16}')
    for it in range(2):
        for hh in range(2):
            a(f'ds_read_b128 {v(KP + (it * 2 + hh) * 4, 4)}, {v(k2T + 1)} offset:{it * 4 * 528 + hh * 16}')
            a(f'ds_read_b128 {v(KP + 16 + (it * 2 + hh) * 4, 4)}, {v(k2T + 3)} offset:{it * 4 * 528 + hh * 16}')
    a(f's_xor_b32 {s(sT0)}, s2, 1')
    a(f's_lshl_b32 {s(sT1)}, {s(sT0)}, 15')
    a(f's_lshl_b32 {s(sT2)}, {s(sWave)}, 12')
    a(f's_add_u32 {s(sT1)}, {s(sT1)}, {s(sT2)}')
    a(f's_add_u32 {s(sT1)}, {s(sT1)}, {XCH_OFF}')
    a('s_waitcnt lgkmcnt(8)')
    for q in range(8):
        a(f'v_pk_add_f32 {v(SD + q * 2, 2)}, {v(SD + q * 2, 2)}, {v(SD + 16 + q * 2, 2)}')
    for q in range(4):
        a(f'buffer_store_dwordx4 {v(SD + q * 4, 4)}, {v(vL16)}, {s(S_WS, 4)}, {s(sT1)} offen offset:{q * 1024} sc1')
    a(f's_lshl_b32 {s(sT0)}, {s(sT0)}, 7')
    a(f's_lshl_b32 {s(sT3)}, {s(sWave)}, 2')
    a(f's_add_u32 {s(sT0)}, {s(sT0)}, {s(sT3)}')
    a(f's_add_u32 {s(sT0)}, {s(sT0)}, {F_X}')
    a('s_waitcnt lgkmcnt(0)')
    for q in range(8):
        a(f'v_pk_add_f32 {v(KP + q * 2, 2)}, {v(KP + q * 2, 2)}, {v(KP + 16 + q * 2, 2)}')
    a('s_waitcnt vmcnt(0)')
    a(f'buffer_store_dword {v(vNon)}, off, {s(S_WS, 4)}, {s(sT0)} sc1')
    stamp(a, 18)
    a(f's_lshl_b32 {s(sT0)}, s2, 7')
    a(f's_add_u32 {s(sT0)}, {s(sT0)}, {s(sT3)}')
    a(f's_add_u32 {s(sT0)}, {s(sT0)}, {F_X}')
    a(f's_lshl_b32 {s(sT1)}, s2, 15')
    a(f's_add_u32 {s(sT1)}, {s(sT1)}, {s(sT2)}')
    a(f's_add_u32 {s(sT1)}, {s(sT1)}, {XCH_OFF}')
    poll_line(a, 'K2x', sT0, 1, k2T + 4, sleep=2)
    stamp(a, 19)
    for q in range(4):
        a(f'buffer_load_dwordx4 {v(RX + q * 4, 4)}, {v(vL16)}, {s(S_WS, 4)}, {s(sT1)} offen offset:{q * 1024} sc1')
    a(f's_lshl_b32 {s(sT0)}, {s(s2Rb)}, 7')
    a(f's_lshl_b32 {s(sT2)}, {s(s2Ks)}, 6')
    a(f's_add_u32 {s(sT0)}, {s(sT0)}, {s(sT2)}')
    a(f's_lshl_b32 {s(sT0)}, {s(sT0)}, 11')
    a(f's_lshl_b32 {s(sT2)}, {s(s2Cb)}, 8')
    a(f's_add_u32 {s(sT0)}, {s(sT0)}, {s(sT2)}')
    a(f's_add_u32 {s(sT2)}, {s(sT0)}, {4 * 2048}')
    a('v_and_b32 v5, 15, v1')
    a('v_lshlrev_b32 v5, 4, v5')
    a('v_lshl_add_u32 v5, v6, 11, v5')
    for it in range(2):
        a(f's_waitcnt vmcnt({2 if it == 0 else 1})')
        for q in range(4):
            r = KP + it * 8 + q * 2
            a(f'v_pk_add_f32 {v(r, 2)}, {v(r, 2)}, {v(RX + it * 8 + q * 2, 2)}')
        o = SD + it * 4
        for q in range(4):
            r = KP + it * 8 + q * 2
            a(f'v_cvt_pk_bf16_f32 {v(o + q)}, {v(r)}, {v(r + 1)}')
        a(f'buffer_store_dwordx4 {v(o, 4)}, v5, {s(S2_OUT, 4)}, {s(sT0 if it == 0 else sT2)} offen')
    if OPT['stamp']:
        a('s_waitcnt vmcnt(0)')
        stamp(a, 20)
        a(f's_lshl_b32 {s(sT0)}, s2, 3')
        a(f's_add_u32 {s(sT0)}, {s(sT0)}, {s(sWave)}')
        a(f's_lshl_b32 {s(sT0)}, {s(sT0)}, 8')
        a(f's_add_u32 {s(sT0)}, {s(sT0)}, {STAMP_OFF}')
        a('v_lshlrev_b32 v0, 2, v1')
        a(f'buffer_store_dword v{vSt}, v0, {s(S_WS, 4)}, {s(sT0)} offen')
    a.label('K_end')
    a('s_endpgm')
    a.label('K_code_end')


HEADER = open('cdna_kernels/%s.s.ref' % NAME).read().split('; Override launch')[0]


def build():
    out = HEADER
    out += '; @launch grid=(256,1,1) block=(512,1,1) lds=163840\n'
    out += '.amdgcn_target "amdgcn-amd-amdhsa--gfx950"\n.text\n'
    a = Asm()
    gen(a)
    out += f'.globl {KN}\n.p2align 8\n.type {KN},@function\n'
    out += f'.set CODE_LAST, K_code_end - {KN} - 64\n'
    out += a.finalize()
    out += f'''.section .rodata,"a"
.p2align 6
.amdhsa_kernel {KN}
  .amdhsa_next_free_vgpr 256
  .amdhsa_next_free_sgpr 102
  .amdhsa_accum_offset 256
  .amdhsa_group_segment_fixed_size 0
  .amdhsa_kernarg_size 88
  .amdhsa_user_sgpr_count 2
  .amdhsa_user_sgpr_kernarg_segment_ptr 1
  .amdhsa_system_sgpr_workgroup_id_x 1
.end_amdhsa_kernel
'''
    return out


if __name__ == '__main__':
    path = sys.argv[1] if len(sys.argv) > 1 else f'cdna_kernels/{NAME}.s'
    for kv in sys.argv[2:]:
        k, val = kv.split('=', 1)
        if val in ('True', 'False'):
            val = val == 'True'
        elif val.lstrip('-').isdigit():
            val = int(val)
        elif ',' in val:
            val = tuple(int(x) for x in val.split(','))
        OPT[k] = val
    open(path, 'w').write(build())
```

```python
import sys
from asmlib import Asm, v, s

NAME = 'gated_mix__linear_attn_block__dense_activation_mish__prompt'
KN = NAME + '_kernel'

A2_OFF = 0
E_OFF = 0x1300000
FLG_OFF = 0x1310000
F_KV = FLG_OFF
F_WG = FLG_OFF + 0x2000
F_X = 0x2500000
F_W = FLG_OFF + 0xA000
EP_OFF = FLG_OFF + 0xF000
KVP_OFF = 0x1400000
XCH_OFF = 0x1800000
STAMP_OFF = 0x3000000
WS_SIZE = 268435456
LOG2E = 0x3fb8aa3b
SPIN_MAX = 100000

OPT = dict(stamp=False, dma_every=3, b2pf=True, codepf=True, b2u=1, b2all=0, pfx=None, ntw='', ntx='', ntb='', ntp='', probar=False, xp_same=False, u1=(0,0,0,1,1,2,2,2), p2pos=(3,7,10,13), xp2='', asc=' sc1', fastmish=True, p2rd=2, b0=2)

S_X, S_W, S_WS, S_DBG, S_B1, S_B1Z, S_G, S_PF = 28, 32, 36, 40, 44, 48, 52, 88
S2_B, S2_OUT, S2_AL = 44, 48, 52
sI, sT, sTyp, sWave, sW3, sGrp = 56, 57, 58, 59, 60, 61
sP0, sP1, sS, sZ2 = 62, 63, 64, 65
sWstr, sWoff, sWstep = 66, 67, 68
sXK, sXD, sXR, sCnt = 69, 70, 71, 72
sT0, sT1, sT2, sT3 = 73, 74, 75, 76
sM0W, sM0X = 77, 78
sC, sL2E = 79, 80
sH, sNon = 82, 83
sPFo = 84
sPFu, sPFu1, sPFnr = 3, 10, 11
sPF2b, sPF2nr, sPF2o = 14, 4, 5
sC60, sEps, sEoff = 85, 86, 87
sA2 = 92
s2Cb, s2Kq = 94, 95
s2Aoff, s2Boff, sGoff, sKVo, sFW = 96, 97, 98, 99, 100
sM2, sRole = 101, 93
s2Asw = 81
s2Aa, s2Ba = 18, 19
vOF = 111
vOFa = 112
vSt = 4
WF, XF = 8, 64
vXA0c, vXA1c, vXA0, vXA1 = 96, 97, 98, 99
vWZ12, vWZ3 = 100, 102
vXV, vWV = 105, 107
vPF = 109
vNon = 110
vL16 = 113
vBV = 114
vT = 116
ACC = 128
vE = 240
RING = 18
NA = 4
k2A = 8
PQ = 40
CH = 56
SUM = 72
KF, NUM, OOUT = 56, 68, 116
k2RA = 80
k2AV = 104
k2E = 106
vFa, vFv, vKa, vF3 = 120, 121, 122, 123
k2T = 124
k2ACC = 128
k2BF = 192
S2_WO = 88
S2_KV = 28


class VM:
    def __init__(self):
        self.ops = []

    def issue(self, tag):
        self.ops.append(tag)

    def count(self, tag):
        idx = max(i for i, t in enumerate(self.ops) if t == tag)
        return min(63, len(self.ops) - 1 - idx)


def stamp(a, idx):
    if not OPT['stamp']:
        return
    a('s_memtime s[26:27]')
    a('s_waitcnt lgkmcnt(0)')
    a(f'v_writelane_b32 v{vSt}, s26, {idx}')
    a('s_memrealtime s[26:27]')
    a('s_waitcnt lgkmcnt(0)')
    a(f'v_writelane_b32 v{vSt}, s26, {idx + 32}')


def srd(a, base, ptr, nbytes):
    a(f's_mov_b32 {s(base)}, {s(ptr)}')
    a(f's_and_b32 {s(base+1)}, {s(ptr+1)}, 0xffff')
    a(f's_mov_b32 {s(base+2)}, {nbytes}')
    a(f's_mov_b32 {s(base+3)}, 0x00020000')


def acc(n, m):
    return ACC + (n * 4 + m) * 4


def wf(buf, n):
    return WF + buf * 28 + n * 4


def xf(buf, m):
    return XF + buf * 16 + m * 4


def k1_reads(grp, buf, wslot, kk):
    nt = 7 if grp == 0 else 6
    xa = vXA0 if kk == 0 else vXA1
    xs = [f'ds_read_b128 {v(xf(buf, m), 4)}, {v(xa)} offset:{m * 2048}' for m in range(4)]
    ws = []
    for n in range(nt):
        if n < 4:
            addr = vWZ12 + (n & 1)
            off = wslot * 16384 + (4096 if n >= 2 else 0)
            d2 = 512
        else:
            addr = vWZ3 + (n - 4)
            off = wslot * 16384
            d2 = 1024
        ws.append(f'ds_read_b64_tr_b16 {v(wf(buf, n), 2)}, {v(addr)} offset:{off}')
        ws.append(f'ds_read_b64_tr_b16 {v(wf(buf, n) + 2, 2)}, {v(addr)} offset:{off + d2}')
    return ws[:2] + xs + ws[2:]


def k1_dma_w(slot):
    out = [f's_add_u32 m0, {s(sM0W)}, {slot * 16384}']
    for j in range(2):
        out.append(f'buffer_load_dwordx4 {v(vWV + j)}, {s(S_W, 4)}, {s(sWoff)} offen offset:{j * 1024}{OPT["ntw"]} lds')
    out.append(f's_add_u32 {s(sWoff)}, {s(sWoff)}, {s(sWstep)}')
    return out


def k1_dma_x(par):
    out = []
    if par == 0:
        out.append(f's_add_u32 {s(sXK)}, {s(sXK)}, 128')
        out.append(f's_add_u32 {s(sXD)}, {s(sXD)}, 32768')
        out.append(f's_cmp_eq_u32 {s(sXD)}, 98304')
        out.append(f's_cselect_b32 {s(sXD)}, 0, {s(sXD)}')
        out.append(f's_add_u32 m0, {s(sXD)}, {s(sM0X)}')
        so = sXK
    else:
        out.append(f's_add_u32 {s(sT0)}, {s(sXK)}, 262144')
        out.append(f's_add_u32 {s(sT1)}, {s(sXD)}, {s(sM0X)}')
        out.append(f's_add_u32 m0, {s(sT1)}, 16384')
        so = sT0
    for j in range(2):
        out.append(f'buffer_load_dwordx4 {v(vXV + j)}, {s(S_X, 4)}, {s(so)} offen offset:{j * 1024}{OPT["ntx"]} lds')
    return out


def k1_adv_xread():
    return [f's_add_u32 {s(sXR)}, {s(sXR)}, 32768',
            f's_cmp_eq_u32 {s(sXR)}, 98304',
            f's_cselect_b32 {s(sXR)}, 0, {s(sXR)}',
            f'v_add_u32 {v(vXA0)}, {s(sXR)}, {v(vXA0c)}',
            f'v_add_u32 {v(vXA1)}, {s(sXR)}, {v(vXA1c)}']


def k1_mfmas(grp, typ, buf):
    nt = 7 if grp == 0 else 6
    out = []
    for n in range(nt):
        for m in range(4):
            d = v(acc(n, m), 4)
            W = v(wf(buf, n), 4)
            X = v(xf(buf, m), 4)
            if typ == 0 and n < 4:
                out.append(f'v_mfma_f32_16x16x32_bf16 {d}, {X}, {W}, {d}')
            else:
                out.append(f'v_mfma_f32_16x16x32_bf16 {d}, {W}, {X}, {d}')
    return out


def group_dma(lst):
    units = []
    cur = []
    for x in lst:
        cur.append(x)
        if x.startswith('buffer_'):
            units.append(cur)
            cur = []
    if cur:
        units[-1] = units[-1] + cur
    return units


_tn = [0]


def b2_touch():
    _tn[0] += 1
    L = f'PFs{_tn[0]}'
    return [[f's_sub_u32 {s(sPFu1)}, {s(sPFu1)}, 1',
             f's_cbranch_scc0 {L}',
             f'buffer_load_dword v3, {v(vPF)}, {s(S_PF, 4)}, {s(sPFo)} offen{OPT["ntp"]}',
             f's_mov_b32 {s(sPFu1)}, {s(sPFu)}',
             f's_add_u32 {s(sPFo)}, {s(sPFo)}, 8192',
             f's_mov_b32 {s(sPFu)}, 1000',
             f'{L}:']]


def pf_setup(a):
    srd(a, S_PF, 16, 3584 * 2048)
    a(f's_mov_b32 {s(sT0)}, {896 * 128}')
    a(f'v_mul_lo_u32 {v(vPF)}, v1, {s(sT0)}')
    a(f's_lshl_b32 {s(sT2)}, {s(sWave)}, 8')
    a(f's_add_u32 {s(sT2)}, {s(sT2)}, s2')
    a(f's_lshl_b32 {s(sPFo)}, {s(sT2)}, 7')
    a(f's_lshr_b32 {s(sT0)}, s2, 3')
    a(f's_mul_i32 {s(sT0)}, {s(sT0)}, 5')
    a(f's_mul_i32 {s(sT1)}, {s(sWave)}, 9')
    a(f's_add_u32 {s(sT0)}, {s(sT0)}, {s(sT1)}')
    a(f's_and_b32 {s(sT1)}, s2, 7')
    a(f's_mul_i32 {s(sT1)}, {s(sT1)}, 3')
    a(f's_add_u32 {s(sT0)}, {s(sT0)}, {s(sT1)}')
    a(f's_mul_i32 {s(sT1)}, {s(sT0)}, 2979')
    a(f's_lshr_b32 {s(sT1)}, {s(sT1)}, 16')
    a(f's_mul_i32 {s(sT1)}, {s(sT1)}, 22')
    a(f's_sub_u32 {s(sPFnr)}, {s(sT0)}, {s(sT1)}')
    a(f's_cmp_lt_u32 {s(sT2)}, 896')
    a(f's_cselect_b32 {s(sPFu1)}, {s(sPFnr)}, 1000')
    a(f's_cmp_lg_u32 {s(sWave)}, 4')
    a('s_cbranch_scc1 PF_done')
    srd(a, S_PF, 8, 1024 * 2048)
    a(f's_mov_b32 {s(sPFu1)}, {s(sPFnr)}')
    a(f's_mov_b32 {s(sPFo)}, 0')
    a('v_mul_u32_u24 v5, 5, v1')
    a('v_add_u32 v5, s2, v5')
    a('v_and_b32 v5, 255, v5')
    a('v_lshl_add_u32 v5, v1, 8, v5')
    a(f'v_lshlrev_b32 {v(vPF)}, 7, v5')
    a.label('PF_done')
    a(f's_mov_b32 {s(sPFu)}, 1000')
    if OPT['pfx']:
        lo, span = OPT['pfx']
        a(f'v_lshlrev_b32 {v(vPF)}, 7, v1')
        srd(a, S_PF, 16, 3584 * 2048)
        a(f's_lshr_b32 {s(sT0)}, s2, 3')
        a(f's_mul_i32 {s(sT1)}, {s(sT0)}, 7')
        a(f's_mul_i32 {s(sT2)}, {s(s2Kq)}, 224')
        a(f's_add_u32 {s(sT1)}, {s(sT1)}, {s(sT2)}')
        a(f's_add_u32 {s(sT1)}, {s(sT1)}, {s(sWave)}')
        a(f's_lshl_b32 {s(sPFo)}, {s(sT1)}, 13')
        a(f's_mul_i32 {s(sT1)}, {s(sWave)}, 3')
        a(f's_add_u32 {s(sT1)}, {s(sT1)}, {s(sT0)}')
        a(f's_and_b32 {s(sT1)}, {s(sT1)}, {span - 1}')
        a(f's_add_u32 {s(sPFu1)}, {s(sT1)}, {lo}')
        a(f's_cmp_lg_u32 {s(sWave)}, 7')
        a('s_cbranch_scc1 PF_done2')
        srd(a, S_PF, 8, 1024 * 2048)
        a(f's_lshl_b32 {s(sT1)}, {s(sT0)}, 1')
        a(f's_lshl_b32 {s(sT2)}, {s(s2Kq)}, 6')
        a(f's_add_u32 {s(sT1)}, {s(sT1)}, {s(sT2)}')
        a(f's_lshl_b32 {s(sPFo)}, {s(sT1)}, 13')
        a(f's_lshr_b32 {s(sPFu1)}, {s(sPFu1)}, 1')
        a(f's_mov_b32 {s(sPFu)}, 3')
        a.label('PF_done2')
    if OPT['b2all']:
        a(f's_mov_b32 {s(sPFu1)}, {OPT["b2all"]}')


def k1_substep(a, grp, typ, b, dma=True, reads=True, last=False, extra=None, fill=None, vm=None):
    cur, nxt = b & 1, (b + 1) & 1
    mf = k1_mfmas(grp, typ, cur)
    pre = []
    rd = []
    if reads:
        if b & 1:
            pre += k1_adv_xread()
        rd = k1_reads(grp, nxt, (b + 1) % 4, (b + 1) & 1)
    units = []
    if dma:
        units = group_dma(k1_dma_w(b) + k1_dma_x(0 if (b & 1) else 1))
    if extra:
        units = units + extra
    fill = list(fill or [])
    for x in pre:
        a(x)
    ri = ui = 0
    ev = OPT['dma_every']
    ph = 0 if grp == 0 else 1
    for k, mm in enumerate(mf):
        a(mm)
        if ri < len(rd):
            a(rd[ri])
            ri += 1
        if ui < len(units) and k % ev == ph:
            for x in units[ui]:
                a(x)
            ui += 1
        for _ in range(2):
            if fill:
                a(fill.pop(0))
    assert ri == len(rd) and ui == len(units), (ri, ui, len(units))
    for x in fill:
        a(x)
    if last:
        return
    a(f's_waitcnt vmcnt({vm}) lgkmcnt(0)')
    a('s_barrier')


def mish4(a, r, t):
    T, N2, W = t, t + 4, t + 8
    if OPT['fastmish']:
        for h in (0, 2):
            a(f'v_pk_mul_f32 {v(T + h, 2)}, {v(r + h, 2)}, {s(sL2E, 2)} op_sel_hi:[1,0]')
        for i in range(4):
            a(f'v_exp_f32 {v(T + i)}, {v(T + i)}')
        for h in (0, 2):
            a(f'v_pk_fma_f32 {v(N2 + h, 2)}, {v(T + h, 2)}, -0.5, -1.0 op_sel_hi:[1,0,0]')
        for h in (0, 2):
            a(f'v_pk_fma_f32 {v(N2 + h, 2)}, {v(T + h, 2)}, {v(N2 + h, 2)}, -1.0 op_sel_hi:[1,1,0]')
        for i in range(4):
            a(f'v_rcp_f32 {v(N2 + i)}, {v(N2 + i)}')
        for h in (0, 2):
            a(f'v_pk_fma_f32 {v(r + h, 2)}, {v(r + h, 2)}, {v(N2 + h, 2)}, {v(r + h, 2)}')
        return
    for h in (0, 2):
        a(f'v_pk_mul_f32 {v(T + h, 2)}, {v(r + h, 2)}, {s(sL2E, 2)} op_sel_hi:[1,0]')
    for i in range(4):
        a(f'v_min_f32 {v(T + i)}, {s(sC60)}, {v(T + i)}')
    for i in range(4):
        a(f'v_exp_f32 {v(T + i)}, {v(T + i)}')
    for h in (0, 2):
        a(f'v_pk_add_f32 {v(N2 + h, 2)}, {v(T + h, 2)}, 2.0 op_sel_hi:[1,0]')
    for h in (0, 2):
        a(f'v_pk_mul_f32 {v(W + h, 2)}, {v(T + h, 2)}, {v(N2 + h, 2)}')
    for h in (0, 2):
        a(f'v_pk_fma_f32 {v(N2 + h, 2)}, {v(T + h, 2)}, {v(N2 + h, 2)}, 2.0 op_sel_hi:[1,1,0]')
    for i in range(4):
        a(f'v_rcp_f32 {v(N2 + i)}, {v(N2 + i)}')
    for h in (0, 2):
        a(f'v_pk_mul_f32 {v(W + h, 2)}, {v(W + h, 2)}, {v(N2 + h, 2)}')
    for h in (0, 2):
        a(f'v_pk_mul_f32 {v(r + h, 2)}, {v(r + h, 2)}, {v(W + h, 2)}')


def phi4(a, r, t):
    for h in (0, 2):
        a(f'v_pk_mul_f32 {v(t + h, 2)}, {v(r + h, 2)}, {s(sL2E, 2)} op_sel_hi:[1,0]')
    for i in range(4):
        a(f'v_min_f32 {v(t + i)}, 0, {v(t + i)}')
    for i in range(4):
        a(f'v_exp_f32 {v(t + i)}, {v(t + i)}')
    for i in range(4):
        a(f'v_max_f32 {v(r + i)}, 0, {v(r + i)}')
    for h in (0, 2):
        a(f'v_pk_add_f32 {v(r + h, 2)}, {v(r + h, 2)}, {v(t + h, 2)}')
    for i in range(4):
        a(f'v_add_f32 {v(r + i)}, {s(sEps)}, {v(r + i)}')


def cvt4(a, o, r):
    a(f'v_cvt_pk_bf16_f32 {v(o)}, {v(r)}, {v(r + 1)}')
    a(f'v_cvt_pk_bf16_f32 {v(o + 1)}, {v(r + 2)}, {v(r + 3)}')


def k1_store_pair(a, n0, s_tau, plus, outregs, hook=None):
    a(f's_add_u32 {s(sT2)}, {s(s_tau)}, {plus}')
    a(f's_lshr_b32 {s(sT2)}, {s(sT2)}, 1')
    a(f's_lshl_b32 {s(sT2)}, {s(sT2)}, 10')
    a(f's_add_u32 {s(sT2)}, {s(sT2)}, {s(sA2)}')
    for m in range(4):
        o = outregs + (m & 1) * 4
        mish4(a, acc(n0, m), vE)
        mish4(a, acc(n0 + 1, m), vT)
        cvt4(a, o, acc(n0, m))
        cvt4(a, o + 2, acc(n0 + 1, m))
        a(f'buffer_store_dwordx4 {v(o, 4)}, {v(vL16)}, {s(S_WS, 4)}, {s(sT2)} offen sc1')
        if m < 3:
            a(f's_add_u32 {s(sT2)}, {s(sT2)}, {144 * 1024}')
        if hook and m == 1:
            hook()
    return 4


def k1_store_single(a, n0, outregs):
    a(f's_lshr_b32 {s(sT2)}, {s(sS)}, 1')
    a(f's_lshl_b32 {s(sT2)}, {s(sT2)}, 10')
    a(f's_add_u32 {s(sT2)}, {s(sT2)}, {s(sA2)}')
    a(f's_and_b32 {s(sT3)}, {s(sS)}, 1')
    a(f's_mul_i32 {s(sT3)}, {s(sT3)}, {144 * 1024}')
    a(f's_add_u32 {s(sT2)}, {s(sT2)}, {s(sT3)}')
    for mp in range(2):
        o = outregs + mp * 4
        mish4(a, acc(n0, 2 * mp), vE)
        mish4(a, acc(n0, 2 * mp + 1), vT)
        cvt4(a, o, acc(n0, 2 * mp))
        cvt4(a, o + 2, acc(n0, 2 * mp + 1))
        a(f'buffer_store_dwordx4 {v(o, 4)}, {v(vL16)}, {s(S_WS, 4)}, {s(sT2)} offen sc1')
        if mp == 0:
            a(f's_add_u32 {s(sT2)}, {s(sT2)}, {2 * 144 * 1024}')
    return 2


def get_nonce(a, L):
    a(f's_mov_b32 {s(sC)}, 0')
    a.label(f'{L}_nchk')
    a(f'v_readfirstlane_b32 {s(sNon)}, {v(vNon)}')
    a(f's_cmp_lg_u32 {s(sNon)}, 0')
    a(f's_cbranch_scc1 {L}_nok')
    a('s_sleep 8')
    a(f'buffer_load_dword {v(vNon)}, off, {s(S_DBG, 4)}, 0 sc1')
    a(f's_add_u32 {s(sC)}, {s(sC)}, 1')
    a('s_waitcnt vmcnt(0)')
    a(f's_cmp_lt_u32 {s(sC)}, {SPIN_MAX}')
    a(f's_cbranch_scc1 {L}_nchk')
    a.label(f'{L}_nok')


def poll_line(a, L, soff, nlanes, vtmp, sleep=4):
    a(f'v_and_b32 {v(vtmp + 1)}, {nlanes - 1}, v1')
    a(f'v_lshlrev_b32 {v(vtmp + 1)}, 2, {v(vtmp + 1)}')
    a(f's_mov_b32 {s(sC)}, 0')
    a.label(f'{L}_poll')
    a(f'buffer_load_dword {v(vtmp)}, {v(vtmp + 1)}, {s(S_WS, 4)}, {s(soff)} offen sc1')
    a(f's_add_u32 {s(sC)}, {s(sC)}, 1')
    a('s_waitcnt vmcnt(0)')
    a(f'v_cmp_ne_u32 vcc, {s(sNon)}, {v(vtmp)}')
    a('s_nop 4')
    a(f's_cbranch_vccz {L}_polled')
    a(f's_sleep {sleep}')
    a(f's_cmp_lt_u32 {s(sC)}, {SPIN_MAX}')
    a(f's_cbranch_scc1 {L}_poll')
    a.label(f'{L}_polled')


KVL = 114688
KFL = 147456


def k1_epilogue_A(a, grp, L):
    PK, VV, ONES, KV = 8, 24, 40, 44
    a('s_nop 7')
    for n in range(2):
        for m in range(4):
            phi4(a, acc(n, m), vE + (m & 1) * 4)
    for i in range(4):
        a(f'v_mov_b32 {v(ONES + i)}, 0x3f803f80')
    for src, dst in ((2, VV), (0, PK)):
        for n in range(2):
            for c in range(2):
                d = dst + (n * 2 + c) * 4
                for hh in range(2):
                    cvt4(a, d + 2 * hh, acc(src + n, 2 * c + hh))
    for c in range(2):
        for b in range(3):
            for aa in range(2):
                d = v(KV + (b * 2 + aa) * 4, 4)
                B = v(VV + (b * 2 + c) * 4, 4) if b < 2 else v(ONES, 4)
                a(f'v_mfma_f32_16x16x32_bf16 {d}, {v(PK + (aa * 2 + c) * 4, 4)}, {B}, {d if c else "0"}')
    a(f's_mul_i32 {s(sT0)}, {s(sWave)}, 6144')
    a(f's_add_u32 {s(sT0)}, {s(sT0)}, {KVL}')
    a(f'v_add_u32 {v(vT)}, {s(sT0)}, {v(vL16)}')
    for q in range(6):
        a(f'ds_write_b128 {v(vT)}, {v(KV + q * 4, 4)} offset:{q * 1024}')
    a('s_waitcnt lgkmcnt(0)')
    a('s_barrier')
    stamp(a, 7)
    a(f's_cmp_lg_u32 {s(sW3)}, 0')
    a(f's_cbranch_scc1 {L}_nosum')
    bases = (68, 8, 128)
    for w in range(3):
        for q in range(6):
            a(f'ds_read_b128 {v(bases[w] + q * 4, 4)}, {v(vT)} offset:{(w + 1) * 6144 + q * 1024}')
    a(f's_lshl_b32 {s(sT0)}, {s(sH)}, 3')
    a(f's_add_u32 {s(sT0)}, {s(sT0)}, {s(sI)}')
    a(f's_mul_i32 {s(sT1)}, {s(sT0)}, 6144')
    a(f's_add_u32 {s(sT1)}, {s(sT1)}, {KVP_OFF}')
    a(f's_add_u32 {s(sT3)}, {s(sT1)}, 4096')
    for w in range(3):
        a(f's_waitcnt lgkmcnt({12 - 6 * w})')
        for q in range(12):
            a(f'v_pk_add_f32 {v(KV + q * 2, 2)}, {v(KV + q * 2, 2)}, {v(bases[w] + q * 2, 2)}')
    for q in range(6):
        so, off = (sT1, q * 1024) if q < 4 else (sT3, (q - 4) * 1024)
        a(f'buffer_store_dwordx4 {v(KV + q * 4, 4)}, {v(vL16)}, {s(S_WS, 4)}, {s(so)} offen offset:{off} sc1')
    a(f's_lshl_b32 {s(sT0)}, {s(sT)}, 7')
    a(f's_lshl_b32 {s(sT1)}, {s(sI)}, 2')
    a(f's_add_u32 {s(sT0)}, {s(sT0)}, {s(sT1)}')
    a(f's_add_u32 {s(sT0)}, {s(sT0)}, {F_KV + grp * 32}')
    a('s_waitcnt vmcnt(0)')
    get_nonce(a, L + 'a')
    a(f'buffer_store_dword {v(vNon)}, off, {s(S_WS, 4)}, {s(sT0)} sc1')
    stamp(a, 8)
    a.label(f'{L}_nosum')
    if grp == 0:
        k1_store_pair(a, 4, sP0, 0, 72)
        k1_store_single(a, 6, 72)
    else:
        k1_store_pair(a, 4, sP1, 0, 72)


def k1_epilogue_B(a, grp, L):
    OUT = 72
    a('s_nop 7')
    k1_store_pair(a, 2, sZ2, 2 * grp, OUT)
    if grp == 0:
        k1_store_pair(a, 4, sP0, 0, OUT)
        k1_store_single(a, 6, OUT)
    else:
        k1_store_pair(a, 4, sP1, 0, OUT)
    stamp(a, 7)


def gate_code():
    GX, GW = vE, vE + 8
    o = ['v_mov_b32 v5, 0']
    for i in range(8):
        o.append(f'v_dot2_f32_bf16 v5, {v(GX + i)}, {v(GW + i)}, v5')
    o.append('s_nop 2')
    for sh in (1, 2, 4, 8):
        o.append(f'v_add_f32_dpp v5, v5, v5 row_shr:{sh} row_mask:0xf bank_mask:0xf bound_ctrl:0')
    o.append('v_add_f32_dpp v5, v5, v5 row_bcast:15 row_mask:0xa bank_mask:0xf')
    o.append('v_add_f32_dpp v5, v5, v5 row_bcast:31 row_mask:0xc bank_mask:0xf')
    o.append('v_mov_b32 v6, 0x42200000')
    o.append('v_med3_f32 v5, v5, -v6, v6')
    o.append(f'v_mul_f32 v5, {s(sL2E)}, v5')
    o.append('v_exp_f32 v5, v5')
    o.append(f'v_readlane_b32 {s(sT3)}, v5, 63')
    o.append(f'v_mov_b32 v5, {s(sT3)}')
    o.append(f'buffer_store_dword v5, off, {s(S_WS, 4)}, {s(sEoff)} sc1')
    return o


def k2acc(n, m):
    return k2ACC + (n * 2 + m) * 4


def k2_reads(buf, slot):
    out = []
    for n in range(8):
        addr = k2RA + (slot // 8) * 8 + n
        off = (slot % 8) * 8192
        d = k2BF + buf * 32 + n * 4
        out.append(f'ds_read_b64_tr_b16 {v(d, 2)}, {v(addr)} offset:{off}')
        out.append(f'ds_read_b64_tr_b16 {v(d + 2, 2)}, {v(addr)} offset:{off + 4096}')
    return out


def p2_order():
    o = []
    for lst in ((4, 5, 8, 9), (3, 6, 7, 10), (0, 1, 12, 13), (2, 11)):
        for u in range(2):
            o += [('b', 14 * u + g) for g in lst]
    o += [('a', h) for h in range(8)]
    return o


ORDER = p2_order()


def k2_dma_b(j):
    kind, idx = ORDER[j]
    slot = j % RING
    out = [f's_add_u32 m0, {s(sM2)}, {slot * 8192}']
    base, srdn = (s2Boff, S2_B) if kind == 'b' else (s2Ba, S2_WO)
    out.append(f's_add_u32 {s(sT0)}, {s(base)}, {idx * 65536}')
    out.append(f'buffer_load_dwordx4 {v(vBV)}, {s(srdn, 4)}, {s(sT0)} offen{OPT["ntb"]} lds')
    return out


def k2_load_a(j):
    kind, idx = ORDER[j]
    base = s2Aoff if kind == 'b' else s2Aa
    out = [f's_add_u32 {s(sT1)}, {s(base)}, {idx * 1024}']
    for m in range(2):
        out.append(f'buffer_load_dwordx4 {v(k2A + (j % NA) * 8 + m * 4, 4)}, {v(k2AV + m)}, {s(S_WS, 4)}, {s(sT1)} offen sc1')
    return out


def flag_check(a, L, vval, vaddr, sleep=4):
    a(f's_mov_b32 {s(sC)}, 0')
    a.label(f'{L}_c')
    a(f'v_cmp_ne_u32 vcc, {s(sNon)}, {v(vval)}')
    a('s_nop 4')
    a(f's_cbranch_vccz {L}_ok')
    if sleep:
        a(f's_sleep {sleep}')
    a(f'buffer_load_dword {v(vval)}, {v(vaddr)}, {s(S_WS, 4)}, 0 offen sc1')
    a(f's_add_u32 {s(sC)}, {s(sC)}, 1')
    a('s_waitcnt vmcnt(0)')
    a(f's_cmp_lt_u32 {s(sC)}, {SPIN_MAX}')
    a(f's_cbranch_scc1 {L}_c')
    a.label(f'{L}_ok')


def gen(a):
    a.label(KN)
    a('s_cmp_ge_u32 s2, 256')
    a('s_cbranch_scc1 K_end')
    a('s_load_dwordx16 s[4:19], s[0:1], 0')
    a('s_load_dwordx4 s[20:23], s[0:1], 64')
    a('s_load_dwordx2 s[24:25], s[0:1], 80')
    if OPT['codepf']:
        a('s_getpc_b64 s[26:27]')
        a('s_lshr_b32 s3, s2, 3')
        a('s_and_b32 s3, s3, 1')
        a('s_lshl_b32 s3, s3, 16')
        a('v_lshlrev_b32 v5, 7, v0')
        a('v_add_u32 v5, s3, v5')
        a('v_min_u32 v5, CODE_LAST, v5')
        a('global_load_dword v3, v5, s[26:27]')
    stamp(a, 0)
    a('v_and_b32 v1, 63, v0')
    a('v_lshrrev_b32 v2, 6, v0')
    a(f'v_readfirstlane_b32 {s(sWave)}, v2')
    a(f's_and_b32 {s(sT0)}, s2, 7')
    a(f's_lshr_b32 {s(sT1)}, s2, 3')
    a(f's_and_b32 {s(sI)}, {s(sT0)}, 1')
    a(f's_lshl_b32 {s(sI)}, {s(sI)}, 2')
    a(f's_and_b32 {s(sT2)}, {s(sT1)}, 3')
    a(f's_add_u32 {s(sI)}, {s(sI)}, {s(sT2)}')
    a(f's_lshr_b32 {s(sC)}, {s(sT0)}, 1')
    a(f's_lshl_b32 {s(sC)}, {s(sC)}, 3')
    a(f's_lshr_b32 {s(sT2)}, {s(sT1)}, 2')
    a(f's_add_u32 {s(sC)}, {s(sC)}, {s(sT2)}')
    a(f's_lshr_b32 {s(sT)}, {s(sC)}, 1')
    a(f's_and_b32 {s(sTyp)}, {s(sC)}, 1')
    a(f's_and_b32 {s(sW3)}, {s(sWave)}, 3')
    a(f's_lshr_b32 {s(sGrp)}, {s(sWave)}, 2')
    a(f's_cmp_eq_u32 {s(sTyp)}, 0')
    a(f's_mov_b32 {s(sT2)}, 0x286085C6')
    a(f's_cselect_b32 {s(sT2)}, 0x09CA0420, {s(sT2)}')
    a(f's_and_b32 {s(sT3)}, {s(sT)}, 1')
    a(f's_lshl_b32 {s(sT3)}, {s(sT3)}, 4')
    a(f's_lshr_b32 {s(sT2)}, {s(sT2)}, {s(sT3)}')
    a(f's_and_b32 {s(sP0)}, {s(sT2)}, 15')
    a(f's_bfe_u32 {s(sP1)}, {s(sT2)}, 0x40004')
    a(f's_bfe_u32 {s(sS)}, {s(sT2)}, 0x40008')
    a(f's_bfe_u32 {s(sZ2)}, {s(sT2)}, 0x4000c')
    a('v_lshrrev_b32 v2, 4, v1')
    a('v_lshrrev_b32 v6, 3, v1')
    a('v_and_b32 v7, 7, v1')
    a(f's_lshl_b32 {s(sT2)}, {s(sWave)}, 15')
    for j in range(2):
        a(f'v_xor_b32 v5, {4 * j}, v2')
        a('v_xor_b32 v5, v5, v7')
        a('v_lshlrev_b32 v5, 4, v5')
        a('v_lshl_add_u32 v5, v6, 11, v5')
        a(f's_add_u32 {s(sT3)}, {s(sT2)}, {j * (8 * 2048 - 1024)}')
        a(f'v_add_u32 {v(vXV + j)}, {s(sT3)}, v5')
    a(f's_lshl_b32 {s(sM0W)}, {s(sWave)}, 11')
    a(f's_add_u32 {s(sM0X)}, {s(sM0W)}, 65536')
    a(f's_lshl_b32 {s(sXK)}, {s(sI)}, 19')
    if OPT['xp_same']:
        a(f's_mov_b32 {s(sXK)}, 0')
    a(f's_sub_u32 {s(sXK)}, {s(sXK)}, 128')
    a(f's_mov_b32 {s(sXD)}, 65536')
    a(f's_mov_b32 {s(sWoff)}, 0')
    a(f's_mul_i32 {s(sA2)}, {s(sT)}, 448')
    if OPT['xp_same']:
        a(f's_and_b32 {s(sA2)}, {s(sT)}, 1')
        a(f's_mul_i32 {s(sA2)}, {s(sA2)}, 448')
    a(f's_cmp_ge_u32 {s(sWave)}, 4')
    a('s_cbranch_scc1 K1_setup_z3')
    a(f's_lshr_b32 {s(sT0)}, {s(sWave)}, 1')
    a(f's_lshl_b32 {s(sT2)}, {s(sT)}, 7')
    if OPT['xp_same']:
        a(f's_mov_b32 {s(sT2)}, 0')
    a(f's_add_u32 {s(sT3)}, {s(sT0)}, 1')
    a(f's_lshl_b32 {s(sT3)}, {s(sT3)}, 11')
    a(f's_cmp_eq_u32 {s(sTyp)}, 0')
    a(f's_cselect_b32 {s(sT3)}, {s(sT3)}, 0')
    a(f's_add_u32 {s(sT2)}, {s(sT2)}, {s(sT3)}')
    a(f's_lshl_b32 {s(sT3)}, {s(sZ2)}, 5')
    a(f's_add_u32 {s(sT3)}, {s(sT3)}, {s(sA2)}')
    a(f's_and_b32 {s(sT0)}, {s(sTyp)}, {s(sT0)}')
    a(f's_cselect_b32 {s(sT2)}, {s(sT3)}, {s(sT2)}')
    a(f's_movk_i32 {s(sWstr)}, 6144')
    a(f's_cselect_b32 {s(sWstr)}, 7168, {s(sWstr)}')
    a('v_lshrrev_b32 v5, 1, v7')
    a('v_and_b32 v7, 1, v2')
    a('v_xor_b32 v5, v5, v7')
    a('v_and_b32 v7, 1, v1')
    a(f'v_mul_lo_u32 v6, v6, {s(sWstr)}')
    a('v_lshl_add_u32 v6, v7, 4, v6')
    a(f's_and_b32 {s(sT3)}, {s(sWave)}, 1')
    a(f's_lshl_b32 {s(sT3)}, {s(sT3)}, 4')
    a(f's_mul_i32 {s(sT3)}, {s(sT3)}, {s(sWstr)}')
    a(f's_add_u32 {s(sT2)}, {s(sT2)}, {s(sT3)}')
    for j in range(2):
        a(f'v_xor_b32 v7, {2 * j}, v5')
        a(f'v_lshl_add_u32 v7, v7, 5, v6')
        if j:
            a(f's_lshl_b32 {s(sT3)}, {s(sWstr)}, 3')
            a(f's_add_u32 {s(sT2)}, {s(sT2)}, {s(sT3)}')
            a(f's_sub_u32 {s(sT2)}, {s(sT2)}, 1024')
        a(f'v_add_u32 {v(vWV + j)}, {s(sT2)}, v7')
    a('s_branch K1_setup_w_done')
    a.label('K1_setup_z3')
    a(f's_mov_b32 {s(sWstr)}, 7168')
    a(f's_mov_b32 {s(sT0)}, 1')
    a('v_bfe_u32 v5, v1, 1, 3')
    a('v_xor_b32 v5, v5, v2')
    a(f's_and_b32 {s(sT3)}, {s(sWave)}, 1')
    a(f's_lshl_b32 {s(sT3)}, {s(sT3)}, 2')
    a(f'v_xor_b32 v5, {s(sT3)}, v5')
    a('v_and_b32 v6, 1, v1')
    a('v_mul_u32_u24 v7, 7168, v2')
    a('v_lshl_add_u32 v7, v6, 4, v7')
    a(f's_mul_i32 {s(sT3)}, {s(sW3)}, {8 * 7168}')
    a(f's_add_u32 {s(sT2)}, {s(sA2)}, {s(sT3)}')
    a(f's_sub_u32 {s(sT3)}, {s(sP1)}, 2')
    a(f's_sub_u32 {s(sT1)}, {s(sS)}, 4')
    a(f'v_mov_b32 {v(vT + 1)}, {s(sP0)}')
    a(f'v_mov_b32 {v(vT + 2)}, {s(sT3)}')
    a('v_cmp_lt_u32 vcc, 1, v5')
    a(f'v_cndmask_b32 {v(vT + 1)}, {v(vT + 1)}, {v(vT + 2)}, vcc')
    a(f'v_mov_b32 {v(vT + 2)}, {s(sT1)}')
    a('v_cmp_lt_u32 vcc, 3, v5')
    a(f'v_cndmask_b32 {v(vT + 1)}, {v(vT + 1)}, {v(vT + 2)}, vcc')
    a(f'v_add_u32 {v(vT + 1)}, {v(vT + 1)}, v5')
    a(f'v_lshl_add_u32 {v(vT + 1)}, {v(vT + 1)}, 5, v7')
    a(f'v_add_u32 {v(vT + 1)}, {s(sT2)}, {v(vT + 1)}')
    a(f'v_mov_b32 {v(vT + 2)}, 0x40000000')
    a('v_cmp_lt_u32 vcc, 4, v5')
    a(f'v_cndmask_b32 {v(vWV)}, {v(vT + 1)}, {v(vT + 2)}, vcc')
    a(f'v_add_u32 {v(vWV + 1)}, {4 * 7168 - 1024}, {v(vWV)}')
    a.label('K1_setup_w_done')
    a(f's_lshl_b32 {s(sWstep)}, {s(sWstr)}, 5')
    a('v_lshlrev_b32 v5, 3, v2')
    a('s_waitcnt lgkmcnt(0)')
    srd(a, S_X, 4, 2048 * 1024 * 2)
    srd(a, S_W, 6, 1024 * 3072 * 2)
    a(f's_cmp_eq_u32 {s(sT0)}, 1')
    a(f's_cselect_b32 {s(S_W)}, s12, {s(S_W)}')
    a(f's_cselect_b32 {s(S_W + 1)}, s13, {s(S_W + 1)}')
    a(f's_cselect_b32 {s(S_W + 2)}, {1024 * 3584 * 2}, {s(S_W + 2)}')
    a(f's_and_b32 {s(S_W + 1)}, {s(S_W + 1)}, 0xffff')
    stamp(a, 11)
    for x in k1_dma_w(0) + k1_dma_x(0) + k1_dma_x(1):
        a(x)
    srd(a, S_B1, 14, 3584 * 2)
    srd(a, S_B1Z, 14, 3584 * 2)
    a(f's_cmp_eq_u32 {s(sTyp)}, 0')
    a(f's_cselect_b32 {s(S_B1Z + 2)}, 0, {s(S_B1Z + 2)}')
    BI = 36
    a(f's_lshl_b32 {s(sT3)}, {s(sGrp)}, 1')
    a(f's_add_u32 {s(sT3)}, {s(sT3)}, {s(sZ2)}')
    a(f's_lshl_b32 {s(sT3)}, {s(sT3)}, 5')
    a(f's_add_u32 {s(sT3)}, {s(sT3)}, {s(sA2)}')
    a(f'buffer_load_dwordx2 {v(BI, 2)}, v5, {s(S_B1Z, 4)}, {s(sT3)} offen')
    a(f'buffer_load_dwordx2 {v(BI + 2, 2)}, v5, {s(S_B1Z, 4)}, {s(sT3)} offen offset:32')
    a(f's_cmp_eq_u32 {s(sGrp)}, 0')
    a(f's_cselect_b32 {s(sT3)}, {s(sP0)}, {s(sP1)}')
    a(f's_lshl_b32 {s(sT3)}, {s(sT3)}, 5')
    a(f's_add_u32 {s(sT3)}, {s(sT3)}, {s(sA2)}')
    a(f'buffer_load_dwordx2 {v(BI + 4, 2)}, v5, {s(S_B1, 4)}, {s(sT3)} offen')
    a(f'buffer_load_dwordx2 {v(BI + 6, 2)}, v5, {s(S_B1, 4)}, {s(sT3)} offen offset:32')
    a(f's_lshl_b32 {s(sT3)}, {s(sS)}, 5')
    a(f's_add_u32 {s(sT3)}, {s(sT3)}, {s(sA2)}')
    a(f'buffer_load_dwordx2 {v(BI + 8, 2)}, v5, {s(S_B1, 4)}, {s(sT3)} offen')
    srd(a, S_WS, 24, WS_SIZE)
    srd(a, S_DBG, 22, 256)
    a(f's_mov_b32 {s(sT3)}, {EP_OFF}')
    a(f'buffer_load_dword {v(vNon)}, off, {s(S_WS, 4)}, {s(sT3)} sc1')
    if OPT['probar']:
        a('s_barrier')
    for x in k1_dma_w(1) + k1_dma_w(2) + k1_dma_x(0) + k1_dma_x(1):
        a(x)
    stamp(a, 12)
    srd(a, S_G, 18, 2048)
    a(f'v_lshlrev_b32 {v(vL16)}, 4, v1')
    a(f's_lshl_b32 {s(sRole)}, {s(sI)}, 5')
    a(f's_add_u32 {s(sRole)}, {s(sRole)}, {s(sC)}')
    a(f's_lshl_b32 {s(sFW)}, {s(sRole)}, 7')
    a(f's_add_u32 {s(sFW)}, {s(sFW)}, {F_WG}')
    a(f's_lshl_b32 {s(sT2)}, {s(sRole)}, 3')
    a(f's_add_u32 {s(sT2)}, {s(sT2)}, {s(sWave)}')
    a(f's_lshr_b32 {s(s2Kq)}, {s(sC)}, 3')
    a(f's_and_b32 {s(s2Cb)}, {s(sC)}, 7')
    a(f's_lshl_b32 {s(sEoff)}, {s(sT2)}, 2')
    a(f's_add_u32 {s(sEoff)}, {s(sEoff)}, {E_OFF}')
    a(f's_lshl_b32 {s(sGoff)}, {s(sT2)}, 11')
    a(f's_lshl_b32 {s(sH)}, {s(sT)}, 1')
    a(f's_add_u32 {s(sH)}, {s(sH)}, {s(sGrp)}')
    a(f's_mov_b32 {s(sL2E)}, {LOG2E}')
    a(f's_mov_b32 {s(sC60)}, 0x42700000')
    a(f's_mov_b32 {s(sEps)}, 0x358637bd')
    a(f's_lshl_b32 {s(sA2)}, {s(sI)}, 2')
    a(f's_add_u32 {s(sA2)}, {s(sA2)}, {s(sW3)}')
    a(f's_mul_i32 {s(sA2)}, {s(sA2)}, {4 * 144}')
    a(f's_mul_i32 {s(sT2)}, {s(sT)}, 7')
    a(f's_add_u32 {s(sA2)}, {s(sA2)}, {s(sT2)}')
    a(f's_add_u32 {s(sA2)}, {s(sA2)}, 32')
    a(f's_lshl_b32 {s(sA2)}, {s(sA2)}, 10')
    a(f'v_bfe_u32 {v(vT + 3)}, v1, 2, 2')
    a(f'v_and_b32 {v(vT + 4)}, 3, v1')
    a(f'v_lshl_add_u32 v5, v2, 3, {v(vT + 3)}')
    a(f'v_lshrrev_b32 v6, 1, {v(vT + 3)}')
    a('v_and_b32 v7, 1, v2')
    a('v_lshl_or_b32 v6, v7, 1, v6')
    a(f's_lshl_b32 {s(sT2)}, {s(sGrp)}, 1')
    for q in range(2):
        a(f's_add_u32 {s(sT3)}, {s(sT2)}, {q}')
        a(f'v_xor_b32 {v(vT)}, {s(sT3)}, v6')
        a(f'v_lshlrev_b32 {v(vT)}, 5, {v(vT)}')
        a(f'v_lshl_add_u32 {v(vT)}, v5, 7, {v(vT)}')
        a(f'v_lshl_add_u32 {v(vWZ12 + q)}, {v(vT + 4)}, 3, {v(vT)}')
    a(f'v_lshl_or_b32 v6, v7, 2, {v(vT + 3)}')
    for q in range(3):
        if q < 2:
            a(f's_add_u32 {s(sT3)}, {s(sT2)}, {q}')
        else:
            a(f's_mov_b32 {s(sT3)}, 4')
        a(f'v_xor_b32 {v(vT)}, {s(sT3)}, v6')
        a(f'v_lshlrev_b32 {v(vT)}, 5, {v(vT)}')
        a(f'v_lshl_add_u32 {v(vT)}, v5, 8, {v(vT)}')
        a(f'v_lshl_add_u32 {v(vT)}, {v(vT + 4)}, 3, {v(vT)}')
        a(f'v_add_u32 {v(vWZ3 + q)}, 8192, {v(vT)}')
    a('v_and_b32 v5, 15, v1')
    a('v_bfe_u32 v6, v1, 1, 3')
    a('v_xor_b32 v6, v6, v2')
    a(f's_lshl_b32 {s(sT3)}, {s(sW3)}, 13')
    a(f's_add_u32 {s(sT3)}, {s(sT3)}, 65536')
    a('v_lshlrev_b32 v5, 7, v5')
    a('v_lshl_add_u32 v5, v6, 4, v5')
    a(f'v_add_u32 {v(vXA0c)}, {s(sT3)}, v5')
    a(f'v_xor_b32 {v(vXA1c)}, 64, {v(vXA0c)}')
    a(f'v_mov_b32 {v(vXA0)}, {v(vXA0c)}')
    a(f'v_mov_b32 {v(vXA1)}, {v(vXA1c)}')
    a(f's_mov_b32 {s(sXR)}, 0')
    a('s_and_b32 s9, s9, 0xffff')
    pf_setup(a)
    a('v_and_b32 v5, 1, v1')
    a('v_lshlrev_b32 v5, 4, v5')
    a('v_lshl_add_u32 v5, v2, 11, v5')
    a(f's_lshl_b32 {s(sT3)}, {s(sWave)}, 13')
    a(f's_lshl_b32 {s(sT0)}, {s(s2Cb)}, 8')
    a(f's_add_u32 {s(sT3)}, {s(sT3)}, {s(sT0)}')
    a(f's_and_b32 {s(sT0)}, {s(sWave)}, 1')
    a(f's_lshl_b32 {s(sT0)}, {s(sT0)}, 2')
    a(f'v_xor_b32 v7, {s(sT0)}, v6')
    a('v_lshl_add_u32 v7, v7, 5, v5')
    a(f'v_add_u32 {v(vBV)}, {s(sT3)}, v7')
    a(f's_lshl_b32 {s(sM2)}, {s(sWave)}, 10')
    for n in range(2):
        for r in range(0, 16, 2):
            a(f'v_pk_mov_b32 {v(acc(n, 0) + r, 2)}, 0, 0')
    stamp(a, 1)
    a('s_waitcnt vmcnt(8)')
    for n in range(2, 7):
        b = BI + (n - 2) * 2
        r0 = acc(n, 0)
        a(f'v_lshlrev_b32 {v(r0)}, 16, {v(b)}')
        a(f'v_and_b32 {v(r0 + 1)}, 0xffff0000, {v(b)}')
        a(f'v_lshlrev_b32 {v(r0 + 2)}, 16, {v(b + 1)}')
        a(f'v_and_b32 {v(r0 + 3)}, 0xffff0000, {v(b + 1)}')
        for m in range(1, 4):
            for h in (0, 2):
                a(f'v_pk_mov_b32 {v(acc(n, m) + h, 2)}, {v(r0 + h, 2)}, {v(r0 + h, 2)} op_sel:[0,1]')
    a(f's_lshl_b32 {s(sT2)}, s2, 3')
    a(f's_add_u32 {s(sT2)}, {s(sT2)}, {s(sWave)}')
    a(f's_cmp_lg_u32 {s(sT2)}, 7')
    a('s_cbranch_scc1 K1_nopub')
    a(f'v_add_u32 {v(vNon)}, 1, {v(vNon)}')
    a(f'v_or_b32 {v(vNon)}, 0x80000000, {v(vNon)}')
    a(f's_mov_b32 {s(sT3)}, {EP_OFF}')
    a(f'buffer_store_dword {v(vNon)}, off, {s(S_DBG, 4)}, 0 sc1')
    a(f'buffer_store_dword {v(vNon)}, off, {s(S_WS, 4)}, {s(sT3)} sc1')
    a('s_waitcnt vmcnt(0)')
    a.label('K1_nopub')
    srd(a, S2_B, 16, 3584 * 1024 * 2)
    a(f's_mul_i32 {s(s2Boff)}, {s(s2Kq)}, {28 * 65536}')
    a(f's_mul_i32 {s(s2Ba)}, {s(s2Kq)}, {8 * 65536}')
    a(f's_lshl_b32 {s(sT2)}, {s(sTyp)}, 1')
    a(f's_add_u32 {s(sT2)}, {s(sT2)}, {s(sGrp)}')
    a(f's_cmp_eq_u32 {s(sT2)}, 1')
    a('s_cbranch_scc1 K1_v01')
    a(f's_cmp_eq_u32 {s(sT2)}, 2')
    a('s_cbranch_scc1 K1_v10')
    a(f's_cmp_eq_u32 {s(sT2)}, 3')
    a('s_cbranch_scc1 K1_v11')
    for typ in range(2):
        for grp in range(2):
            L = f'K1_v{typ}{grp}'
            a.label(L)
            stamp(a, 2)
            a('s_barrier')
            stamp(a, 3)
            for x in k1_reads(grp, 0, 0, 0):
                a(x)
            a(f's_mov_b32 {s(sCnt)}, 1')
            a('s_waitcnt vmcnt(6) lgkmcnt(0)')
            a('s_barrier')
            stamp(a, 4)
            k1_substep(a, grp, typ, 0, dma=False, vm=8,
                       extra=group_dma(k1_dma_w(3) + k1_dma_x(0) + k1_dma_w(0) + k1_dma_x(1)))
            for b in range(1, 4):
                k1_substep(a, grp, typ, b, vm=8)
            a.label(L + '_loop')
            if OPT['stamp']:
                a('s_memtime s[26:27]')
                a(f's_add_u32 m0, {s(sCnt)}, 20')
                a('s_waitcnt lgkmcnt(0)')
                a(f'v_writelane_b32 v{vSt}, s26, m0')
            pf = OPT['b2pf']
            for b in range(4):
                k1_substep(a, grp, typ, b, extra=b2_touch() if pf else None, vm=8)
            a(f's_add_u32 {s(sCnt)}, {s(sCnt)}, 1')
            a(f's_cmp_lt_u32 {s(sCnt)}, 7')
            a(f's_cbranch_scc1 {L}_loop')
            stamp(a, 5)
            nl = [[f'buffer_load_dword {v(vNon)}, off, {s(S_DBG, 4)}, 0 sc1']]
            gl = [[f'buffer_load_dwordx4 {v(vE, 4)}, {v(vL16)}, {s(S_X, 4)}, {s(sGoff)} offen'],
                  [f'buffer_load_dwordx4 {v(vE + 4, 4)}, {v(vL16)}, {s(S_X, 4)}, {s(sGoff)} offen offset:1024'],
                  [f'buffer_load_dwordx4 {v(vE + 8, 4)}, {v(vL16)}, {s(S_G, 4)}, 0 offen'],
                  [f'buffer_load_dwordx4 {v(vE + 12, 4)}, {v(vL16)}, {s(S_G, 4)}, 0 offen offset:1024']]
            k1_substep(a, grp, typ, 0, dma=False, vm=9, extra=gl + nl)
            k1_substep(a, grp, typ, 1, dma=False, vm=0)
            k1_substep(a, grp, typ, 2, dma=False, vm=63, fill=gate_code())
            bd = []
            for j in range(14):
                bd += k2_dma_b(j)
            un = group_dma(bd)
            un = [un[2 * q] + un[2 * q + 1] for q in range(7)]
            k1_substep(a, grp, typ, 3, dma=False, reads=False, last=True, extra=un)
            stamp(a, 6)
            if typ == 0:
                k1_epilogue_A(a, grp, L)
            else:
                k1_epilogue_B(a, grp, L)
            a('s_branch P2_start')
    a.label('P2_start')
    stamp(a, 9)
    get_nonce(a, 'P2n')
    a(f's_and_b32 {s(sT0)}, {s(sRole)}, 0xf8')
    a(f's_lshl_b32 {s(sT0)}, {s(sT0)}, 7')
    a(f's_add_u32 {s(sT0)}, {s(sT0)}, {F_WG}')
    a('v_and_b32 v5, 3, v1')
    a('v_lshlrev_b32 v5, 8, v5')
    a(f'v_add_u32 {v(vF3)}, {s(sT0)}, v5')
    a(f'v_add_u32 {v(vFa)}, 128, {v(vF3)}')
    a(f'v_add_u32 {v(vOFa)}, 4, {v(vFa)}')
    a(f's_lshl_b32 {s(sT0)}, {s(sI)}, 12')
    a(f's_add_u32 {s(sT0)}, {s(sT0)}, {F_WG}')
    a('v_lshlrev_b32 v5, 7, v1')
    a(f'v_add_u32 v6, {s(sT0)}, v5')
    a('v_cmp_gt_u32 vcc, 32, v1')
    a(f'v_cndmask_b32 {v(vOFa)}, {v(vOFa)}, v6, vcc')
    a(f's_lshl_b32 {s(sT2)}, {s(sI)}, 4')
    a(f's_lshl_b32 {s(sT3)}, {s(sWave)}, 1')
    a(f's_add_u32 {s(sT2)}, {s(sT2)}, {s(sT3)}')
    a(f's_and_b32 {s(sT3)}, {s(s2Kq)}, 1')
    a(f's_add_u32 {s(sT3)}, {s(sT2)}, {s(sT3)}')
    a(f's_mul_i32 {s(sT0)}, {s(sT3)}, {144 * 1024}')
    a(f'v_add_u32 {v(k2AV)}, {s(sT0)}, {v(vL16)}')
    a(f's_xor_b32 {s(sT1)}, {s(sT3)}, 1')
    a(f's_mul_i32 {s(sT0)}, {s(sT1)}, {144 * 1024}')
    a(f'v_add_u32 {v(k2AV + 1)}, {s(sT0)}, {v(vL16)}')
    a('v_and_b32 v5, 15, v1')
    a('v_lshlrev_b32 v5, 2, v5')
    for m, sr in ((0, sT3), (1, sT1)):
        a(f's_lshl_b32 {s(sT0)}, {s(sr)}, 6')
        a(f's_add_u32 {s(sT0)}, {s(sT0)}, {E_OFF}')
        a(f'v_add_u32 {v(k2E + m)}, {s(sT0)}, v5')
    a(f's_lshl_b32 {s(sEoff)}, {s(sT3)}, 4')
    a(f's_mul_i32 {s(s2Aoff)}, {s(s2Kq)}, {28 * 1024}')
    a(f's_add_u32 {s(s2Aoff)}, {s(s2Aoff)}, {32 * 1024}')
    a(f's_lshl_b32 {s(s2Aa)}, {s(s2Kq)}, 13')
    a(f's_lshl_b32 {s(sT0)}, {s(sT)}, 7')
    a(f's_add_u32 {s(sT0)}, {s(sT0)}, {F_KV}')
    a(f'v_add_u32 {v(vKa)}, {s(sT0)}, v5')
    a(f'v_bfe_u32 v3, v1, 2, 2')
    a(f'v_lshl_add_u32 v5, v2, 2, v3')
    a('v_and_b32 v6, 7, v5')
    a(f's_lshr_b32 {s(sT2)}, {s(s2Kq)}, 1')
    a(f's_lshl_b32 {s(sT2)}, {s(sT2)}, 2')
    a(f'v_xor_b32 v6, {s(sT2)}, v6')
    a('v_lshlrev_b32 v5, 8, v5')
    a('v_and_b32 v3, 3, v1')
    a('v_lshl_add_u32 v5, v3, 3, v5')
    for n in range(8):
        a(f'v_xor_b32 v7, {n}, v6')
        a(f'v_lshl_add_u32 {v(k2RA + n)}, v7, 5, v5')
        a(f'v_add_u32 {v(k2RA + 8 + n)}, 65536, {v(k2RA + n)}')
        a(f'v_add_u32 {v(k2RA + 16 + n)}, 131072, {v(k2RA + n)}')
    srd(a, S2_OUT, 20, 2048 * 1024 * 2)
    srd(a, S2_WO, 8, 1024 * 2048)
    srd(a, S2_KV, 24, WS_SIZE)
    a(f's_cmp_ge_u32 {s(sWave)}, 6')
    a(f's_cselect_b32 {s(S2_KV + 2)}, 0, {s(S2_KV + 2)}')
    a(f's_mul_i32 {s(sKVo)}, {s(sT)}, {2 * 49152}')
    a(f's_add_u32 {s(sKVo)}, {s(sKVo)}, {KVP_OFF}')
    a(f's_lshl_b32 {s(sT3)}, {s(sWave)}, 11')
    a(f's_add_u32 {s(sKVo)}, {s(sKVo)}, {s(sT3)}')
    a(f's_cmp_ge_u32 {s(sWave)}, 3')
    a(f's_cselect_b32 {s(sT3)}, {49152 - 6144}, 0')
    a(f's_add_u32 {s(sKVo)}, {s(sKVo)}, {s(sT3)}')
    a(f's_cmp_eq_u32 {s(sTyp)}, 0')
    a('s_cbranch_scc1 P2_noq')
    for n in range(2):
        for m in range(4):
            phi4(a, acc(n, m), CH + (m & 1) * 4)
    for m in range(4):
        for n in range(2):
            cvt4(a, PQ + m * 4 + 2 * n, acc(n, m))
    a.label('P2_noq')
    for r in range(0, 64, 2):
        a(f'v_pk_mov_b32 {v(k2ACC + r, 2)}, 0, 0')
    a('s_waitcnt vmcnt(0)')
    a('s_barrier')
    stamp(a, 10)
    a(f's_cmp_lg_u32 {s(sWave)}, 7')
    a('s_cbranch_scc1 P2_noflag')
    a(f'buffer_store_dword {v(vNon)}, off, {s(S_WS, 4)}, {s(sFW)} sc1')
    a(f's_cmp_eq_u32 {s(sTyp)}, 0')
    a('s_cbranch_scc1 P2_c1')
    a('v_cmp_gt_u32 vcc, 32, v1')
    a(f'v_cndmask_b32 {v(vFa)}, {v(vKa)}, {v(vFa)}, vcc')
    a.label('P2_c1')
    a(f'v_mov_b32 {v(vFv)}, 0')
    flag_check(a, 'P2c1', vFv, vFa, sleep=0)
    a.label('P2_noflag')
    for x in k2_reads(0, 0):
        a(x)
    a('s_waitcnt lgkmcnt(0)')
    a('s_barrier')
    stamp(a, 13)
    vmc, vmb, vm7 = VM(), VM(), VM()

    def emit(lst, tag, only=None):
        for x in lst:
            a(x)
            if x.startswith('buffer_'):
                if only is None:
                    for t in (vmc, vmb, vm7):
                        t.issue(tag)
                else:
                    only.issue(tag)
    for j in range(3):
        emit(k2_load_a(j), f'A{j}')

    def bblock(j):
        L = f'P2b{j}'
        if j in (0, 2, 4, 6, 8):
            c = j // 2
            a(f's_cmp_eq_u32 {s(sTyp)}, 0')
            a(f's_cbranch_scc1 {L}')
            if c > 0:
                a(f's_waitcnt vmcnt({vmb.count(f"C{c - 1}")})')
                for q in range(4):
                    if c == 1:
                        a(f'v_pk_add_f32 {v(SUM + q * 2, 2)}, {v(CH + q * 2, 2)}, {v(CH + 8 + q * 2, 2)}')
                    else:
                        a(f'v_pk_add_f32 {v(SUM + q * 2, 2)}, {v(SUM + q * 2, 2)}, {v(CH + q * 2, 2)}')
                        a(f'v_pk_add_f32 {v(SUM + q * 2, 2)}, {v(SUM + q * 2, 2)}, {v(CH + 8 + q * 2, 2)}')
            if c < 4:
                for i in range(2):
                    a(f's_add_u32 {s(sT2)}, {s(sKVo)}, {(2 * c + i) * 6144}')
                    emit([f'buffer_load_dwordx4 {v(CH + (i * 2 + hh) * 4, 4)}, {v(vL16)}, {s(S2_KV, 4)}, {s(sT2)} offen offset:{hh * 1024} sc1'
                          for hh in range(2)], f'C{c}', vmb)
            else:
                for q in range(4):
                    a(f'v_cvt_pk_bf16_f32 {v(CH + q)}, {v(SUM + 2 * q)}, {v(SUM + 2 * q + 1)}')
                a(f's_lshl_b32 {s(sT3)}, {s(sWave)}, 10')
                a(f's_add_u32 {s(sT3)}, {s(sT3)}, {KFL}')
                a(f'v_add_u32 {v(k2T)}, {s(sT3)}, {v(vL16)}')
                a(f'ds_write_b128 {v(k2T)}, {v(CH, 4)}')
            a.label(L)
        if j == 12:
            a(f's_cmp_eq_u32 {s(sTyp)}, 0')
            a(f's_cbranch_scc1 {L}')
            a(f's_mul_i32 {s(sT3)}, {s(sGrp)}, 3072')
            a(f's_add_u32 {s(sT3)}, {s(sT3)}, {KFL}')
            a(f'v_add_u32 {v(k2T)}, {s(sT3)}, {v(vL16)}')
            for f in range(3):
                a(f'ds_read_b128 {v(KF + f * 4, 4)}, {v(k2T)} offset:{f * 1024}')
            a(f's_mul_i32 {s(sKVo)}, {s(sT)}, 7')
            a(f's_add_u32 {s(sKVo)}, {s(sKVo)}, 32')
            a(f's_sub_u32 {s(sKVo)}, {s(sH)}, {s(sKVo)}')
            a(f's_lshl_b32 {s(sKVo)}, {s(sKVo)}, 10')
            a(f's_add_u32 {s(sKVo)}, {s(sKVo)}, {s(sA2)}')
            a.label(L)
        if j in (13, 14, 15, 16):
            m = j - 13
            a(f's_cmp_eq_u32 {s(sTyp)}, 0')
            a(f's_cbranch_scc1 {L}')
            for b in (2, 0, 1):
                a(f'v_mfma_f32_16x16x32_bf16 {v(NUM + b * 4, 4)}, {v(KF + b * 4, 4)}, {v(PQ + m * 4, 4)}, 0')
            dn = NUM + 8
            a(f'v_add_f32 {v(dn)}, {s(sEps)}, {v(dn)}')
            a(f'v_rcp_f32 {v(dn)}, {v(dn)}')
            for b in range(2):
                r = NUM + b * 4
                for h in (0, 2):
                    a(f'v_pk_mul_f32 {v(r + h, 2)}, {v(r + h, 2)}, {v(dn, 2)} op_sel_hi:[1,0]')
                cvt4(a, OOUT + 2 * b, r)
            emit([f'buffer_store_dwordx4 {v(OOUT, 4)}, {v(vL16)}, {s(S_WS, 4)}, {s(sKVo)} offen sc1'], 'O', vmb)
            a(f's_add_u32 {s(sKVo)}, {s(sKVo)}, {144 * 1024}')
            a.label(L)
        if j == 18:
            a(f's_lshl_b32 {s(sT0)}, {s(sWave)}, 1')
            a(f's_or_b32 {s(sT0)}, {s(sT0)}, {s(sTyp)}')
            a(f's_cmp_eq_u32 {s(sT0)}, 13')
            a(f's_cbranch_scc0 {L}')
            a(f'buffer_store_dword {v(vNon)}, off, {s(S_WS, 4)}, {s(sFW)} offset:4 sc1')
            a.label(L)

    CHK = {8: (11, vF3, 'c2'), 21: (23, vOFa, 'c3')}
    for j in range(36):
        cur, nxt = j & 1, (j + 1) & 1
        kind, idx = ORDER[j]
        if j == 0:
            a(f's_waitcnt vmcnt({vmc.count("A0")}) lgkmcnt(0)')
            stamp(a, 14)
        bblock(j)
        if j in CHK:
            a(f's_cmp_lg_u32 {s(sWave)}, 7')
            a(f's_cbranch_scc1 P2_nl{j}')
            emit([f'buffer_load_dword {v(vOF)}, {v(CHK[j][1])}, {s(S_WS, 4)}, 0 offen sc1'], CHK[j][2], vm7)
            a.label(f'P2_nl{j}')
        if j == 24:
            emit([f'buffer_load_dword {v(k2E + m)}, {v(k2E + m)}, {s(S_WS, 4)}, 0 offen sc1' for m in range(2)], 'E')
        if j == 28:
            a(f's_waitcnt vmcnt({vmc.count("E")})')
            for m in range(2):
                a(f'v_rcp_f32 {v(k2E + m)}, {v(k2E + m)}')
            for q in range(2):
                for h in range(4):
                    a(f'v_mul_f32 {v(k2ACC + q * 4 + h)}, {v(k2E + (q & 1))}, {v(k2ACC + q * 4 + h)}')
        A0 = k2A + (j % NA) * 8
        if kind == 'b' and idx % 14 in (2, 11):
            a(f's_bitcmp0_b32 {s(s2Kq)}, 0')
            a(f's_cbranch_scc0 K2_sp1_{j}')
            a(f'v_swap_b32 {v(A0 + 2)}, {v(A0 + 4)}')
            a(f'v_swap_b32 {v(A0 + 3)}, {v(A0 + 5)}')
            a(f's_branch K2_spd_{j}')
            a.label(f'K2_sp1_{j}')
            a(f'v_swap_b32 {v(A0)}, {v(A0 + 6)}')
            a(f'v_swap_b32 {v(A0 + 1)}, {v(A0 + 7)}')
            a.label(f'K2_spd_{j}')
            a('s_nop 1')
        units = []
        if j + 3 < 36:
            units += [(u, f'A{j + 3}') for u in group_dma(k2_load_a(j + 3))]
        jb = j + 14 if j < 5 else j + 13
        if j != 5 and jb < 36:
            units += [(k2_dma_b(jb), f'B{jb}')]
        rd = k2_reads(nxt, (j + 1) % RING) if j < 35 else []
        k = ui = 0
        for n in range(8):
            for m in range(2):
                d = v(k2acc(n, m), 4)
                if j == 28 and k + 2 < 16:
                    for h in range(4):
                        a(f'v_mul_f32 {v(k2ACC + (k + 2) * 4 + h)}, {v(k2E + (k & 1))}, {v(k2ACC + (k + 2) * 4 + h)}')
                a(f'v_mfma_f32_16x16x32_bf16 {d}, {v(k2BF + cur * 32 + n * 4, 4)}, {v(A0 + m * 4, 4)}, {d}')
                for _ in range(OPT['p2rd']):
                    if rd:
                        a(rd.pop(0))
                if k in OPT['p2pos'] and ui < len(units):
                    emit(units[ui][0], units[ui][1])
                    ui += 1
                k += 1
        assert ui == len(units)
        if j == 35:
            break
        for jl, (jc, va, nm) in CHK.items():
            if j == jc:
                a(f's_cmp_lg_u32 {s(sWave)}, 7')
                a(f's_cbranch_scc1 P2_nc{j}')
                a(f's_waitcnt vmcnt({vm7.count(nm)})')
                flag_check(a, 'P2' + nm, vOF, va)
                a.label(f'P2_nc{j}')
        def need(t):
            n = t.count(f'A{j + 1}')
            if j % 6 == 5:
                for jb in range(j + 2, j + 8):
                    if 14 <= jb < 36:
                        n = min(n, t.count(f'B{jb}'))
                if j == 17 and t is vmb:
                    n = min(n, t.count('O'))
            return n
        nc, nb_ = need(vmc), need(vmb)
        if nc != nb_:
            a(f's_cmp_eq_u32 {s(sTyp)}, {1 if nc < nb_ else 0}')
            a(f's_cbranch_scc1 P2_w{j}')
            a(f's_waitcnt vmcnt({min(nc, nb_)})')
            a.label(f'P2_w{j}')
        a(f's_waitcnt vmcnt({max(nc, nb_)}) lgkmcnt(0)')
        if j % 6 == 5:
            a('s_barrier')
    stamp(a, 16)
    a(f's_lshl_b32 {s(sT2)}, {s(sWave)}, 11')
    PK = 8
    for d in (1, 2, 3):
        a(f's_xor_b32 {s(sT0)}, {s(sRole)}, {d << 3}')
        a(f's_mul_i32 {s(sT0)}, {s(sT0)}, 49152')
        a(f's_add_u32 {s(sT0)}, {s(sT0)}, {s(sT2)}')
        a(f's_add_u32 {s(sT0)}, {s(sT0)}, {XCH_OFF + (d - 1) * 16384}')
        m, nb = d & 1, (d >> 1) * 4
        p = PK + (d - 1) * 8
        for n in range(4):
            cvt4(a, p + n * 2, k2acc(nb + n, m))
        for q in range(2):
            a(f'buffer_store_dwordx4 {v(p + q * 4, 4)}, {v(vL16)}, {s(S_WS, 4)}, {s(sT0)} offen offset:{q * 1024} sc1')
    a(f'v_add_f32 {v(k2E)}, 1.0, {v(k2E)}')
    a(f'v_rcp_f32 {v(k2E)}, {v(k2E)}')
    a(f's_lshl_b32 {s(sT0)}, {s(sRole)}, 3')
    a(f's_add_u32 {s(sT0)}, {s(sT0)}, {s(sWave)}')
    a(f's_lshl_b32 {s(sT0)}, {s(sT0)}, 7')
    a('v_and_b32 v5, 3, v1')
    a('v_max_u32 v5, 1, v5')
    a('v_lshlrev_b32 v5, 13, v5')
    a(f'v_xor_b32 v5, {s(sT0)}, v5')
    a(f'v_add_u32 {v(vFa)}, {F_X}, v5')
    a(f's_add_u32 {s(sT0)}, {s(sT0)}, {F_X}')
    a(f's_mul_i32 {s(sT1)}, {s(sRole)}, 49152')
    a(f's_add_u32 {s(sT1)}, {s(sT1)}, {s(sT2)}')
    a(f's_add_u32 {s(sT1)}, {s(sT1)}, {XCH_OFF}')
    a('v_and_b32 v5, 15, v1')
    a('v_and_b32 v6, 7, v1')
    a('v_lshrrev_b32 v7, 1, v2')
    a('v_xor_b32 v6, v6, v7')
    a('v_lshlrev_b32 v5, 7, v5')
    a('v_and_b32 v7, 1, v2')
    a('v_lshl_add_u32 v5, v7, 3, v5')
    a(f's_add_u32 {s(sC)}, {s(sT2)}, {KFL}')
    a(f'v_add_u32 v5, {s(sC)}, v5')
    for n in range(4):
        a(f'v_xor_b32 v7, {2 * n}, v6')
        a(f'v_lshl_add_u32 {v(k2RA + n)}, v7, 4, v5')
    a('v_lshrrev_b32 v6, 3, v1')
    a('v_and_b32 v7, 7, v1')
    a(f'v_xor_b32 {v(k2T)}, v6, v7')
    a(f'v_lshlrev_b32 {v(k2T)}, 4, {v(k2T)}')
    a(f'v_lshl_add_u32 {v(k2T)}, v6, 7, {v(k2T)}')
    a(f'v_add_u32 {v(k2T)}, {s(sC)}, {v(k2T)}')
    a('v_lshlrev_b32 v7, 4, v7')
    a('v_lshl_add_u32 v7, v6, 11, v7')
    a(f'v_mov_b32 {v(vFv)}, 0')
    stamp(a, 17)
    a('s_waitcnt vmcnt(0)')
    a(f'buffer_store_dword {v(vNon)}, off, {s(S_WS, 4)}, {s(sT0)} sc1')
    stamp(a, 18)
    flag_check(a, 'K2x', vFv, vFa, sleep=0)
    stamp(a, 19)
    RX = 40
    for d in range(3):
        for q in range(2):
            a(f'buffer_load_dwordx4 {v(RX + d * 8 + q * 4, 4)}, {v(vL16)}, {s(S_WS, 4)}, {s(sT1)} offen offset:{q * 1024} sc1')
        if d < 2:
            a(f's_add_u32 {s(sT1)}, {s(sT1)}, 16384')
    a(f's_lshl_b32 {s(sT0)}, {s(sEoff)}, 11')
    a(f's_lshl_b32 {s(sT2)}, {s(s2Cb)}, 8')
    a(f's_add_u32 {s(sT0)}, {s(sT0)}, {s(sT2)}')
    a(f's_lshr_b32 {s(sT2)}, {s(s2Kq)}, 1')
    a(f's_lshl_b32 {s(sT2)}, {s(sT2)}, 7')
    a(f's_add_u32 {s(sT0)}, {s(sT0)}, {s(sT2)}')
    a(f's_add_u32 {s(sT2)}, {s(sT0)}, {8 * 2048}')
    UP = 64
    for d in range(3):
        a(f's_waitcnt vmcnt({4 - 2 * d})')
        for n in range(4):
            r = k2acc(n, 0)
            u = UP + (n & 1) * 4
            for h in range(2):
                src = RX + d * 8 + n * 2 + h
                a(f'v_lshlrev_b32 {v(u + 2 * h)}, 16, {v(src)}')
                a(f'v_and_b32 {v(u + 2 * h + 1)}, 0xffff0000, {v(src)}')
            for h in (0, 2):
                a(f'v_pk_add_f32 {v(r + h, 2)}, {v(r + h, 2)}, {v(u + h, 2)}')
    for n in range(4):
        r = k2acc(n, 0)
        for h in (0, 2):
            a(f'v_pk_mul_f32 {v(r + h, 2)}, {v(r + h, 2)}, {v(k2E, 2)} op_sel_hi:[1,0]')
        cvt4(a, 8 + n * 2, r)
        a(f'ds_write_b64 {v(k2RA + n)}, {v(8 + n * 2, 2)}')
    a('s_waitcnt lgkmcnt(0)')
    a(f'ds_read_b128 v[16:19], {v(k2T)}')
    a(f'ds_read_b128 v[20:23], {v(k2T)} offset:1024')
    a('s_waitcnt lgkmcnt(1)')
    a(f'buffer_store_dwordx4 v[16:19], v7, {s(S2_OUT, 4)}, {s(sT0)} offen')
    a('s_waitcnt lgkmcnt(0)')
    a(f'buffer_store_dwordx4 v[20:23], v7, {s(S2_OUT, 4)}, {s(sT2)} offen')
    if OPT['stamp']:
        a('s_waitcnt vmcnt(0)')
        stamp(a, 20)
        a(f's_lshl_b32 {s(sT0)}, s2, 3')
        a(f's_add_u32 {s(sT0)}, {s(sT0)}, {s(sWave)}')
        a(f's_lshl_b32 {s(sT0)}, {s(sT0)}, 8')
        a(f's_add_u32 {s(sT0)}, {s(sT0)}, {STAMP_OFF}')
        a('v_lshlrev_b32 v0, 2, v1')
        a(f'buffer_store_dword v{vSt}, v0, {s(S_WS, 4)}, {s(sT0)} offen')
    a.label('K_end')
    a('s_endpgm')
    a.label('K_code_end')


HEADER = open('cdna_kernels/%s.s.ref' % NAME).read().split('; Override launch')[0]


def build():
    out = HEADER
    out += '; @launch grid=(256,1,1) block=(512,1,1) lds=163840\n'
    out += '.amdgcn_target "amdgcn-amd-amdhsa--gfx950"\n.text\n'
    a = Asm()
    gen(a)
    out += f'.globl {KN}\n.p2align 8\n.type {KN},@function\n'
    out += f'.set CODE_LAST, K_code_end - {KN} - 64\n'
    out += a.finalize()
    out += f'''.section .rodata,"a"
.p2align 6
.amdhsa_kernel {KN}
  .amdhsa_next_free_vgpr 256
  .amdhsa_next_free_sgpr 102
  .amdhsa_accum_offset 256
  .amdhsa_group_segment_fixed_size 0
  .amdhsa_kernarg_size 88
  .amdhsa_user_sgpr_count 2
  .amdhsa_user_sgpr_kernarg_segment_ptr 1
  .amdhsa_system_sgpr_workgroup_id_x 1
.end_amdhsa_kernel
'''
    return out


if __name__ == '__main__':
    path = sys.argv[1] if len(sys.argv) > 1 else f'cdna_kernels/{NAME}.s'
    for kv in sys.argv[2:]:
        k, val = kv.split('=', 1)
        if val in ('True', 'False'):
            val = val == 'True'
        elif val.lstrip('-').isdigit():
            val = int(val)
        elif ',' in val:
            val = tuple(int(x) for x in val.split(','))
        if k.startswith('nt'):
            val = ' ' + val.replace('_', ' ')
        OPT[k] = val
    open(path, 'w').write(build())
```

```python
import sys
from asmlib import Asm, v, s

NAME = 'gated_mix__linear_attn_block__dense_activation_mish__prompt'
KN = NAME + '_kernel'

A2_OFF = 0
E_OFF = 0x1300000
FLG_OFF = 0x1310000
F_KV = FLG_OFF
F_WG = FLG_OFF + 0x2000
F_X = 0x2500000
F_W = FLG_OFF + 0xA000
EP_OFF = FLG_OFF + 0xF000
KVP_OFF = 0x1400000
XCH_OFF = 0x1800000
STAMP_OFF = 0x3000000
WS_SIZE = 268435456
LOG2E = 0x3fb8aa3b
SPIN_MAX = 100000

OPT = dict(stamp=False, dma_every=3, b2pf=True, codepf=True, b2u=1, b2all=0, pfx=None, nto='', xp1='', g1mid=False, eprio=2, yprio=False, yprio2=False, nopk=False, ntw='', ntx='', ntb='', ntp='', probar=False, xp_same=False, u1=(0,0,0,1,1,2,2,2), p2pos=(3,7,10,13), xp2='', asc=' sc1', fastmish=True, p2rd=2, b0=2)

S_X, S_W, S_WS, S_DBG, S_B1, S_B1Z, S_G, S_PF = 28, 32, 36, 40, 44, 48, 52, 88
S2_B, S2_OUT, S2_AL = 44, 48, 52
sI, sT, sTyp, sWave, sW3, sGrp = 56, 57, 58, 59, 60, 61
sP0, sP1, sS, sZ2 = 62, 63, 64, 65
sWstr, sWoff, sWstep = 66, 67, 68
sXK, sXD, sXR, sCnt = 69, 70, 71, 72
sT0, sT1, sT2, sT3 = 73, 74, 75, 76
sM0W, sM0X = 77, 78
sC, sL2E = 79, 80
sH, sNon = 82, 83
sPFo = 84
sPFu, sPFu1, sPFnr = 3, 10, 11
sPF2b, sPF2nr, sPF2o = 14, 4, 5
sC60, sEps, sEoff = 85, 86, 87
sA2 = 92
s2Cb, s2Kq = 94, 95
s2Aoff, s2Boff, sGoff, sKVo, sFW = 96, 97, 98, 99, 100
sM2, sRole = 101, 93
s2Asw = 81
s2Aa, s2Ba = 18, 19
vOF = 111
vOFa = 112
vSt = 4
WF, XF = 8, 64
vXA0c, vXA1c, vXA0, vXA1 = 96, 97, 98, 99
vWZ12, vWZ3 = 100, 102
vXV, vWV = 105, 107
vPF = 109
vNon = 110
vL16 = 113
vBV = 114
vT = 116
ACC = 128
vE = 240
RING = 18
NA = 4
k2A = 8
PQ = 40
CH = 56
SUM = 72
KF, NUM, OOUT = 56, 68, 116
k2RA = 80
k2AV = 104
k2E = 106
vFa, vFv, vKa, vF3 = 120, 121, 122, 123
k2T = 124
k2ACC = 128
k2BF = 192
S2_WO = 88
S2_KV = 28


class VM:
    def __init__(self):
        self.ops = []

    def issue(self, tag):
        self.ops.append(tag)

    def count(self, tag):
        idx = max(i for i, t in enumerate(self.ops) if t == tag)
        return min(63, len(self.ops) - 1 - idx)


def stamp(a, idx):
    if not OPT['stamp']:
        return
    a('s_memtime s[26:27]')
    a('s_waitcnt lgkmcnt(0)')
    a(f'v_writelane_b32 v{vSt}, s26, {idx}')
    a('s_memrealtime s[26:27]')
    a('s_waitcnt lgkmcnt(0)')
    a(f'v_writelane_b32 v{vSt}, s26, {idx + 32}')


def srd(a, base, ptr, nbytes):
    a(f's_mov_b32 {s(base)}, {s(ptr)}')
    a(f's_and_b32 {s(base+1)}, {s(ptr+1)}, 0xffff')
    a(f's_mov_b32 {s(base+2)}, {nbytes}')
    a(f's_mov_b32 {s(base+3)}, 0x00020000')


def acc(n, m):
    return ACC + (n * 4 + m) * 4


def wf(buf, n):
    return WF + buf * 28 + n * 4


def xf(buf, m):
    return XF + buf * 16 + m * 4


def k1_reads(grp, buf, wslot, kk):
    nt = 7 if grp == 0 else 6
    xa = vXA0 if kk == 0 else vXA1
    xs = [f'ds_read_b128 {v(xf(buf, m), 4)}, {v(xa)} offset:{m * 2048}' for m in range(4)]
    ws = []
    for n in range(nt):
        if n < 4:
            addr = vWZ12 + (n & 1)
            off = wslot * 16384 + (4096 if n >= 2 else 0)
            d2 = 512
        else:
            addr = vWZ3 + (n - 4)
            off = wslot * 16384
            d2 = 1024
        ws.append(f'ds_read_b64_tr_b16 {v(wf(buf, n), 2)}, {v(addr)} offset:{off}')
        ws.append(f'ds_read_b64_tr_b16 {v(wf(buf, n) + 2, 2)}, {v(addr)} offset:{off + d2}')
    if 'w' in OPT['xp1']:
        ws = ws[:len(ws) // 2]
    if 'W' in OPT['xp1']:
        ws = ws[:2]
    if 'X' in OPT['xp1']:
        xs = xs[:1]
    return ws[:2] + xs + ws[2:]


def k1_dma_w(slot):
    out = [f's_add_u32 m0, {s(sM0W)}, {slot * 16384}']
    for j in range(2):
        out.append(f'buffer_load_dwordx4 {v(vWV + j)}, {s(S_W, 4)}, {s(sWoff)} offen offset:{j * 1024}{OPT["ntw"]} lds')
    out.append(f's_add_u32 {s(sWoff)}, {s(sWoff)}, {s(sWstep)}')
    return out


def k1_dma_x(par):
    out = []
    if par == 0:
        out.append(f's_add_u32 {s(sXK)}, {s(sXK)}, 128')
        out.append(f's_add_u32 {s(sXD)}, {s(sXD)}, 32768')
        out.append(f's_cmp_eq_u32 {s(sXD)}, 98304')
        out.append(f's_cselect_b32 {s(sXD)}, 0, {s(sXD)}')
        out.append(f's_add_u32 m0, {s(sXD)}, {s(sM0X)}')
        so = sXK
    else:
        out.append(f's_add_u32 {s(sT0)}, {s(sXK)}, 262144')
        out.append(f's_add_u32 {s(sT1)}, {s(sXD)}, {s(sM0X)}')
        out.append(f's_add_u32 m0, {s(sT1)}, 16384')
        so = sT0
    for j in range(2):
        out.append(f'buffer_load_dwordx4 {v(vXV + j)}, {s(S_X, 4)}, {s(so)} offen offset:{j * 1024}{OPT["ntx"]} lds')
    return out


def k1_adv_xread():
    return [f's_add_u32 {s(sXR)}, {s(sXR)}, 32768',
            f's_cmp_eq_u32 {s(sXR)}, 98304',
            f's_cselect_b32 {s(sXR)}, 0, {s(sXR)}',
            f'v_add_u32 {v(vXA0)}, {s(sXR)}, {v(vXA0c)}',
            f'v_add_u32 {v(vXA1)}, {s(sXR)}, {v(vXA1c)}']


def k1_mfmas(grp, typ, buf):
    nt = 7 if grp == 0 else 6
    out = []
    for n in range(nt):
        for m in range(4):
            d = v(acc(n, m), 4)
            W = v(wf(buf, n), 4)
            X = v(xf(buf, m), 4)
            if typ == 0 and n < 4:
                out.append(f'v_mfma_f32_16x16x32_bf16 {d}, {X}, {W}, {d}')
            else:
                out.append(f'v_mfma_f32_16x16x32_bf16 {d}, {W}, {X}, {d}')
    return out


def group_dma(lst):
    units = []
    cur = []
    for x in lst:
        cur.append(x)
        if x.startswith('buffer_'):
            units.append(cur)
            cur = []
    if cur:
        units[-1] = units[-1] + cur
    return units


_tn = [0]


def b2_touch():
    _tn[0] += 1
    L = f'PFs{_tn[0]}'
    return [[f's_sub_u32 {s(sPFu1)}, {s(sPFu1)}, 1',
             f's_cbranch_scc0 {L}',
             f'buffer_load_dword v3, {v(vPF)}, {s(S_PF, 4)}, {s(sPFo)} offen{OPT["ntp"]}',
             f's_mov_b32 {s(sPFu1)}, {s(sPFu)}',
             f's_add_u32 {s(sPFo)}, {s(sPFo)}, 8192',
             f's_mov_b32 {s(sPFu)}, 1000',
             f'{L}:']]


def pf_setup(a):
    srd(a, S_PF, 16, 3584 * 2048)
    a(f's_mov_b32 {s(sT0)}, {896 * 128}')
    a(f'v_mul_lo_u32 {v(vPF)}, v1, {s(sT0)}')
    a(f's_lshl_b32 {s(sT2)}, {s(sWave)}, 8')
    a(f's_add_u32 {s(sT2)}, {s(sT2)}, s2')
    a(f's_lshl_b32 {s(sPFo)}, {s(sT2)}, 7')
    a(f's_lshr_b32 {s(sT0)}, s2, 3')
    a(f's_mul_i32 {s(sT0)}, {s(sT0)}, 5')
    a(f's_mul_i32 {s(sT1)}, {s(sWave)}, 9')
    a(f's_add_u32 {s(sT0)}, {s(sT0)}, {s(sT1)}')
    a(f's_and_b32 {s(sT1)}, s2, 7')
    a(f's_mul_i32 {s(sT1)}, {s(sT1)}, 3')
    a(f's_add_u32 {s(sT0)}, {s(sT0)}, {s(sT1)}')
    a(f's_mul_i32 {s(sT1)}, {s(sT0)}, 2979')
    a(f's_lshr_b32 {s(sT1)}, {s(sT1)}, 16')
    a(f's_mul_i32 {s(sT1)}, {s(sT1)}, 22')
    a(f's_sub_u32 {s(sPFnr)}, {s(sT0)}, {s(sT1)}')
    a(f's_cmp_lt_u32 {s(sT2)}, 896')
    a(f's_cselect_b32 {s(sPFu1)}, {s(sPFnr)}, 1000')
    a(f's_cmp_lg_u32 {s(sWave)}, 4')
    a('s_cbranch_scc1 PF_done')
    srd(a, S_PF, 8, 1024 * 2048)
    a(f's_mov_b32 {s(sPFu1)}, {s(sPFnr)}')
    a(f's_mov_b32 {s(sPFo)}, 0')
    a('v_mul_u32_u24 v5, 5, v1')
    a('v_add_u32 v5, s2, v5')
    a('v_and_b32 v5, 255, v5')
    a('v_lshl_add_u32 v5, v1, 8, v5')
    a(f'v_lshlrev_b32 {v(vPF)}, 7, v5')
    a.label('PF_done')
    a(f's_mov_b32 {s(sPFu)}, 1000')
    if OPT['pfx']:
        lo, span = OPT['pfx']
        a(f'v_lshlrev_b32 {v(vPF)}, 7, v1')
        srd(a, S_PF, 16, 3584 * 2048)
        a(f's_lshr_b32 {s(sT0)}, s2, 3')
        a(f's_mul_i32 {s(sT1)}, {s(sT0)}, 7')
        a(f's_mul_i32 {s(sT2)}, {s(s2Kq)}, 224')
        a(f's_add_u32 {s(sT1)}, {s(sT1)}, {s(sT2)}')
        a(f's_add_u32 {s(sT1)}, {s(sT1)}, {s(sWave)}')
        a(f's_lshl_b32 {s(sPFo)}, {s(sT1)}, 13')
        a(f's_mul_i32 {s(sT1)}, {s(sWave)}, 3')
        a(f's_add_u32 {s(sT1)}, {s(sT1)}, {s(sT0)}')
        a(f's_and_b32 {s(sT1)}, {s(sT1)}, {span - 1}')
        a(f's_add_u32 {s(sPFu1)}, {s(sT1)}, {lo}')
        a(f's_cmp_lg_u32 {s(sWave)}, 7')
        a('s_cbranch_scc1 PF_done2')
        srd(a, S_PF, 8, 1024 * 2048)
        a(f's_lshl_b32 {s(sT1)}, {s(sT0)}, 1')
        a(f's_lshl_b32 {s(sT2)}, {s(s2Kq)}, 6')
        a(f's_add_u32 {s(sT1)}, {s(sT1)}, {s(sT2)}')
        a(f's_lshl_b32 {s(sPFo)}, {s(sT1)}, 13')
        a(f's_lshr_b32 {s(sPFu1)}, {s(sPFu1)}, 1')
        a(f's_mov_b32 {s(sPFu)}, 3')
        a.label('PF_done2')
    if OPT['b2all']:
        a(f's_mov_b32 {s(sPFu1)}, {OPT["b2all"]}')


def k1_substep(a, grp, typ, b, dma=True, reads=True, last=False, extra=None, fill=None, vm=None):
    cur, nxt = b & 1, (b + 1) & 1
    mf = k1_mfmas(grp, typ, cur)
    pre = []
    rd = []
    if reads:
        if b & 1:
            pre += k1_adv_xread()
        rd = k1_reads(grp, nxt, (b + 1) % 4, (b + 1) & 1)
    units = []
    if dma:
        units = group_dma(k1_dma_w(b) + k1_dma_x(0 if (b & 1) else 1))
        if 'D' in OPT['xp1']:
            units = [[y for y in u if not y.startswith('buffer')] for u in units]
    if extra:
        units = units + extra
    fill = list(fill or [])
    for x in pre:
        a(x)
    ri = ui = 0
    ev = OPT['dma_every']
    ph = 0 if grp == 0 else 1
    for k, mm in enumerate(mf):
        a(mm)
        if ri < len(rd):
            a(rd[ri])
            ri += 1
        if ui < len(units) and k % ev == ph:
            for x in units[ui]:
                a(x)
            ui += 1
        for _ in range(2):
            if fill:
                a(fill.pop(0))
    assert ri == len(rd) and ui == len(units), (ri, ui, len(units))
    for x in fill:
        a(x)
    if last:
        return
    a(f's_waitcnt vmcnt({vm}) lgkmcnt(0)')
    a('s_barrier')


def mish4(a, r, t):
    T, N2, W = t, t + 4, t + 8
    if OPT['fastmish'] and OPT['nopk']:
        for i in range(4):
            a(f'v_mul_f32 {v(T + i)}, {s(sL2E)}, {v(r + i)}')
        for i in range(4):
            a(f'v_exp_f32 {v(T + i)}, {v(T + i)}')
        for i in range(4):
            a(f'v_fma_f32 {v(N2 + i)}, {v(T + i)}, -0.5, -1.0')
        for i in range(4):
            a(f'v_fma_f32 {v(N2 + i)}, {v(T + i)}, {v(N2 + i)}, -1.0')
        for i in range(4):
            a(f'v_rcp_f32 {v(N2 + i)}, {v(N2 + i)}')
        for i in range(4):
            a(f'v_fmac_f32 {v(r + i)}, {v(r + i)}, {v(N2 + i)}')
        return
    if OPT['fastmish']:
        for h in (0, 2):
            a(f'v_pk_mul_f32 {v(T + h, 2)}, {v(r + h, 2)}, {s(sL2E, 2)} op_sel_hi:[1,0]')
        for i in range(4):
            a(f'v_exp_f32 {v(T + i)}, {v(T + i)}')
        for h in (0, 2):
            a(f'v_pk_fma_f32 {v(N2 + h, 2)}, {v(T + h, 2)}, -0.5, -1.0 op_sel_hi:[1,0,0]')
        for h in (0, 2):
            a(f'v_pk_fma_f32 {v(N2 + h, 2)}, {v(T + h, 2)}, {v(N2 + h, 2)}, -1.0 op_sel_hi:[1,1,0]')
        for i in range(4):
            a(f'v_rcp_f32 {v(N2 + i)}, {v(N2 + i)}')
        for h in (0, 2):
            a(f'v_pk_fma_f32 {v(r + h, 2)}, {v(r + h, 2)}, {v(N2 + h, 2)}, {v(r + h, 2)}')
        return
    for h in (0, 2):
        a(f'v_pk_mul_f32 {v(T + h, 2)}, {v(r + h, 2)}, {s(sL2E, 2)} op_sel_hi:[1,0]')
    for i in range(4):
        a(f'v_min_f32 {v(T + i)}, {s(sC60)}, {v(T + i)}')
    for i in range(4):
        a(f'v_exp_f32 {v(T + i)}, {v(T + i)}')
    for h in (0, 2):
        a(f'v_pk_add_f32 {v(N2 + h, 2)}, {v(T + h, 2)}, 2.0 op_sel_hi:[1,0]')
    for h in (0, 2):
        a(f'v_pk_mul_f32 {v(W + h, 2)}, {v(T + h, 2)}, {v(N2 + h, 2)}')
    for h in (0, 2):
        a(f'v_pk_fma_f32 {v(N2 + h, 2)}, {v(T + h, 2)}, {v(N2 + h, 2)}, 2.0 op_sel_hi:[1,1,0]')
    for i in range(4):
        a(f'v_rcp_f32 {v(N2 + i)}, {v(N2 + i)}')
    for h in (0, 2):
        a(f'v_pk_mul_f32 {v(W + h, 2)}, {v(W + h, 2)}, {v(N2 + h, 2)}')
    for h in (0, 2):
        a(f'v_pk_mul_f32 {v(r + h, 2)}, {v(r + h, 2)}, {v(W + h, 2)}')


def phi4(a, r, t):
    if OPT['nopk']:
        for i in range(4):
            a(f'v_mul_f32 {v(t + i)}, {s(sL2E)}, {v(r + i)}')
        for i in range(4):
            a(f'v_min_f32 {v(t + i)}, 0, {v(t + i)}')
        for i in range(4):
            a(f'v_exp_f32 {v(t + i)}, {v(t + i)}')
        for i in range(4):
            a(f'v_max_f32 {v(r + i)}, 0, {v(r + i)}')
        for i in range(4):
            a(f'v_add_f32 {v(r + i)}, {s(sEps)}, {v(r + i)}')
        for i in range(4):
            a(f'v_add_f32 {v(r + i)}, {v(r + i)}, {v(t + i)}')
        return
    for h in (0, 2):
        a(f'v_pk_mul_f32 {v(t + h, 2)}, {v(r + h, 2)}, {s(sL2E, 2)} op_sel_hi:[1,0]')
    for i in range(4):
        a(f'v_min_f32 {v(t + i)}, 0, {v(t + i)}')
    for i in range(4):
        a(f'v_exp_f32 {v(t + i)}, {v(t + i)}')
    for i in range(4):
        a(f'v_max_f32 {v(r + i)}, 0, {v(r + i)}')
    for h in (0, 2):
        a(f'v_pk_add_f32 {v(r + h, 2)}, {v(r + h, 2)}, {v(t + h, 2)}')
    for i in range(4):
        a(f'v_add_f32 {v(r + i)}, {s(sEps)}, {v(r + i)}')


def cvt4(a, o, r):
    a(f'v_cvt_pk_bf16_f32 {v(o)}, {v(r)}, {v(r + 1)}')
    a(f'v_cvt_pk_bf16_f32 {v(o + 1)}, {v(r + 2)}, {v(r + 3)}')


def k1_store_pair(a, n0, s_tau, plus, outregs, hook=None):
    a(f's_add_u32 {s(sT2)}, {s(s_tau)}, {plus}')
    a(f's_lshr_b32 {s(sT2)}, {s(sT2)}, 1')
    a(f's_lshl_b32 {s(sT2)}, {s(sT2)}, 10')
    a(f's_add_u32 {s(sT2)}, {s(sT2)}, {s(sA2)}')
    for m in range(4):
        o = outregs + (m & 1) * 4
        mish4(a, acc(n0, m), vE)
        mish4(a, acc(n0 + 1, m), vT)
        cvt4(a, o, acc(n0, m))
        cvt4(a, o + 2, acc(n0 + 1, m))
        a(f'buffer_store_dwordx4 {v(o, 4)}, {v(vL16)}, {s(S_WS, 4)}, {s(sT2)} offen sc1')
        if m < 3:
            a(f's_add_u32 {s(sT2)}, {s(sT2)}, {144 * 1024}')
        if hook and m == 1:
            hook()
    return 4


def k1_store_single(a, n0, outregs):
    a(f's_lshr_b32 {s(sT2)}, {s(sS)}, 1')
    a(f's_lshl_b32 {s(sT2)}, {s(sT2)}, 10')
    a(f's_add_u32 {s(sT2)}, {s(sT2)}, {s(sA2)}')
    a(f's_and_b32 {s(sT3)}, {s(sS)}, 1')
    a(f's_mul_i32 {s(sT3)}, {s(sT3)}, {144 * 1024}')
    a(f's_add_u32 {s(sT2)}, {s(sT2)}, {s(sT3)}')
    for mp in range(2):
        o = outregs + mp * 4
        mish4(a, acc(n0, 2 * mp), vE)
        mish4(a, acc(n0, 2 * mp + 1), vT)
        cvt4(a, o, acc(n0, 2 * mp))
        cvt4(a, o + 2, acc(n0, 2 * mp + 1))
        a(f'buffer_store_dwordx4 {v(o, 4)}, {v(vL16)}, {s(S_WS, 4)}, {s(sT2)} offen sc1')
        if mp == 0:
            a(f's_add_u32 {s(sT2)}, {s(sT2)}, {2 * 144 * 1024}')
    return 2


def get_nonce(a, L):
    a(f's_mov_b32 {s(sC)}, 0')
    a.label(f'{L}_nchk')
    a(f'v_readfirstlane_b32 {s(sNon)}, {v(vNon)}')
    a(f's_cmp_lg_u32 {s(sNon)}, 0')
    a(f's_cbranch_scc1 {L}_nok')
    a('s_sleep 8')
    a(f'buffer_load_dword {v(vNon)}, off, {s(S_DBG, 4)}, 0 sc1')
    a(f's_add_u32 {s(sC)}, {s(sC)}, 1')
    a('s_waitcnt vmcnt(0)')
    a(f's_cmp_lt_u32 {s(sC)}, {SPIN_MAX}')
    a(f's_cbranch_scc1 {L}_nchk')
    a.label(f'{L}_nok')


def poll_line(a, L, soff, nlanes, vtmp, sleep=4):
    a(f'v_and_b32 {v(vtmp + 1)}, {nlanes - 1}, v1')
    a(f'v_lshlrev_b32 {v(vtmp + 1)}, 2, {v(vtmp + 1)}')
    a(f's_mov_b32 {s(sC)}, 0')
    a.label(f'{L}_poll')
    a(f'buffer_load_dword {v(vtmp)}, {v(vtmp + 1)}, {s(S_WS, 4)}, {s(soff)} offen sc1')
    a(f's_add_u32 {s(sC)}, {s(sC)}, 1')
    a('s_waitcnt vmcnt(0)')
    a(f'v_cmp_ne_u32 vcc, {s(sNon)}, {v(vtmp)}')
    a('s_nop 4')
    a(f's_cbranch_vccz {L}_polled')
    a(f's_sleep {sleep}')
    a(f's_cmp_lt_u32 {s(sC)}, {SPIN_MAX}')
    a(f's_cbranch_scc1 {L}_poll')
    a.label(f'{L}_polled')


KVL = 114688
KFL = 147456


def k1_epilogue_A(a, grp, L):
    PK, VV, ONES, KV = 8, 24, 40, 44
    a('s_nop 7')
    for n in range(2):
        for m in range(4):
            phi4(a, acc(n, m), vE + (m & 1) * 4)
    for i in range(4):
        a(f'v_mov_b32 {v(ONES + i)}, 0x3f803f80')
    for src, dst in ((2, VV), (0, PK)):
        for n in range(2):
            for c in range(2):
                d = dst + (n * 2 + c) * 4
                for hh in range(2):
                    cvt4(a, d + 2 * hh, acc(src + n, 2 * c + hh))
    for c in range(2):
        for b in range(3):
            for aa in range(2):
                d = v(KV + (b * 2 + aa) * 4, 4)
                B = v(VV + (b * 2 + c) * 4, 4) if b < 2 else v(ONES, 4)
                a(f'v_mfma_f32_16x16x32_bf16 {d}, {v(PK + (aa * 2 + c) * 4, 4)}, {B}, {d if c else "0"}')
    a(f's_mul_i32 {s(sT0)}, {s(sWave)}, 6144')
    a(f's_add_u32 {s(sT0)}, {s(sT0)}, {KVL}')
    a(f'v_add_u32 {v(vT)}, {s(sT0)}, {v(vL16)}')
    for q in range(6):
        a(f'ds_write_b128 {v(vT)}, {v(KV + q * 4, 4)} offset:{q * 1024}')
    a('s_waitcnt lgkmcnt(0)')
    a('s_barrier')
    stamp(a, 7)
    a(f's_cmp_lg_u32 {s(sW3)}, 0')
    a(f's_cbranch_scc1 {L}_nosum')
    bases = (68, 8, 128)
    for w in range(3):
        for q in range(6):
            a(f'ds_read_b128 {v(bases[w] + q * 4, 4)}, {v(vT)} offset:{(w + 1) * 6144 + q * 1024}')
    a(f's_lshl_b32 {s(sT0)}, {s(sH)}, 3')
    a(f's_add_u32 {s(sT0)}, {s(sT0)}, {s(sI)}')
    a(f's_mul_i32 {s(sT1)}, {s(sT0)}, 6144')
    a(f's_add_u32 {s(sT1)}, {s(sT1)}, {KVP_OFF}')
    a(f's_add_u32 {s(sT3)}, {s(sT1)}, 4096')
    for w in range(3):
        a(f's_waitcnt lgkmcnt({12 - 6 * w})')
        for q in range(12):
            a(f'v_pk_add_f32 {v(KV + q * 2, 2)}, {v(KV + q * 2, 2)}, {v(bases[w] + q * 2, 2)}')
    for q in range(6):
        so, off = (sT1, q * 1024) if q < 4 else (sT3, (q - 4) * 1024)
        a(f'buffer_store_dwordx4 {v(KV + q * 4, 4)}, {v(vL16)}, {s(S_WS, 4)}, {s(so)} offen offset:{off} sc1')
    a(f's_lshl_b32 {s(sT0)}, {s(sT)}, 7')
    a(f's_lshl_b32 {s(sT1)}, {s(sI)}, 2')
    a(f's_add_u32 {s(sT0)}, {s(sT0)}, {s(sT1)}')
    a(f's_add_u32 {s(sT0)}, {s(sT0)}, {F_KV + grp * 32}')
    a('s_waitcnt vmcnt(0)')
    get_nonce(a, L + 'a')
    a(f'buffer_store_dword {v(vNon)}, off, {s(S_WS, 4)}, {s(sT0)} sc1')
    stamp(a, 8)
    a.label(f'{L}_nosum')
    if grp == 0:
        k1_store_pair(a, 4, sP0, 0, 72)
        k1_store_single(a, 6, 72)
    else:
        k1_store_pair(a, 4, sP1, 0, 72)


def k1_epilogue_B(a, grp, L):
    OUT = 72
    a('s_nop 7')
    k1_store_pair(a, 2, sZ2, 2 * grp, OUT)
    if grp == 0:
        k1_store_pair(a, 4, sP0, 0, OUT)
        k1_store_single(a, 6, OUT)
    else:
        k1_store_pair(a, 4, sP1, 0, OUT)
    stamp(a, 7)


def gate_code():
    GX, GW = vE, vE + 8
    o = ['v_mov_b32 v5, 0']
    for i in range(8):
        o.append(f'v_dot2_f32_bf16 v5, {v(GX + i)}, {v(GW + i)}, v5')
    o.append('s_nop 2')
    for sh in (1, 2, 4, 8):
        o.append(f'v_add_f32_dpp v5, v5, v5 row_shr:{sh} row_mask:0xf bank_mask:0xf bound_ctrl:0')
    o.append('v_add_f32_dpp v5, v5, v5 row_bcast:15 row_mask:0xa bank_mask:0xf')
    o.append('v_add_f32_dpp v5, v5, v5 row_bcast:31 row_mask:0xc bank_mask:0xf')
    o.append('v_mov_b32 v6, 0x42200000')
    o.append('v_med3_f32 v5, v5, -v6, v6')
    o.append(f'v_mul_f32 v5, {s(sL2E)}, v5')
    o.append('v_exp_f32 v5, v5')
    o.append(f'v_readlane_b32 {s(sT3)}, v5, 63')
    o.append(f'v_mov_b32 v5, {s(sT3)}')
    o.append(f'buffer_store_dword v5, off, {s(S_WS, 4)}, {s(sEoff)} sc1')
    return o


def k2acc(n, m):
    return k2ACC + (n * 2 + m) * 4


def k2_reads(buf, slot):
    out = []
    for n in range(8):
        addr = k2RA + (slot // 8) * 8 + n
        off = (slot % 8) * 8192
        d = k2BF + buf * 32 + n * 4
        out.append(f'ds_read_b64_tr_b16 {v(d, 2)}, {v(addr)} offset:{off}')
        out.append(f'ds_read_b64_tr_b16 {v(d + 2, 2)}, {v(addr)} offset:{off + 4096}')
    return out


def p2_order():
    o = []
    for lst in ((4, 5, 8, 9), (3, 6, 7, 10), (0, 1, 12, 13), (2, 11)):
        for u in range(2):
            o += [('b', 14 * u + g) for g in lst]
    o += [('a', h) for h in range(8)]
    return o


ORDER = p2_order()


def k2_dma_b(j):
    kind, idx = ORDER[j]
    slot = j % RING
    out = [f's_add_u32 m0, {s(sM2)}, {slot * 8192}']
    base, srdn = (s2Boff, S2_B) if kind == 'b' else (s2Ba, S2_WO)
    out.append(f's_add_u32 {s(sT0)}, {s(base)}, {idx * 65536}')
    out.append(f'buffer_load_dwordx4 {v(vBV)}, {s(srdn, 4)}, {s(sT0)} offen{OPT["ntb"]} lds')
    return out


def k2_load_a(j):
    kind, idx = ORDER[j]
    base = s2Aoff if kind == 'b' else s2Aa
    out = [f's_add_u32 {s(sT1)}, {s(base)}, {idx * 1024}']
    for m in range(2):
        out.append(f'buffer_load_dwordx4 {v(k2A + (j % NA) * 8 + m * 4, 4)}, {v(k2AV + m)}, {s(S_WS, 4)}, {s(sT1)} offen sc1')
    return out


def flag_check(a, L, vval, vaddr, sleep=4):
    a(f's_mov_b32 {s(sC)}, 0')
    a.label(f'{L}_c')
    a(f'v_cmp_ne_u32 vcc, {s(sNon)}, {v(vval)}')
    a('s_nop 4')
    a(f's_cbranch_vccz {L}_ok')
    if sleep:
        a(f's_sleep {sleep}')
    a(f'buffer_load_dword {v(vval)}, {v(vaddr)}, {s(S_WS, 4)}, 0 offen sc1')
    a(f's_add_u32 {s(sC)}, {s(sC)}, 1')
    a('s_waitcnt vmcnt(0)')
    a(f's_cmp_lt_u32 {s(sC)}, {SPIN_MAX}')
    a(f's_cbranch_scc1 {L}_c')
    a.label(f'{L}_ok')


def gen(a):
    a.label(KN)
    a('s_cmp_ge_u32 s2, 256')
    a('s_cbranch_scc1 K_end')
    a('s_load_dwordx16 s[4:19], s[0:1], 0')
    a('s_load_dwordx4 s[20:23], s[0:1], 64')
    a('s_load_dwordx2 s[24:25], s[0:1], 80')
    if OPT['codepf']:
        a('s_getpc_b64 s[26:27]')
        a('s_lshr_b32 s3, s2, 3')
        a('s_and_b32 s3, s3, 1')
        a('s_lshl_b32 s3, s3, 16')
        a('v_lshlrev_b32 v5, 7, v0')
        a('v_add_u32 v5, s3, v5')
        a('v_min_u32 v5, CODE_LAST, v5')
        a('global_load_dword v3, v5, s[26:27]')
    stamp(a, 0)
    a('v_and_b32 v1, 63, v0')
    a('v_lshrrev_b32 v2, 6, v0')
    a(f'v_readfirstlane_b32 {s(sWave)}, v2')
    a(f's_and_b32 {s(sT0)}, s2, 7')
    a(f's_lshr_b32 {s(sT1)}, s2, 3')
    a(f's_and_b32 {s(sI)}, {s(sT0)}, 1')
    a(f's_lshl_b32 {s(sI)}, {s(sI)}, 2')
    a(f's_and_b32 {s(sT2)}, {s(sT1)}, 3')
    a(f's_add_u32 {s(sI)}, {s(sI)}, {s(sT2)}')
    a(f's_lshr_b32 {s(sC)}, {s(sT0)}, 1')
    a(f's_lshl_b32 {s(sC)}, {s(sC)}, 3')
    a(f's_lshr_b32 {s(sT2)}, {s(sT1)}, 2')
    a(f's_add_u32 {s(sC)}, {s(sC)}, {s(sT2)}')
    a(f's_lshr_b32 {s(sT)}, {s(sC)}, 1')
    a(f's_and_b32 {s(sTyp)}, {s(sC)}, 1')
    a(f's_and_b32 {s(sW3)}, {s(sWave)}, 3')
    a(f's_lshr_b32 {s(sGrp)}, {s(sWave)}, 2')
    a(f's_cmp_eq_u32 {s(sTyp)}, 0')
    a(f's_mov_b32 {s(sT2)}, 0x286085C6')
    a(f's_cselect_b32 {s(sT2)}, 0x09CA0420, {s(sT2)}')
    a(f's_and_b32 {s(sT3)}, {s(sT)}, 1')
    a(f's_lshl_b32 {s(sT3)}, {s(sT3)}, 4')
    a(f's_lshr_b32 {s(sT2)}, {s(sT2)}, {s(sT3)}')
    a(f's_and_b32 {s(sP0)}, {s(sT2)}, 15')
    a(f's_bfe_u32 {s(sP1)}, {s(sT2)}, 0x40004')
    a(f's_bfe_u32 {s(sS)}, {s(sT2)}, 0x40008')
    a(f's_bfe_u32 {s(sZ2)}, {s(sT2)}, 0x4000c')
    a('v_lshrrev_b32 v2, 4, v1')
    a('v_lshrrev_b32 v6, 3, v1')
    a('v_and_b32 v7, 7, v1')
    a(f's_lshl_b32 {s(sT2)}, {s(sWave)}, 15')
    for j in range(2):
        a(f'v_xor_b32 v5, {4 * j}, v2')
        a('v_xor_b32 v5, v5, v7')
        a('v_lshlrev_b32 v5, 4, v5')
        a('v_lshl_add_u32 v5, v6, 11, v5')
        a(f's_add_u32 {s(sT3)}, {s(sT2)}, {j * (8 * 2048 - 1024)}')
        a(f'v_add_u32 {v(vXV + j)}, {s(sT3)}, v5')
    a(f's_lshl_b32 {s(sM0W)}, {s(sWave)}, 11')
    a(f's_add_u32 {s(sM0X)}, {s(sM0W)}, 65536')
    a(f's_lshl_b32 {s(sXK)}, {s(sI)}, 19')
    if OPT['xp_same']:
        a(f's_mov_b32 {s(sXK)}, 0')
    a(f's_sub_u32 {s(sXK)}, {s(sXK)}, 128')
    a(f's_mov_b32 {s(sXD)}, 65536')
    a(f's_mov_b32 {s(sWoff)}, 0')
    a(f's_mul_i32 {s(sA2)}, {s(sT)}, 448')
    if OPT['xp_same']:
        a(f's_and_b32 {s(sA2)}, {s(sT)}, 1')
        a(f's_mul_i32 {s(sA2)}, {s(sA2)}, 448')
    a(f's_cmp_ge_u32 {s(sWave)}, 4')
    a('s_cbranch_scc1 K1_setup_z3')
    a(f's_lshr_b32 {s(sT0)}, {s(sWave)}, 1')
    a(f's_lshl_b32 {s(sT2)}, {s(sT)}, 7')
    if OPT['xp_same']:
        a(f's_mov_b32 {s(sT2)}, 0')
    a(f's_add_u32 {s(sT3)}, {s(sT0)}, 1')
    a(f's_lshl_b32 {s(sT3)}, {s(sT3)}, 11')
    a(f's_cmp_eq_u32 {s(sTyp)}, 0')
    a(f's_cselect_b32 {s(sT3)}, {s(sT3)}, 0')
    a(f's_add_u32 {s(sT2)}, {s(sT2)}, {s(sT3)}')
    a(f's_lshl_b32 {s(sT3)}, {s(sZ2)}, 5')
    a(f's_add_u32 {s(sT3)}, {s(sT3)}, {s(sA2)}')
    a(f's_and_b32 {s(sT0)}, {s(sTyp)}, {s(sT0)}')
    a(f's_cselect_b32 {s(sT2)}, {s(sT3)}, {s(sT2)}')
    a(f's_movk_i32 {s(sWstr)}, 6144')
    a(f's_cselect_b32 {s(sWstr)}, 7168, {s(sWstr)}')
    a('v_lshrrev_b32 v5, 1, v7')
    a('v_and_b32 v7, 1, v2')
    a('v_xor_b32 v5, v5, v7')
    a('v_and_b32 v7, 1, v1')
    a(f'v_mul_lo_u32 v6, v6, {s(sWstr)}')
    a('v_lshl_add_u32 v6, v7, 4, v6')
    a(f's_and_b32 {s(sT3)}, {s(sWave)}, 1')
    a(f's_lshl_b32 {s(sT3)}, {s(sT3)}, 4')
    a(f's_mul_i32 {s(sT3)}, {s(sT3)}, {s(sWstr)}')
    a(f's_add_u32 {s(sT2)}, {s(sT2)}, {s(sT3)}')
    for j in range(2):
        a(f'v_xor_b32 v7, {2 * j}, v5')
        a(f'v_lshl_add_u32 v7, v7, 5, v6')
        if j:
            a(f's_lshl_b32 {s(sT3)}, {s(sWstr)}, 3')
            a(f's_add_u32 {s(sT2)}, {s(sT2)}, {s(sT3)}')
            a(f's_sub_u32 {s(sT2)}, {s(sT2)}, 1024')
        a(f'v_add_u32 {v(vWV + j)}, {s(sT2)}, v7')
    a('s_branch K1_setup_w_done')
    a.label('K1_setup_z3')
    a(f's_mov_b32 {s(sWstr)}, 7168')
    a(f's_mov_b32 {s(sT0)}, 1')
    a('v_bfe_u32 v5, v1, 1, 3')
    a('v_xor_b32 v5, v5, v2')
    a(f's_and_b32 {s(sT3)}, {s(sWave)}, 1')
    a(f's_lshl_b32 {s(sT3)}, {s(sT3)}, 2')
    a(f'v_xor_b32 v5, {s(sT3)}, v5')
    a('v_and_b32 v6, 1, v1')
    a('v_mul_u32_u24 v7, 7168, v2')
    a('v_lshl_add_u32 v7, v6, 4, v7')
    a(f's_mul_i32 {s(sT3)}, {s(sW3)}, {8 * 7168}')
    a(f's_add_u32 {s(sT2)}, {s(sA2)}, {s(sT3)}')
    a(f's_sub_u32 {s(sT3)}, {s(sP1)}, 2')
    a(f's_sub_u32 {s(sT1)}, {s(sS)}, 4')
    a(f'v_mov_b32 {v(vT + 1)}, {s(sP0)}')
    a(f'v_mov_b32 {v(vT + 2)}, {s(sT3)}')
    a('v_cmp_lt_u32 vcc, 1, v5')
    a(f'v_cndmask_b32 {v(vT + 1)}, {v(vT + 1)}, {v(vT + 2)}, vcc')
    a(f'v_mov_b32 {v(vT + 2)}, {s(sT1)}')
    a('v_cmp_lt_u32 vcc, 3, v5')
    a(f'v_cndmask_b32 {v(vT + 1)}, {v(vT + 1)}, {v(vT + 2)}, vcc')
    a(f'v_add_u32 {v(vT + 1)}, {v(vT + 1)}, v5')
    a(f'v_lshl_add_u32 {v(vT + 1)}, {v(vT + 1)}, 5, v7')
    a(f'v_add_u32 {v(vT + 1)}, {s(sT2)}, {v(vT + 1)}')
    a(f'v_mov_b32 {v(vT + 2)}, 0x40000000')
    a('v_cmp_lt_u32 vcc, 4, v5')
    a(f'v_cndmask_b32 {v(vWV)}, {v(vT + 1)}, {v(vT + 2)}, vcc')
    a(f'v_add_u32 {v(vWV + 1)}, {4 * 7168 - 1024}, {v(vWV)}')
    a.label('K1_setup_w_done')
    a(f's_lshl_b32 {s(sWstep)}, {s(sWstr)}, 5')
    a('v_lshlrev_b32 v5, 3, v2')
    a('s_waitcnt lgkmcnt(0)')
    srd(a, S_X, 4, 2048 * 1024 * 2)
    srd(a, S_W, 6, 1024 * 3072 * 2)
    a(f's_cmp_eq_u32 {s(sT0)}, 1')
    a(f's_cselect_b32 {s(S_W)}, s12, {s(S_W)}')
    a(f's_cselect_b32 {s(S_W + 1)}, s13, {s(S_W + 1)}')
    a(f's_cselect_b32 {s(S_W + 2)}, {1024 * 3584 * 2}, {s(S_W + 2)}')
    a(f's_and_b32 {s(S_W + 1)}, {s(S_W + 1)}, 0xffff')
    stamp(a, 11)
    for x in k1_dma_w(0) + k1_dma_x(0) + k1_dma_x(1):
        a(x)
    srd(a, S_B1, 14, 3584 * 2)
    srd(a, S_B1Z, 14, 3584 * 2)
    a(f's_cmp_eq_u32 {s(sTyp)}, 0')
    a(f's_cselect_b32 {s(S_B1Z + 2)}, 0, {s(S_B1Z + 2)}')
    BI = 36
    a(f's_lshl_b32 {s(sT3)}, {s(sGrp)}, 1')
    a(f's_add_u32 {s(sT3)}, {s(sT3)}, {s(sZ2)}')
    a(f's_lshl_b32 {s(sT3)}, {s(sT3)}, 5')
    a(f's_add_u32 {s(sT3)}, {s(sT3)}, {s(sA2)}')
    a(f'buffer_load_dwordx2 {v(BI, 2)}, v5, {s(S_B1Z, 4)}, {s(sT3)} offen')
    a(f'buffer_load_dwordx2 {v(BI + 2, 2)}, v5, {s(S_B1Z, 4)}, {s(sT3)} offen offset:32')
    a(f's_cmp_eq_u32 {s(sGrp)}, 0')
    a(f's_cselect_b32 {s(sT3)}, {s(sP0)}, {s(sP1)}')
    a(f's_lshl_b32 {s(sT3)}, {s(sT3)}, 5')
    a(f's_add_u32 {s(sT3)}, {s(sT3)}, {s(sA2)}')
    a(f'buffer_load_dwordx2 {v(BI + 4, 2)}, v5, {s(S_B1, 4)}, {s(sT3)} offen')
    a(f'buffer_load_dwordx2 {v(BI + 6, 2)}, v5, {s(S_B1, 4)}, {s(sT3)} offen offset:32')
    a(f's_lshl_b32 {s(sT3)}, {s(sS)}, 5')
    a(f's_add_u32 {s(sT3)}, {s(sT3)}, {s(sA2)}')
    a(f'buffer_load_dwordx2 {v(BI + 8, 2)}, v5, {s(S_B1, 4)}, {s(sT3)} offen')
    srd(a, S_WS, 24, WS_SIZE)
    srd(a, S_DBG, 22, 256)
    a(f's_mov_b32 {s(sT3)}, {EP_OFF}')
    a(f'buffer_load_dword {v(vNon)}, off, {s(S_WS, 4)}, {s(sT3)} sc1')
    if OPT['probar']:
        a('s_barrier')
    for x in k1_dma_w(1) + k1_dma_w(2) + k1_dma_x(0) + k1_dma_x(1):
        a(x)
    stamp(a, 12)
    srd(a, S_G, 18, 2048)
    a(f'v_lshlrev_b32 {v(vL16)}, 4, v1')
    a(f's_lshl_b32 {s(sRole)}, {s(sI)}, 5')
    a(f's_add_u32 {s(sRole)}, {s(sRole)}, {s(sC)}')
    a(f's_lshl_b32 {s(sFW)}, {s(sRole)}, 7')
    a(f's_add_u32 {s(sFW)}, {s(sFW)}, {F_WG}')
    a(f's_lshl_b32 {s(sT2)}, {s(sRole)}, 3')
    a(f's_add_u32 {s(sT2)}, {s(sT2)}, {s(sWave)}')
    a(f's_lshr_b32 {s(s2Kq)}, {s(sC)}, 3')
    a(f's_and_b32 {s(s2Cb)}, {s(sC)}, 7')
    a(f's_lshl_b32 {s(sEoff)}, {s(sT2)}, 2')
    a(f's_add_u32 {s(sEoff)}, {s(sEoff)}, {E_OFF}')
    a(f's_lshl_b32 {s(sGoff)}, {s(sT2)}, 11')
    a(f's_lshl_b32 {s(sH)}, {s(sT)}, 1')
    a(f's_add_u32 {s(sH)}, {s(sH)}, {s(sGrp)}')
    a(f's_mov_b32 {s(sL2E)}, {LOG2E}')
    a(f's_mov_b32 {s(sC60)}, 0x42700000')
    a(f's_mov_b32 {s(sEps)}, 0x358637bd')
    a(f's_lshl_b32 {s(sA2)}, {s(sI)}, 2')
    a(f's_add_u32 {s(sA2)}, {s(sA2)}, {s(sW3)}')
    a(f's_mul_i32 {s(sA2)}, {s(sA2)}, {4 * 144}')
    a(f's_mul_i32 {s(sT2)}, {s(sT)}, 7')
    a(f's_add_u32 {s(sA2)}, {s(sA2)}, {s(sT2)}')
    a(f's_add_u32 {s(sA2)}, {s(sA2)}, 32')
    a(f's_lshl_b32 {s(sA2)}, {s(sA2)}, 10')
    a(f'v_bfe_u32 {v(vT + 3)}, v1, 2, 2')
    a(f'v_and_b32 {v(vT + 4)}, 3, v1')
    a(f'v_lshl_add_u32 v5, v2, 3, {v(vT + 3)}')
    a(f'v_lshrrev_b32 v6, 1, {v(vT + 3)}')
    a('v_and_b32 v7, 1, v2')
    a('v_lshl_or_b32 v6, v7, 1, v6')
    a(f's_lshl_b32 {s(sT2)}, {s(sGrp)}, 1')
    for q in range(2):
        a(f's_add_u32 {s(sT3)}, {s(sT2)}, {q}')
        a(f'v_xor_b32 {v(vT)}, {s(sT3)}, v6')
        a(f'v_lshlrev_b32 {v(vT)}, 5, {v(vT)}')
        a(f'v_lshl_add_u32 {v(vT)}, v5, 7, {v(vT)}')
        a(f'v_lshl_add_u32 {v(vWZ12 + q)}, {v(vT + 4)}, 3, {v(vT)}')
    a(f'v_lshl_or_b32 v6, v7, 2, {v(vT + 3)}')
    for q in range(3):
        if q < 2:
            a(f's_add_u32 {s(sT3)}, {s(sT2)}, {q}')
        else:
            a(f's_mov_b32 {s(sT3)}, 4')
        a(f'v_xor_b32 {v(vT)}, {s(sT3)}, v6')
        a(f'v_lshlrev_b32 {v(vT)}, 5, {v(vT)}')
        a(f'v_lshl_add_u32 {v(vT)}, v5, 8, {v(vT)}')
        a(f'v_lshl_add_u32 {v(vT)}, {v(vT + 4)}, 3, {v(vT)}')
        a(f'v_add_u32 {v(vWZ3 + q)}, 8192, {v(vT)}')
    a('v_and_b32 v5, 15, v1')
    a('v_bfe_u32 v6, v1, 1, 3')
    a('v_xor_b32 v6, v6, v2')
    a(f's_lshl_b32 {s(sT3)}, {s(sW3)}, 13')
    a(f's_add_u32 {s(sT3)}, {s(sT3)}, 65536')
    a('v_lshlrev_b32 v5, 7, v5')
    a('v_lshl_add_u32 v5, v6, 4, v5')
    a(f'v_add_u32 {v(vXA0c)}, {s(sT3)}, v5')
    a(f'v_xor_b32 {v(vXA1c)}, 64, {v(vXA0c)}')
    a(f'v_mov_b32 {v(vXA0)}, {v(vXA0c)}')
    a(f'v_mov_b32 {v(vXA1)}, {v(vXA1c)}')
    a(f's_mov_b32 {s(sXR)}, 0')
    a('s_and_b32 s9, s9, 0xffff')
    pf_setup(a)
    a('v_and_b32 v5, 1, v1')
    a('v_lshlrev_b32 v5, 4, v5')
    a('v_lshl_add_u32 v5, v2, 11, v5')
    a(f's_lshl_b32 {s(sT3)}, {s(sWave)}, 13')
    a(f's_lshl_b32 {s(sT0)}, {s(s2Cb)}, 8')
    a(f's_add_u32 {s(sT3)}, {s(sT3)}, {s(sT0)}')
    a(f's_and_b32 {s(sT0)}, {s(sWave)}, 1')
    a(f's_lshl_b32 {s(sT0)}, {s(sT0)}, 2')
    a(f'v_xor_b32 v7, {s(sT0)}, v6')
    a('v_lshl_add_u32 v7, v7, 5, v5')
    a(f'v_add_u32 {v(vBV)}, {s(sT3)}, v7')
    a(f's_lshl_b32 {s(sM2)}, {s(sWave)}, 10')
    for n in range(2):
        for r in range(0, 16, 2):
            a(f'v_pk_mov_b32 {v(acc(n, 0) + r, 2)}, 0, 0')
    stamp(a, 1)
    a('s_waitcnt vmcnt(8)')
    for n in range(2, 7):
        b = BI + (n - 2) * 2
        r0 = acc(n, 0)
        a(f'v_lshlrev_b32 {v(r0)}, 16, {v(b)}')
        a(f'v_and_b32 {v(r0 + 1)}, 0xffff0000, {v(b)}')
        a(f'v_lshlrev_b32 {v(r0 + 2)}, 16, {v(b + 1)}')
        a(f'v_and_b32 {v(r0 + 3)}, 0xffff0000, {v(b + 1)}')
        for m in range(1, 4):
            for h in (0, 2):
                a(f'v_pk_mov_b32 {v(acc(n, m) + h, 2)}, {v(r0 + h, 2)}, {v(r0 + h, 2)} op_sel:[0,1]')
    a(f's_lshl_b32 {s(sT2)}, s2, 3')
    a(f's_add_u32 {s(sT2)}, {s(sT2)}, {s(sWave)}')
    a(f's_cmp_lg_u32 {s(sT2)}, 7')
    a('s_cbranch_scc1 K1_nopub')
    a(f'v_add_u32 {v(vNon)}, 1, {v(vNon)}')
    a(f'v_or_b32 {v(vNon)}, 0x80000000, {v(vNon)}')
    a(f's_mov_b32 {s(sT3)}, {EP_OFF}')
    a(f'buffer_store_dword {v(vNon)}, off, {s(S_DBG, 4)}, 0 sc1')
    a(f'buffer_store_dword {v(vNon)}, off, {s(S_WS, 4)}, {s(sT3)} sc1')
    a('s_waitcnt vmcnt(0)')
    a.label('K1_nopub')
    srd(a, S2_B, 16, 3584 * 1024 * 2)
    a(f's_mul_i32 {s(s2Boff)}, {s(s2Kq)}, {28 * 65536}')
    a(f's_mul_i32 {s(s2Ba)}, {s(s2Kq)}, {8 * 65536}')
    a(f's_lshl_b32 {s(sT2)}, {s(sTyp)}, 1')
    a(f's_add_u32 {s(sT2)}, {s(sT2)}, {s(sGrp)}')
    a(f's_cmp_eq_u32 {s(sT2)}, 1')
    a('s_cbranch_scc1 K1_v01')
    a(f's_cmp_eq_u32 {s(sT2)}, 2')
    a('s_cbranch_scc1 K1_v10')
    a(f's_cmp_eq_u32 {s(sT2)}, 3')
    a('s_cbranch_scc1 K1_v11')
    for typ in range(2):
        for grp in range(2):
            L = f'K1_v{typ}{grp}'
            a.label(L)
            if OPT['yprio'] and grp == 1:
                a('s_setprio 1')
            stamp(a, 2)
            a('s_barrier')
            stamp(a, 3)
            for x in k1_reads(grp, 0, 0, 0):
                a(x)
            a(f's_mov_b32 {s(sCnt)}, 1')
            a('s_waitcnt vmcnt(6) lgkmcnt(0)')
            a('s_barrier')
            stamp(a, 4)
            k1_substep(a, grp, typ, 0, dma=False, vm=8,
                       extra=group_dma(k1_dma_w(3) + k1_dma_x(0) + k1_dma_w(0) + k1_dma_x(1)))
            for b in range(1, 4):
                k1_substep(a, grp, typ, b, vm=8)
            a.label(L + '_loop')
            if OPT['stamp']:
                a('s_memtime s[26:27]')
                a(f's_add_u32 m0, {s(sCnt)}, 20')
                a('s_waitcnt lgkmcnt(0)')
                a(f'v_writelane_b32 v{vSt}, s26, m0')
            pf = OPT['b2pf']
            for b in range(4):
                k1_substep(a, grp, typ, b, extra=b2_touch() if pf else None, vm=8)
            a(f's_add_u32 {s(sCnt)}, {s(sCnt)}, 1')
            a(f's_cmp_lt_u32 {s(sCnt)}, 7')
            a(f's_cbranch_scc1 {L}_loop')
            stamp(a, 5)
            nl = [[f'buffer_load_dword {v(vNon)}, off, {s(S_DBG, 4)}, 0 sc1']]
            gl = [[f'buffer_load_dwordx4 {v(vE, 4)}, {v(vL16)}, {s(S_X, 4)}, {s(sGoff)} offen'],
                  [f'buffer_load_dwordx4 {v(vE + 4, 4)}, {v(vL16)}, {s(S_X, 4)}, {s(sGoff)} offen offset:1024'],
                  [f'buffer_load_dwordx4 {v(vE + 8, 4)}, {v(vL16)}, {s(S_G, 4)}, 0 offen'],
                  [f'buffer_load_dwordx4 {v(vE + 12, 4)}, {v(vL16)}, {s(S_G, 4)}, 0 offen offset:1024']]
            k1_substep(a, grp, typ, 0, dma=False, vm=9, extra=gl + nl)
            k1_substep(a, grp, typ, 1, dma=False, vm=0)
            k1_substep(a, grp, typ, 2, dma=False, vm=63, fill=gate_code())
            bd = []
            for j in range(14):
                bd += k2_dma_b(j)
            un = group_dma(bd)
            un = [un[2 * q] + un[2 * q + 1] for q in range(7)]
            k1_substep(a, grp, typ, 3, dma=False, reads=False, last=True, extra=un)
            stamp(a, 6)
            if OPT['eprio']:
                a(f's_setprio {OPT["eprio"]}')
            if typ == 0:
                k1_epilogue_A(a, grp, L)
            else:
                k1_epilogue_B(a, grp, L)
            a('s_branch P2_start')
    a.label('P2_start')
    if OPT['eprio']:
        a('s_setprio 0')
    stamp(a, 9)
    get_nonce(a, 'P2n')
    a(f's_and_b32 {s(sT0)}, {s(sRole)}, 0xf8')
    a(f's_lshl_b32 {s(sT0)}, {s(sT0)}, 7')
    a(f's_add_u32 {s(sT0)}, {s(sT0)}, {F_WG}')
    a('v_and_b32 v5, 3, v1')
    a('v_lshlrev_b32 v5, 8, v5')
    a(f'v_add_u32 {v(vF3)}, {s(sT0)}, v5')
    a(f'v_add_u32 {v(vFa)}, 128, {v(vF3)}')
    a(f'v_add_u32 {v(vOFa)}, 4, {v(vFa)}')
    a(f's_lshl_b32 {s(sT0)}, {s(sI)}, 12')
    a(f's_add_u32 {s(sT0)}, {s(sT0)}, {F_WG}')
    a('v_lshlrev_b32 v5, 7, v1')
    a(f'v_add_u32 v6, {s(sT0)}, v5')
    a('v_cmp_gt_u32 vcc, 32, v1')
    a(f'v_cndmask_b32 {v(vOFa)}, {v(vOFa)}, v6, vcc')
    a(f's_lshl_b32 {s(sT2)}, {s(sI)}, 4')
    a(f's_lshl_b32 {s(sT3)}, {s(sWave)}, 1')
    a(f's_add_u32 {s(sT2)}, {s(sT2)}, {s(sT3)}')
    a(f's_and_b32 {s(sT3)}, {s(s2Kq)}, 1')
    a(f's_add_u32 {s(sT3)}, {s(sT2)}, {s(sT3)}')
    a(f's_mul_i32 {s(sT0)}, {s(sT3)}, {144 * 1024}')
    a(f'v_add_u32 {v(k2AV)}, {s(sT0)}, {v(vL16)}')
    a(f's_xor_b32 {s(sT1)}, {s(sT3)}, 1')
    a(f's_mul_i32 {s(sT0)}, {s(sT1)}, {144 * 1024}')
    a(f'v_add_u32 {v(k2AV + 1)}, {s(sT0)}, {v(vL16)}')
    a('v_and_b32 v5, 15, v1')
    a('v_lshlrev_b32 v5, 2, v5')
    for m, sr in ((0, sT3), (1, sT1)):
        a(f's_lshl_b32 {s(sT0)}, {s(sr)}, 6')
        a(f's_add_u32 {s(sT0)}, {s(sT0)}, {E_OFF}')
        a(f'v_add_u32 {v(k2E + m)}, {s(sT0)}, v5')
    a(f's_lshl_b32 {s(sEoff)}, {s(sT3)}, 4')
    a(f's_mul_i32 {s(s2Aoff)}, {s(s2Kq)}, {28 * 1024}')
    a(f's_add_u32 {s(s2Aoff)}, {s(s2Aoff)}, {32 * 1024}')
    a(f's_lshl_b32 {s(s2Aa)}, {s(s2Kq)}, 13')
    a(f's_lshl_b32 {s(sT0)}, {s(sT)}, 7')
    a(f's_add_u32 {s(sT0)}, {s(sT0)}, {F_KV}')
    a(f'v_add_u32 {v(vKa)}, {s(sT0)}, v5')
    def noncrit(tag):
        a(f'v_bfe_u32 v3, v1, 2, 2')
        a(f'v_lshl_add_u32 v5, v2, 2, v3')
        a('v_and_b32 v6, 7, v5')
        a(f's_lshr_b32 {s(sT2)}, {s(s2Kq)}, 1')
        a(f's_lshl_b32 {s(sT2)}, {s(sT2)}, 2')
        a(f'v_xor_b32 v6, {s(sT2)}, v6')
        a('v_lshlrev_b32 v5, 8, v5')
        a('v_and_b32 v3, 3, v1')
        a('v_lshl_add_u32 v5, v3, 3, v5')
        for n in range(8):
            a(f'v_xor_b32 v7, {n}, v6')
            a(f'v_lshl_add_u32 {v(k2RA + n)}, v7, 5, v5')
            a(f'v_add_u32 {v(k2RA + 8 + n)}, 65536, {v(k2RA + n)}')
            a(f'v_add_u32 {v(k2RA + 16 + n)}, 131072, {v(k2RA + n)}')
        srd(a, S2_OUT, 20, 2048 * 1024 * 2)
        srd(a, S2_WO, 8, 1024 * 2048)
        srd(a, S2_KV, 24, WS_SIZE)
        a(f's_cmp_ge_u32 {s(sWave)}, 6')
        a(f's_cselect_b32 {s(S2_KV + 2)}, 0, {s(S2_KV + 2)}')
        a(f's_mul_i32 {s(sKVo)}, {s(sT)}, {2 * 49152}')
        a(f's_add_u32 {s(sKVo)}, {s(sKVo)}, {KVP_OFF}')
        a(f's_lshl_b32 {s(sT3)}, {s(sWave)}, 11')
        a(f's_add_u32 {s(sKVo)}, {s(sKVo)}, {s(sT3)}')
        a(f's_cmp_ge_u32 {s(sWave)}, 3')
        a(f's_cselect_b32 {s(sT3)}, {49152 - 6144}, 0')
        a(f's_add_u32 {s(sKVo)}, {s(sKVo)}, {s(sT3)}')
        a(f's_cmp_eq_u32 {s(sTyp)}, 0')
        a('s_cbranch_scc1 P2_noq' + tag)
        for n in range(2):
            for m in range(4):
                phi4(a, acc(n, m), CH + (m & 1) * 4)
        for m in range(4):
            for n in range(2):
                cvt4(a, PQ + m * 4 + 2 * n, acc(n, m))
        a.label('P2_noq' + tag)
        for r in range(0, 64, 2):
            a(f'v_pk_mov_b32 {v(k2ACC + r, 2)}, 0, 0')


    a(f's_cmp_eq_u32 {s(sGrp)}, 1')
    a('s_cbranch_scc1 P2_g1skip')
    noncrit('a')
    a.label('P2_g1skip')
    a('s_waitcnt vmcnt(0)')
    a('s_barrier')
    stamp(a, 10)
    a(f's_cmp_lg_u32 {s(sWave)}, 3')
    a('s_cbranch_scc1 P2_noflag')
    a(f'buffer_store_dword {v(vNon)}, off, {s(S_WS, 4)}, {s(sFW)} sc1')
    a(f's_cmp_eq_u32 {s(sTyp)}, 0')
    a('s_cbranch_scc1 P2_c1')
    a('v_cmp_gt_u32 vcc, 32, v1')
    a(f'v_cndmask_b32 {v(vFa)}, {v(vKa)}, {v(vFa)}, vcc')
    a.label('P2_c1')
    a(f'v_mov_b32 {v(vFv)}, 0')
    flag_check(a, 'P2c1', vFv, vFa, sleep=0)
    a.label('P2_noflag')
    a(f's_cmp_eq_u32 {s(sGrp)}, 0')
    a('s_cbranch_scc1 P2_g0skip')
    if OPT['g1mid']:
        noncrit('b')
    a.label('P2_g0skip')
    a('s_barrier')
    stamp(a, 13)
    vmc, vmb, vm7 = VM(), VM(), VM()

    def emit(lst, tag, only=None):
        for x in lst:
            a(x)
            if x.startswith('buffer_'):
                if only is None:
                    for t in (vmc, vmb, vm7):
                        t.issue(tag)
                else:
                    only.issue(tag)
    for j in range(3):
        emit(k2_load_a(j), f'A{j}')
    if not OPT['g1mid']:
        a(f's_cmp_eq_u32 {s(sGrp)}, 0')
        a('s_cbranch_scc1 P2_g0skip2')
        noncrit('b')
        a.label('P2_g0skip2')
    for x in k2_reads(0, 0):
        a(x)

    def bblock(j):
        L = f'P2b{j}'
        if j in (0, 2, 4, 6, 8):
            c = j // 2
            a(f's_cmp_eq_u32 {s(sTyp)}, 0')
            a(f's_cbranch_scc1 {L}')
            if c > 0:
                a(f's_waitcnt vmcnt({vmb.count(f"C{c - 1}")})')
                for q in range(4):
                    if c == 1:
                        a(f'v_pk_add_f32 {v(SUM + q * 2, 2)}, {v(CH + q * 2, 2)}, {v(CH + 8 + q * 2, 2)}')
                    else:
                        a(f'v_pk_add_f32 {v(SUM + q * 2, 2)}, {v(SUM + q * 2, 2)}, {v(CH + q * 2, 2)}')
                        a(f'v_pk_add_f32 {v(SUM + q * 2, 2)}, {v(SUM + q * 2, 2)}, {v(CH + 8 + q * 2, 2)}')
            if c < 4:
                for i in range(2):
                    a(f's_add_u32 {s(sT2)}, {s(sKVo)}, {(2 * c + i) * 6144}')
                    emit([f'buffer_load_dwordx4 {v(CH + (i * 2 + hh) * 4, 4)}, {v(vL16)}, {s(S2_KV, 4)}, {s(sT2)} offen offset:{hh * 1024} sc1'
                          for hh in range(2)], f'C{c}', vmb)
            else:
                for q in range(4):
                    a(f'v_cvt_pk_bf16_f32 {v(CH + q)}, {v(SUM + 2 * q)}, {v(SUM + 2 * q + 1)}')
                a(f's_lshl_b32 {s(sT3)}, {s(sWave)}, 10')
                a(f's_add_u32 {s(sT3)}, {s(sT3)}, {KFL}')
                a(f'v_add_u32 {v(k2T)}, {s(sT3)}, {v(vL16)}')
                a(f'ds_write_b128 {v(k2T)}, {v(CH, 4)}')
            a.label(L)
        if j == 12:
            a(f's_cmp_eq_u32 {s(sTyp)}, 0')
            a(f's_cbranch_scc1 {L}')
            a(f's_mul_i32 {s(sT3)}, {s(sGrp)}, 3072')
            a(f's_add_u32 {s(sT3)}, {s(sT3)}, {KFL}')
            a(f'v_add_u32 {v(k2T)}, {s(sT3)}, {v(vL16)}')
            for f in range(3):
                a(f'ds_read_b128 {v(KF + f * 4, 4)}, {v(k2T)} offset:{f * 1024}')
            a(f's_mul_i32 {s(sKVo)}, {s(sT)}, 7')
            a(f's_add_u32 {s(sKVo)}, {s(sKVo)}, 32')
            a(f's_sub_u32 {s(sKVo)}, {s(sH)}, {s(sKVo)}')
            a(f's_lshl_b32 {s(sKVo)}, {s(sKVo)}, 10')
            a(f's_add_u32 {s(sKVo)}, {s(sKVo)}, {s(sA2)}')
            a.label(L)
        if j in (13, 14, 15, 16):
            m = j - 13
            a(f's_cmp_eq_u32 {s(sTyp)}, 0')
            a(f's_cbranch_scc1 {L}')
            for b in (2, 0, 1):
                a(f'v_mfma_f32_16x16x32_bf16 {v(NUM + b * 4, 4)}, {v(KF + b * 4, 4)}, {v(PQ + m * 4, 4)}, 0')
            dn = NUM + 8
            a(f'v_add_f32 {v(dn)}, {s(sEps)}, {v(dn)}')
            a(f'v_rcp_f32 {v(dn)}, {v(dn)}')
            for b in range(2):
                r = NUM + b * 4
                for h in (0, 2):
                    a(f'v_pk_mul_f32 {v(r + h, 2)}, {v(r + h, 2)}, {v(dn, 2)} op_sel_hi:[1,0]')
                cvt4(a, OOUT + 2 * b, r)
            emit([f'buffer_store_dwordx4 {v(OOUT, 4)}, {v(vL16)}, {s(S_WS, 4)}, {s(sKVo)} offen sc1'], 'O', vmb)
            a(f's_add_u32 {s(sKVo)}, {s(sKVo)}, {144 * 1024}')
            a.label(L)
        if j == 18:
            a(f's_lshl_b32 {s(sT0)}, {s(sWave)}, 1')
            a(f's_or_b32 {s(sT0)}, {s(sT0)}, {s(sTyp)}')
            a(f's_cmp_eq_u32 {s(sT0)}, 13')
            a(f's_cbranch_scc0 {L}')
            a(f'buffer_store_dword {v(vNon)}, off, {s(S_WS, 4)}, {s(sFW)} offset:4 sc1')
            a.label(L)

    CHK = {8: (11, vF3, 'c2'), 21: (23, vOFa, 'c3')}
    for j in range(36):
        cur, nxt = j & 1, (j + 1) & 1
        kind, idx = ORDER[j]
        if j == 0:
            a(f's_waitcnt vmcnt({vmc.count("A0")}) lgkmcnt(0)')
            stamp(a, 14)
        bblock(j)
        if j in CHK:
            a(f's_cmp_lg_u32 {s(sWave)}, 7')
            a(f's_cbranch_scc1 P2_nl{j}')
            emit([f'buffer_load_dword {v(vOF)}, {v(CHK[j][1])}, {s(S_WS, 4)}, 0 offen sc1'], CHK[j][2], vm7)
            a.label(f'P2_nl{j}')
        if j == 24:
            emit([f'buffer_load_dword {v(k2E + m)}, {v(k2E + m)}, {s(S_WS, 4)}, 0 offen sc1' for m in range(2)], 'E')
        if j == 28:
            a(f's_waitcnt vmcnt({vmc.count("E")})')
            for m in range(2):
                a(f'v_rcp_f32 {v(k2E + m)}, {v(k2E + m)}')
            for q in range(2):
                for h in range(4):
                    a(f'v_mul_f32 {v(k2ACC + q * 4 + h)}, {v(k2E + (q & 1))}, {v(k2ACC + q * 4 + h)}')
        A0 = k2A + (j % NA) * 8
        if kind == 'b' and idx % 14 in (2, 11):
            a(f's_bitcmp0_b32 {s(s2Kq)}, 0')
            a(f's_cbranch_scc0 K2_sp1_{j}')
            a(f'v_swap_b32 {v(A0 + 2)}, {v(A0 + 4)}')
            a(f'v_swap_b32 {v(A0 + 3)}, {v(A0 + 5)}')
            a(f's_branch K2_spd_{j}')
            a.label(f'K2_sp1_{j}')
            a(f'v_swap_b32 {v(A0)}, {v(A0 + 6)}')
            a(f'v_swap_b32 {v(A0 + 1)}, {v(A0 + 7)}')
            a.label(f'K2_spd_{j}')
            a('s_nop 1')
        units = []
        if j + 3 < 36:
            units += [(u, f'A{j + 3}') for u in group_dma(k2_load_a(j + 3))]
        if j == 6:
            units += [(k2_dma_b(18), 'B18')]
        jb = j + 14 if j < 4 else j + 13
        if j not in (4, 5) and jb < 36:
            units += [(k2_dma_b(jb), f'B{jb}')]
        rd = k2_reads(nxt, (j + 1) % RING) if j < 35 else []
        k = ui = 0
        for n in range(8):
            for m in range(2):
                d = v(k2acc(n, m), 4)
                if j == 28 and k + 2 < 16:
                    for h in range(4):
                        a(f'v_mul_f32 {v(k2ACC + (k + 2) * 4 + h)}, {v(k2E + (k & 1))}, {v(k2ACC + (k + 2) * 4 + h)}')
                a(f'v_mfma_f32_16x16x32_bf16 {d}, {v(k2BF + cur * 32 + n * 4, 4)}, {v(A0 + m * 4, 4)}, {d}')
                for _ in range(OPT['p2rd']):
                    if rd:
                        a(rd.pop(0))
                if k in OPT['p2pos'] and ui < len(units):
                    emit(units[ui][0], units[ui][1])
                    ui += 1
                k += 1
        assert ui == len(units)
        if j == 35:
            break
        for jl, (jc, va, nm) in CHK.items():
            if j == jc:
                a(f's_cmp_lg_u32 {s(sWave)}, 7')
                a(f's_cbranch_scc1 P2_nc{j}')
                a(f's_waitcnt vmcnt({vm7.count(nm)})')
                flag_check(a, 'P2' + nm, vOF, va)
                a.label(f'P2_nc{j}')
        def need(t):
            n = t.count(f'A{j + 1}')
            if j % 6 == 5:
                for jb in range(j + 2, j + 8):
                    if 14 <= jb < 36:
                        n = min(n, t.count(f'B{jb}'))
                if j == 17 and t is vmb:
                    n = min(n, t.count('O'))
            return n
        nc, nb_ = need(vmc), need(vmb)
        if nc != nb_:
            a(f's_cmp_eq_u32 {s(sTyp)}, {1 if nc < nb_ else 0}')
            a(f's_cbranch_scc1 P2_w{j}')
            a(f's_waitcnt vmcnt({min(nc, nb_)})')
            a.label(f'P2_w{j}')
        a(f's_waitcnt vmcnt({max(nc, nb_)}) lgkmcnt(0)')
        if j % 6 == 5:
            a('s_barrier')
    stamp(a, 16)
    a(f's_lshl_b32 {s(sT2)}, {s(sWave)}, 11')
    PK = 8
    for d in (1, 2, 3):
        a(f's_xor_b32 {s(sT0)}, {s(sRole)}, {d << 3}')
        a(f's_mul_i32 {s(sT0)}, {s(sT0)}, 49152')
        a(f's_add_u32 {s(sT0)}, {s(sT0)}, {s(sT2)}')
        a(f's_add_u32 {s(sT0)}, {s(sT0)}, {XCH_OFF + (d - 1) * 16384}')
        m, nb = d & 1, (d >> 1) * 4
        p = PK + (d - 1) * 8
        for n in range(4):
            cvt4(a, p + n * 2, k2acc(nb + n, m))
        for q in range(2):
            a(f'buffer_store_dwordx4 {v(p + q * 4, 4)}, {v(vL16)}, {s(S_WS, 4)}, {s(sT0)} offen offset:{q * 1024} sc1')
    a(f'v_add_f32 {v(k2E)}, 1.0, {v(k2E)}')
    a(f'v_rcp_f32 {v(k2E)}, {v(k2E)}')
    a(f's_lshl_b32 {s(sT0)}, {s(sRole)}, 3')
    a(f's_add_u32 {s(sT0)}, {s(sT0)}, {s(sWave)}')
    a(f's_lshl_b32 {s(sT0)}, {s(sT0)}, 7')
    a('v_and_b32 v5, 3, v1')
    a('v_max_u32 v5, 1, v5')
    a('v_lshlrev_b32 v5, 13, v5')
    a(f'v_xor_b32 v5, {s(sT0)}, v5')
    a(f'v_add_u32 {v(vFa)}, {F_X}, v5')
    a(f's_add_u32 {s(sT0)}, {s(sT0)}, {F_X}')
    a(f's_mul_i32 {s(sT1)}, {s(sRole)}, 49152')
    a(f's_add_u32 {s(sT1)}, {s(sT1)}, {s(sT2)}')
    a(f's_add_u32 {s(sT1)}, {s(sT1)}, {XCH_OFF}')
    a('v_and_b32 v5, 15, v1')
    a('v_and_b32 v6, 7, v1')
    a('v_lshrrev_b32 v7, 1, v2')
    a('v_xor_b32 v6, v6, v7')
    a('v_lshlrev_b32 v5, 7, v5')
    a('v_and_b32 v7, 1, v2')
    a('v_lshl_add_u32 v5, v7, 3, v5')
    a(f's_add_u32 {s(sC)}, {s(sT2)}, {KFL}')
    a(f'v_add_u32 v5, {s(sC)}, v5')
    for n in range(4):
        a(f'v_xor_b32 v7, {2 * n}, v6')
        a(f'v_lshl_add_u32 {v(k2RA + n)}, v7, 4, v5')
    a('v_lshrrev_b32 v6, 3, v1')
    a('v_and_b32 v7, 7, v1')
    a(f'v_xor_b32 {v(k2T)}, v6, v7')
    a(f'v_lshlrev_b32 {v(k2T)}, 4, {v(k2T)}')
    a(f'v_lshl_add_u32 {v(k2T)}, v6, 7, {v(k2T)}')
    a(f'v_add_u32 {v(k2T)}, {s(sC)}, {v(k2T)}')
    a('v_lshlrev_b32 v7, 4, v7')
    a('v_lshl_add_u32 v7, v6, 11, v7')
    a(f'v_mov_b32 {v(vFv)}, 0')
    stamp(a, 17)
    a('s_waitcnt vmcnt(0)')
    a(f'buffer_store_dword {v(vNon)}, off, {s(S_WS, 4)}, {s(sT0)} sc1')
    stamp(a, 18)
    flag_check(a, 'K2x', vFv, vFa, sleep=0)
    stamp(a, 19)
    RX = 40
    for d in range(3):
        for q in range(2):
            a(f'buffer_load_dwordx4 {v(RX + d * 8 + q * 4, 4)}, {v(vL16)}, {s(S_WS, 4)}, {s(sT1)} offen offset:{q * 1024} sc1')
        if d < 2:
            a(f's_add_u32 {s(sT1)}, {s(sT1)}, 16384')
    a(f's_lshl_b32 {s(sT0)}, {s(sEoff)}, 11')
    a(f's_lshl_b32 {s(sT2)}, {s(s2Cb)}, 8')
    a(f's_add_u32 {s(sT0)}, {s(sT0)}, {s(sT2)}')
    a(f's_lshr_b32 {s(sT2)}, {s(s2Kq)}, 1')
    a(f's_lshl_b32 {s(sT2)}, {s(sT2)}, 7')
    a(f's_add_u32 {s(sT0)}, {s(sT0)}, {s(sT2)}')
    a(f's_add_u32 {s(sT2)}, {s(sT0)}, {8 * 2048}')
    UP = 64
    for d in range(3):
        a(f's_waitcnt vmcnt({4 - 2 * d})')
        for n in range(4):
            r = k2acc(n, 0)
            u = UP + (n & 1) * 4
            for h in range(2):
                src = RX + d * 8 + n * 2 + h
                a(f'v_lshlrev_b32 {v(u + 2 * h)}, 16, {v(src)}')
                a(f'v_and_b32 {v(u + 2 * h + 1)}, 0xffff0000, {v(src)}')
            for h in (0, 2):
                a(f'v_pk_add_f32 {v(r + h, 2)}, {v(r + h, 2)}, {v(u + h, 2)}')
    for n in range(4):
        r = k2acc(n, 0)
        for h in (0, 2):
            a(f'v_pk_mul_f32 {v(r + h, 2)}, {v(r + h, 2)}, {v(k2E, 2)} op_sel_hi:[1,0]')
        cvt4(a, 8 + n * 2, r)
        a(f'ds_write_b64 {v(k2RA + n)}, {v(8 + n * 2, 2)}')
    a('s_waitcnt lgkmcnt(0)')
    a(f'ds_read_b128 v[16:19], {v(k2T)}')
    a(f'ds_read_b128 v[20:23], {v(k2T)} offset:1024')
    a('s_waitcnt lgkmcnt(1)')
    a(f'buffer_store_dwordx4 v[16:19], v7, {s(S2_OUT, 4)}, {s(sT0)} offen{OPT["nto"]}')
    a('s_waitcnt lgkmcnt(0)')
    a(f'buffer_store_dwordx4 v[20:23], v7, {s(S2_OUT, 4)}, {s(sT2)} offen{OPT["nto"]}')
    if OPT['stamp']:
        a('s_waitcnt vmcnt(0)')
        stamp(a, 20)
        a(f's_lshl_b32 {s(sT0)}, s2, 3')
        a(f's_add_u32 {s(sT0)}, {s(sT0)}, {s(sWave)}')
        a(f's_lshl_b32 {s(sT0)}, {s(sT0)}, 8')
        a(f's_add_u32 {s(sT0)}, {s(sT0)}, {STAMP_OFF}')
        a('v_lshlrev_b32 v0, 2, v1')
        a(f'buffer_store_dword v{vSt}, v0, {s(S_WS, 4)}, {s(sT0)} offen')
    a.label('K_end')
    a('s_endpgm')
    a.label('K_code_end')


HEADER = open('cdna_kernels/%s.s.ref' % NAME).read().split('; Override launch')[0]


def build():
    out = HEADER
    out += '; @launch grid=(256,1,1) block=(512,1,1) lds=163840\n'
    out += '.amdgcn_target "amdgcn-amd-amdhsa--gfx950"\n.text\n'
    a = Asm()
    gen(a)
    out += f'.globl {KN}\n.p2align 8\n.type {KN},@function\n'
    out += f'.set CODE_LAST, K_code_end - {KN} - 64\n'
    out += a.finalize()
    out += f'''.section .rodata,"a"
.p2align 6
.amdhsa_kernel {KN}
  .amdhsa_next_free_vgpr 256
  .amdhsa_next_free_sgpr 102
  .amdhsa_accum_offset 256
  .amdhsa_group_segment_fixed_size 0
  .amdhsa_kernarg_size 88
  .amdhsa_user_sgpr_count 2
  .amdhsa_user_sgpr_kernarg_segment_ptr 1
  .amdhsa_system_sgpr_workgroup_id_x 1
.end_amdhsa_kernel
'''
    return out


if __name__ == '__main__':
    path = sys.argv[1] if len(sys.argv) > 1 else f'cdna_kernels/{NAME}.s'
    for kv in sys.argv[2:]:
        k, val = kv.split('=', 1)
        if val in ('True', 'False'):
            val = val == 'True'
        elif val.lstrip('-').isdigit():
            val = int(val)
        elif ',' in val:
            val = tuple(int(x) for x in val.split(','))
        if k.startswith('nt'):
            val = ' ' + val.replace('_', ' ')
        OPT[k] = val
    open(path, 'w').write(build())
```

```python
import sys
from asmlib import Asm, v, s

NAME = 'gated_mix__linear_attn_block__dense_activation_mish__prompt'
KN = NAME + '_kernel'

A2_OFF = 0
E_OFF = 0x1300000
FLG_OFF = 0x1310000
F_KV = FLG_OFF
F_WG = FLG_OFF + 0x2000
F_X = 0x2500000
F_W = FLG_OFF + 0xA000
EP_OFF = FLG_OFF + 0xF000
KVP_OFF = 0x1400000
XCH_OFF = 0x1800000
STAMP_OFF = 0x3000000
WS_SIZE = 268435456
LOG2E = 0x3fb8aa3b
SPIN_MAX = 100000

OPT = dict(stamp=False, dma_every=3, b2pf=True, codepf=True, b2u=1, b2all=0, pfx=None, dbgout=0, nto='', xp1='', g1mid=False, eprio=2, yprio=False, yprio2=False, nopk=False, ntw='', ntx='', ntb='', ntp='', probar=False, xp_same=False, u1=(0,0,0,1,1,2,2,2), p2pos=(3,7,10,13), xp2='', asc=' sc1', fastmish=True, p2rd=2, b0=2)

S_X, S_W, S_WS, S_DBG, S_B1, S_B1Z, S_G, S_PF = 28, 32, 36, 40, 44, 48, 52, 88
S2_B, S2_OUT, S2_AL = 44, 48, 52
sI, sT, sTyp, sWave, sW3, sGrp = 56, 57, 58, 59, 60, 61
sP0, sP1, sS, sZ2 = 62, 63, 64, 65
sWstr, sWoff, sWstep = 66, 67, 68
sXK, sXD, sXR, sCnt = 69, 70, 71, 72
sT0, sT1, sT2, sT3 = 73, 74, 75, 76
sM0W, sM0X = 77, 78
sC, sL2E = 79, 80
sH, sNon = 82, 83
sPFo = 84
sPFu, sPFu1, sPFnr = 3, 10, 11
sPF2b, sPF2nr, sPF2o = 14, 4, 5
sC60, sEps, sEoff = 85, 86, 87
sA2 = 92
s2Cb, s2Kq = 94, 95
s2Aoff, s2Boff, sGoff, sKVo, sFW = 96, 97, 98, 99, 100
sM2, sRole = 101, 93
s2Asw = 81
s2Aa, s2Ba = 18, 19
vOF = 111
vOFa = 112
vSt = 4
WF, XF = 8, 64
vXA0c, vXA1c, vXA0, vXA1 = 96, 97, 98, 99
vWZ12, vWZ3 = 100, 102
vXV, vWV = 105, 107
vPF = 109
vNon = 110
vL16 = 113
vBV = 114
vT = 116
ACC = 128
vE = 240
RING = 18
NA = 4
k2A = 8
PQ = 40
CH = 56
SUM = 72
KF, NUM, OOUT = 56, 68, 116
k2RA = 80
k2AV = 104
k2E = 106
vFa, vFv, vKa, vF3 = 120, 121, 122, 123
k2T = 124
k2ACC = 128
k2BF = 192
S2_WO = 88
S2_KV = 28


class VM:
    def __init__(self):
        self.ops = []

    def issue(self, tag):
        self.ops.append(tag)

    def count(self, tag):
        idx = max(i for i, t in enumerate(self.ops) if t == tag)
        return min(63, len(self.ops) - 1 - idx)


def stamp(a, idx):
    if not OPT['stamp']:
        return
    a('s_memtime s[26:27]')
    a('s_waitcnt lgkmcnt(0)')
    a(f'v_writelane_b32 v{vSt}, s26, {idx}')
    a('s_memrealtime s[26:27]')
    a('s_waitcnt lgkmcnt(0)')
    a(f'v_writelane_b32 v{vSt}, s26, {idx + 32}')


def srd(a, base, ptr, nbytes):
    a(f's_mov_b32 {s(base)}, {s(ptr)}')
    a(f's_and_b32 {s(base+1)}, {s(ptr+1)}, 0xffff')
    a(f's_mov_b32 {s(base+2)}, {nbytes}')
    a(f's_mov_b32 {s(base+3)}, 0x00020000')


def acc(n, m):
    return ACC + (n * 4 + m) * 4


def wf(buf, n):
    return WF + buf * 28 + n * 4


def xf(buf, m):
    return XF + buf * 16 + m * 4


def k1_reads(grp, buf, wslot, kk):
    nt = 7 if grp == 0 else 6
    xa = vXA0 if kk == 0 else vXA1
    xs = [f'ds_read_b128 {v(xf(buf, m), 4)}, {v(xa)} offset:{m * 2048}' for m in range(4)]
    ws = []
    for n in range(nt):
        if n < 4:
            addr = vWZ12 + (n & 1)
            off = wslot * 16384 + (4096 if n >= 2 else 0)
            d2 = 512
        else:
            addr = vWZ3 + (n - 4)
            off = wslot * 16384
            d2 = 1024
        ws.append(f'ds_read_b64_tr_b16 {v(wf(buf, n), 2)}, {v(addr)} offset:{off}')
        ws.append(f'ds_read_b64_tr_b16 {v(wf(buf, n) + 2, 2)}, {v(addr)} offset:{off + d2}')
    if 'w' in OPT['xp1']:
        ws = ws[:len(ws) // 2]
    if 'W' in OPT['xp1']:
        ws = ws[:2]
    if 'X' in OPT['xp1']:
        xs = xs[:1]
    return ws[:2] + xs + ws[2:]


def k1_dma_w(slot):
    out = [f's_add_u32 m0, {s(sM0W)}, {slot * 16384}']
    for j in range(2):
        out.append(f'buffer_load_dwordx4 {v(vWV + j)}, {s(S_W, 4)}, {s(sWoff)} offen offset:{j * 1024}{OPT["ntw"]} lds')
    out.append(f's_add_u32 {s(sWoff)}, {s(sWoff)}, {s(sWstep)}')
    return out


def k1_dma_x(par):
    out = []
    if par == 0:
        out.append(f's_add_u32 {s(sXK)}, {s(sXK)}, 128')
        out.append(f's_add_u32 {s(sXD)}, {s(sXD)}, 32768')
        out.append(f's_cmp_eq_u32 {s(sXD)}, 98304')
        out.append(f's_cselect_b32 {s(sXD)}, 0, {s(sXD)}')
        out.append(f's_add_u32 m0, {s(sXD)}, {s(sM0X)}')
        so = sXK
    else:
        out.append(f's_add_u32 {s(sT0)}, {s(sXK)}, 262144')
        out.append(f's_add_u32 {s(sT1)}, {s(sXD)}, {s(sM0X)}')
        out.append(f's_add_u32 m0, {s(sT1)}, 16384')
        so = sT0
    for j in range(2):
        out.append(f'buffer_load_dwordx4 {v(vXV + j)}, {s(S_X, 4)}, {s(so)} offen offset:{j * 1024}{OPT["ntx"]} lds')
    return out


def k1_adv_xread():
    return [f's_add_u32 {s(sXR)}, {s(sXR)}, 32768',
            f's_cmp_eq_u32 {s(sXR)}, 98304',
            f's_cselect_b32 {s(sXR)}, 0, {s(sXR)}',
            f'v_add_u32 {v(vXA0)}, {s(sXR)}, {v(vXA0c)}',
            f'v_add_u32 {v(vXA1)}, {s(sXR)}, {v(vXA1c)}']


def k1_mfmas(grp, typ, buf):
    nt = 7 if grp == 0 else 6
    out = []
    for n in range(nt):
        for m in range(4):
            d = v(acc(n, m), 4)
            W = v(wf(buf, n), 4)
            X = v(xf(buf, m), 4)
            if typ == 0 and n < 4:
                out.append(f'v_mfma_f32_16x16x32_bf16 {d}, {X}, {W}, {d}')
            else:
                out.append(f'v_mfma_f32_16x16x32_bf16 {d}, {W}, {X}, {d}')
    return out


def group_dma(lst):
    units = []
    cur = []
    for x in lst:
        cur.append(x)
        if x.startswith('buffer_'):
            units.append(cur)
            cur = []
    if cur:
        units[-1] = units[-1] + cur
    return units


_tn = [0]


def b2_touch():
    _tn[0] += 1
    L = f'PFs{_tn[0]}'
    return [[f's_sub_u32 {s(sPFu1)}, {s(sPFu1)}, 1',
             f's_cbranch_scc0 {L}',
             f'buffer_load_dword v3, {v(vPF)}, {s(S_PF, 4)}, {s(sPFo)} offen{OPT["ntp"]}',
             f's_mov_b32 {s(sPFu1)}, {s(sPFu)}',
             f's_add_u32 {s(sPFo)}, {s(sPFo)}, 8192',
             f's_mov_b32 {s(sPFu)}, 1000',
             f'{L}:']]


def pf_setup(a):
    srd(a, S_PF, 16, 3584 * 2048)
    a(f's_mov_b32 {s(sT0)}, {896 * 128}')
    a(f'v_mul_lo_u32 {v(vPF)}, v1, {s(sT0)}')
    a(f's_lshl_b32 {s(sT2)}, {s(sWave)}, 8')
    a(f's_add_u32 {s(sT2)}, {s(sT2)}, s2')
    a(f's_lshl_b32 {s(sPFo)}, {s(sT2)}, 7')
    a(f's_lshr_b32 {s(sT0)}, s2, 3')
    a(f's_mul_i32 {s(sT0)}, {s(sT0)}, 5')
    a(f's_mul_i32 {s(sT1)}, {s(sWave)}, 9')
    a(f's_add_u32 {s(sT0)}, {s(sT0)}, {s(sT1)}')
    a(f's_and_b32 {s(sT1)}, s2, 7')
    a(f's_mul_i32 {s(sT1)}, {s(sT1)}, 3')
    a(f's_add_u32 {s(sT0)}, {s(sT0)}, {s(sT1)}')
    a(f's_mul_i32 {s(sT1)}, {s(sT0)}, 2979')
    a(f's_lshr_b32 {s(sT1)}, {s(sT1)}, 16')
    a(f's_mul_i32 {s(sT1)}, {s(sT1)}, 22')
    a(f's_sub_u32 {s(sPFnr)}, {s(sT0)}, {s(sT1)}')
    a(f's_cmp_lt_u32 {s(sT2)}, 896')
    a(f's_cselect_b32 {s(sPFu1)}, {s(sPFnr)}, 1000')
    a(f's_cmp_lg_u32 {s(sWave)}, 4')
    a('s_cbranch_scc1 PF_done')
    srd(a, S_PF, 8, 1024 * 2048)
    a(f's_mov_b32 {s(sPFu1)}, {s(sPFnr)}')
    a(f's_mov_b32 {s(sPFo)}, 0')
    a('v_mul_u32_u24 v5, 5, v1')
    a('v_add_u32 v5, s2, v5')
    a('v_and_b32 v5, 255, v5')
    a('v_lshl_add_u32 v5, v1, 8, v5')
    a(f'v_lshlrev_b32 {v(vPF)}, 7, v5')
    a.label('PF_done')
    a(f's_mov_b32 {s(sPFu)}, 1000')
    if OPT['pfx']:
        lo, span = OPT['pfx']
        a(f'v_lshlrev_b32 {v(vPF)}, 7, v1')
        srd(a, S_PF, 16, 3584 * 2048)
        a(f's_lshr_b32 {s(sT0)}, s2, 3')
        a(f's_mul_i32 {s(sT1)}, {s(sT0)}, 7')
        a(f's_mul_i32 {s(sT2)}, {s(s2Kq)}, 224')
        a(f's_add_u32 {s(sT1)}, {s(sT1)}, {s(sT2)}')
        a(f's_add_u32 {s(sT1)}, {s(sT1)}, {s(sWave)}')
        a(f's_lshl_b32 {s(sPFo)}, {s(sT1)}, 13')
        a(f's_mul_i32 {s(sT1)}, {s(sWave)}, 3')
        a(f's_add_u32 {s(sT1)}, {s(sT1)}, {s(sT0)}')
        a(f's_and_b32 {s(sT1)}, {s(sT1)}, {span - 1}')
        a(f's_add_u32 {s(sPFu1)}, {s(sT1)}, {lo}')
        a(f's_cmp_lg_u32 {s(sWave)}, 7')
        a('s_cbranch_scc1 PF_done2')
        srd(a, S_PF, 8, 1024 * 2048)
        a(f's_lshl_b32 {s(sT1)}, {s(sT0)}, 1')
        a(f's_lshl_b32 {s(sT2)}, {s(s2Kq)}, 6')
        a(f's_add_u32 {s(sT1)}, {s(sT1)}, {s(sT2)}')
        a(f's_lshl_b32 {s(sPFo)}, {s(sT1)}, 13')
        a(f's_lshr_b32 {s(sPFu1)}, {s(sPFu1)}, 1')
        a(f's_mov_b32 {s(sPFu)}, 3')
        a.label('PF_done2')
    if OPT['b2all']:
        a(f's_mov_b32 {s(sPFu1)}, {OPT["b2all"]}')


def k1_substep(a, grp, typ, b, dma=True, reads=True, last=False, extra=None, fill=None, vm=None):
    cur, nxt = b & 1, (b + 1) & 1
    mf = k1_mfmas(grp, typ, cur)
    pre = []
    rd = []
    if reads:
        if b & 1:
            pre += k1_adv_xread()
        rd = k1_reads(grp, nxt, (b + 1) % 4, (b + 1) & 1)
    units = []
    if dma:
        units = group_dma(k1_dma_w(b) + k1_dma_x(0 if (b & 1) else 1))
        if 'D' in OPT['xp1']:
            units = [[y for y in u if not y.startswith('buffer')] for u in units]
    if extra:
        units = units + extra
    fill = list(fill or [])
    for x in pre:
        a(x)
    ri = ui = 0
    ev = OPT['dma_every']
    ph = 0 if grp == 0 else 1
    for k, mm in enumerate(mf):
        a(mm)
        if ri < len(rd):
            a(rd[ri])
            ri += 1
        if ui < len(units) and k % ev == ph:
            for x in units[ui]:
                a(x)
            ui += 1
        for _ in range(2):
            if fill:
                a(fill.pop(0))
    assert ri == len(rd) and ui == len(units), (ri, ui, len(units))
    for x in fill:
        a(x)
    if last:
        return
    a(f's_waitcnt vmcnt({vm}) lgkmcnt(0)')
    a('s_barrier')


def mish4(a, r, t):
    T, N2, W = t, t + 4, t + 8
    if OPT['fastmish'] and OPT['nopk']:
        for i in range(4):
            a(f'v_mul_f32 {v(T + i)}, {s(sL2E)}, {v(r + i)}')
        for i in range(4):
            a(f'v_exp_f32 {v(T + i)}, {v(T + i)}')
        for i in range(4):
            a(f'v_fma_f32 {v(N2 + i)}, {v(T + i)}, -0.5, -1.0')
        for i in range(4):
            a(f'v_fma_f32 {v(N2 + i)}, {v(T + i)}, {v(N2 + i)}, -1.0')
        for i in range(4):
            a(f'v_rcp_f32 {v(N2 + i)}, {v(N2 + i)}')
        for i in range(4):
            a(f'v_fmac_f32 {v(r + i)}, {v(r + i)}, {v(N2 + i)}')
        return
    if OPT['fastmish']:
        for h in (0, 2):
            a(f'v_pk_mul_f32 {v(T + h, 2)}, {v(r + h, 2)}, {s(sL2E, 2)} op_sel_hi:[1,0]')
        for i in range(4):
            a(f'v_exp_f32 {v(T + i)}, {v(T + i)}')
        for h in (0, 2):
            a(f'v_pk_fma_f32 {v(N2 + h, 2)}, {v(T + h, 2)}, -0.5, -1.0 op_sel_hi:[1,0,0]')
        for h in (0, 2):
            a(f'v_pk_fma_f32 {v(N2 + h, 2)}, {v(T + h, 2)}, {v(N2 + h, 2)}, -1.0 op_sel_hi:[1,1,0]')
        for i in range(4):
            a(f'v_rcp_f32 {v(N2 + i)}, {v(N2 + i)}')
        for h in (0, 2):
            a(f'v_pk_fma_f32 {v(r + h, 2)}, {v(r + h, 2)}, {v(N2 + h, 2)}, {v(r + h, 2)}')
        return
    for h in (0, 2):
        a(f'v_pk_mul_f32 {v(T + h, 2)}, {v(r + h, 2)}, {s(sL2E, 2)} op_sel_hi:[1,0]')
    for i in range(4):
        a(f'v_min_f32 {v(T + i)}, {s(sC60)}, {v(T + i)}')
    for i in range(4):
        a(f'v_exp_f32 {v(T + i)}, {v(T + i)}')
    for h in (0, 2):
        a(f'v_pk_add_f32 {v(N2 + h, 2)}, {v(T + h, 2)}, 2.0 op_sel_hi:[1,0]')
    for h in (0, 2):
        a(f'v_pk_mul_f32 {v(W + h, 2)}, {v(T + h, 2)}, {v(N2 + h, 2)}')
    for h in (0, 2):
        a(f'v_pk_fma_f32 {v(N2 + h, 2)}, {v(T + h, 2)}, {v(N2 + h, 2)}, 2.0 op_sel_hi:[1,1,0]')
    for i in range(4):
        a(f'v_rcp_f32 {v(N2 + i)}, {v(N2 + i)}')
    for h in (0, 2):
        a(f'v_pk_mul_f32 {v(W + h, 2)}, {v(W + h, 2)}, {v(N2 + h, 2)}')
    for h in (0, 2):
        a(f'v_pk_mul_f32 {v(r + h, 2)}, {v(r + h, 2)}, {v(W + h, 2)}')


def phi4(a, r, t):
    if OPT['nopk']:
        for i in range(4):
            a(f'v_mul_f32 {v(t + i)}, {s(sL2E)}, {v(r + i)}')
        for i in range(4):
            a(f'v_min_f32 {v(t + i)}, 0, {v(t + i)}')
        for i in range(4):
            a(f'v_exp_f32 {v(t + i)}, {v(t + i)}')
        for i in range(4):
            a(f'v_max_f32 {v(r + i)}, 0, {v(r + i)}')
        for i in range(4):
            a(f'v_add_f32 {v(r + i)}, {s(sEps)}, {v(r + i)}')
        for i in range(4):
            a(f'v_add_f32 {v(r + i)}, {v(r + i)}, {v(t + i)}')
        return
    for h in (0, 2):
        a(f'v_pk_mul_f32 {v(t + h, 2)}, {v(r + h, 2)}, {s(sL2E, 2)} op_sel_hi:[1,0]')
    for i in range(4):
        a(f'v_min_f32 {v(t + i)}, 0, {v(t + i)}')
    for i in range(4):
        a(f'v_exp_f32 {v(t + i)}, {v(t + i)}')
    for i in range(4):
        a(f'v_max_f32 {v(r + i)}, 0, {v(r + i)}')
    for h in (0, 2):
        a(f'v_pk_add_f32 {v(r + h, 2)}, {v(r + h, 2)}, {v(t + h, 2)}')
    for i in range(4):
        a(f'v_add_f32 {v(r + i)}, {s(sEps)}, {v(r + i)}')


def cvt4(a, o, r):
    a(f'v_cvt_pk_bf16_f32 {v(o)}, {v(r)}, {v(r + 1)}')
    a(f'v_cvt_pk_bf16_f32 {v(o + 1)}, {v(r + 2)}, {v(r + 3)}')


def k1_store_pair(a, n0, s_tau, plus, outregs, hook=None):
    a(f's_add_u32 {s(sT2)}, {s(s_tau)}, {plus}')
    a(f's_lshr_b32 {s(sT2)}, {s(sT2)}, 1')
    a(f's_lshl_b32 {s(sT2)}, {s(sT2)}, 10')
    a(f's_add_u32 {s(sT2)}, {s(sT2)}, {s(sA2)}')
    for m in range(4):
        o = outregs + (m & 1) * 4
        mish4(a, acc(n0, m), vE)
        mish4(a, acc(n0 + 1, m), vT)
        cvt4(a, o, acc(n0, m))
        cvt4(a, o + 2, acc(n0 + 1, m))
        a(f'buffer_store_dwordx4 {v(o, 4)}, {v(vL16)}, {s(S_WS, 4)}, {s(sT2)} offen sc1')
        if m < 3:
            a(f's_add_u32 {s(sT2)}, {s(sT2)}, {144 * 1024}')
        if hook and m == 1:
            hook()
    return 4


def k1_store_single(a, n0, outregs):
    a(f's_lshr_b32 {s(sT2)}, {s(sS)}, 1')
    a(f's_lshl_b32 {s(sT2)}, {s(sT2)}, 10')
    a(f's_add_u32 {s(sT2)}, {s(sT2)}, {s(sA2)}')
    a(f's_and_b32 {s(sT3)}, {s(sS)}, 1')
    a(f's_mul_i32 {s(sT3)}, {s(sT3)}, {144 * 1024}')
    a(f's_add_u32 {s(sT2)}, {s(sT2)}, {s(sT3)}')
    for mp in range(2):
        o = outregs + mp * 4
        mish4(a, acc(n0, 2 * mp), vE)
        mish4(a, acc(n0, 2 * mp + 1), vT)
        cvt4(a, o, acc(n0, 2 * mp))
        cvt4(a, o + 2, acc(n0, 2 * mp + 1))
        a(f'buffer_store_dwordx4 {v(o, 4)}, {v(vL16)}, {s(S_WS, 4)}, {s(sT2)} offen sc1')
        if mp == 0:
            a(f's_add_u32 {s(sT2)}, {s(sT2)}, {2 * 144 * 1024}')
    return 2


def get_nonce(a, L):
    a(f's_mov_b32 {s(sC)}, 0')
    a.label(f'{L}_nchk')
    a(f'v_readfirstlane_b32 {s(sNon)}, {v(vNon)}')
    a(f's_cmp_lg_u32 {s(sNon)}, 0')
    a(f's_cbranch_scc1 {L}_nok')
    a('s_sleep 8')
    a(f'buffer_load_dword {v(vNon)}, off, {s(S_DBG, 4)}, 0 sc1')
    a(f's_add_u32 {s(sC)}, {s(sC)}, 1')
    a('s_waitcnt vmcnt(0)')
    a(f's_cmp_lt_u32 {s(sC)}, {SPIN_MAX}')
    a(f's_cbranch_scc1 {L}_nchk')
    a.label(f'{L}_nok')


def poll_line(a, L, soff, nlanes, vtmp, sleep=4):
    a(f'v_and_b32 {v(vtmp + 1)}, {nlanes - 1}, v1')
    a(f'v_lshlrev_b32 {v(vtmp + 1)}, 2, {v(vtmp + 1)}')
    a(f's_mov_b32 {s(sC)}, 0')
    a.label(f'{L}_poll')
    a(f'buffer_load_dword {v(vtmp)}, {v(vtmp + 1)}, {s(S_WS, 4)}, {s(soff)} offen sc1')
    a(f's_add_u32 {s(sC)}, {s(sC)}, 1')
    a('s_waitcnt vmcnt(0)')
    a(f'v_cmp_ne_u32 vcc, {s(sNon)}, {v(vtmp)}')
    a('s_nop 4')
    a(f's_cbranch_vccz {L}_polled')
    a(f's_sleep {sleep}')
    a(f's_cmp_lt_u32 {s(sC)}, {SPIN_MAX}')
    a(f's_cbranch_scc1 {L}_poll')
    a.label(f'{L}_polled')


KVL = 114688
KFL = 147456


def k1_epilogue_A(a, grp, L):
    PK, VV, ONES, KV = 8, 24, 40, 44
    a('s_nop 7')
    for n in range(2):
        for m in range(4):
            phi4(a, acc(n, m), vE + (m & 1) * 4)
    for i in range(4):
        a(f'v_mov_b32 {v(ONES + i)}, 0x3f803f80')
    for src, dst in ((2, VV), (0, PK)):
        for n in range(2):
            for c in range(2):
                d = dst + (n * 2 + c) * 4
                for hh in range(2):
                    cvt4(a, d + 2 * hh, acc(src + n, 2 * c + hh))
    for c in range(2):
        for b in range(3):
            for aa in range(2):
                d = v(KV + (b * 2 + aa) * 4, 4)
                B = v(VV + (b * 2 + c) * 4, 4) if b < 2 else v(ONES, 4)
                a(f'v_mfma_f32_16x16x32_bf16 {d}, {v(PK + (aa * 2 + c) * 4, 4)}, {B}, {d if c else "0"}')
    a(f's_mul_i32 {s(sT0)}, {s(sWave)}, 6144')
    a(f's_add_u32 {s(sT0)}, {s(sT0)}, {KVL}')
    a(f'v_add_u32 {v(vT)}, {s(sT0)}, {v(vL16)}')
    for q in range(6):
        a(f'ds_write_b128 {v(vT)}, {v(KV + q * 4, 4)} offset:{q * 1024}')
    a('s_waitcnt lgkmcnt(0)')
    a('s_barrier')
    stamp(a, 7)
    a(f's_cmp_lg_u32 {s(sW3)}, 0')
    a(f's_cbranch_scc1 {L}_nosum')
    bases = (68, 8, 128)
    for w in range(3):
        for q in range(6):
            a(f'ds_read_b128 {v(bases[w] + q * 4, 4)}, {v(vT)} offset:{(w + 1) * 6144 + q * 1024}')
    a(f's_lshl_b32 {s(sT0)}, {s(sH)}, 3')
    a(f's_add_u32 {s(sT0)}, {s(sT0)}, {s(sI)}')
    a(f's_mul_i32 {s(sT1)}, {s(sT0)}, 6144')
    a(f's_add_u32 {s(sT1)}, {s(sT1)}, {KVP_OFF}')
    a(f's_add_u32 {s(sT3)}, {s(sT1)}, 4096')
    for w in range(3):
        a(f's_waitcnt lgkmcnt({12 - 6 * w})')
        for q in range(12):
            a(f'v_pk_add_f32 {v(KV + q * 2, 2)}, {v(KV + q * 2, 2)}, {v(bases[w] + q * 2, 2)}')
    for q in range(6):
        so, off = (sT1, q * 1024) if q < 4 else (sT3, (q - 4) * 1024)
        a(f'buffer_store_dwordx4 {v(KV + q * 4, 4)}, {v(vL16)}, {s(S_WS, 4)}, {s(so)} offen offset:{off} sc1')
    a(f's_lshl_b32 {s(sT0)}, {s(sT)}, 7')
    a(f's_lshl_b32 {s(sT1)}, {s(sI)}, 2')
    a(f's_add_u32 {s(sT0)}, {s(sT0)}, {s(sT1)}')
    a(f's_add_u32 {s(sT0)}, {s(sT0)}, {F_KV + grp * 32}')
    a('s_waitcnt vmcnt(0)')
    get_nonce(a, L + 'a')
    a(f'buffer_store_dword {v(vNon)}, off, {s(S_WS, 4)}, {s(sT0)} sc1')
    stamp(a, 8)
    a.label(f'{L}_nosum')
    if grp == 0:
        k1_store_pair(a, 4, sP0, 0, 72)
        k1_store_single(a, 6, 72)
    else:
        k1_store_pair(a, 4, sP1, 0, 72)


def k1_epilogue_B(a, grp, L):
    OUT = 72
    a('s_nop 7')
    k1_store_pair(a, 2, sZ2, 2 * grp, OUT)
    if grp == 0:
        k1_store_pair(a, 4, sP0, 0, OUT)
        k1_store_single(a, 6, OUT)
    else:
        k1_store_pair(a, 4, sP1, 0, OUT)
    stamp(a, 7)


def gate_code():
    GX, GW = vE, vE + 8
    o = ['v_mov_b32 v5, 0']
    for i in range(8):
        o.append(f'v_dot2_f32_bf16 v5, {v(GX + i)}, {v(GW + i)}, v5')
    o.append('s_nop 2')
    for sh in (1, 2, 4, 8):
        o.append(f'v_add_f32_dpp v5, v5, v5 row_shr:{sh} row_mask:0xf bank_mask:0xf bound_ctrl:0')
    o.append('v_add_f32_dpp v5, v5, v5 row_bcast:15 row_mask:0xa bank_mask:0xf')
    o.append('v_add_f32_dpp v5, v5, v5 row_bcast:31 row_mask:0xc bank_mask:0xf')
    o.append('v_mov_b32 v6, 0x42200000')
    o.append('v_med3_f32 v5, v5, -v6, v6')
    o.append(f'v_mul_f32 v5, {s(sL2E)}, v5')
    o.append('v_exp_f32 v5, v5')
    o.append(f'v_readlane_b32 {s(sT3)}, v5, 63')
    o.append(f'v_mov_b32 v5, {s(sT3)}')
    o.append(f'buffer_store_dword v5, off, {s(S_WS, 4)}, {s(sEoff)} sc1')
    return o


def k2acc(n, m):
    return k2ACC + (n * 2 + m) * 4


def k2_reads(buf, slot):
    out = []
    for n in range(8):
        addr = k2RA + (slot // 8) * 8 + n
        off = (slot % 8) * 8192
        d = k2BF + buf * 32 + n * 4
        out.append(f'ds_read_b64_tr_b16 {v(d, 2)}, {v(addr)} offset:{off}')
        out.append(f'ds_read_b64_tr_b16 {v(d + 2, 2)}, {v(addr)} offset:{off + 4096}')
    return out


def p2_order():
    o = []
    for lst in ((4, 5, 8, 9), (3, 6, 7, 10), (0, 1, 12, 13), (2, 11)):
        for u in range(2):
            o += [('b', 14 * u + g) for g in lst]
    o += [('a', h) for h in range(8)]
    return o


ORDER = p2_order()


def k2_dma_b(j):
    kind, idx = ORDER[j]
    slot = j % RING
    out = [f's_add_u32 m0, {s(sM2)}, {slot * 8192}']
    base, srdn = (s2Boff, S2_B) if kind == 'b' else (s2Ba, S2_WO)
    out.append(f's_add_u32 {s(sT0)}, {s(base)}, {idx * 65536}')
    out.append(f'buffer_load_dwordx4 {v(vBV)}, {s(srdn, 4)}, {s(sT0)} offen{OPT["ntb"]} lds')
    return out


def k2_load_a(j):
    kind, idx = ORDER[j]
    base = s2Aoff if kind == 'b' else s2Aa
    out = [f's_add_u32 {s(sT1)}, {s(base)}, {idx * 1024}']
    for m in range(2):
        out.append(f'buffer_load_dwordx4 {v(k2A + (j % NA) * 8 + m * 4, 4)}, {v(k2AV + m)}, {s(S_WS, 4)}, {s(sT1)} offen sc1')
    return out


def flag_check(a, L, vval, vaddr, sleep=4):
    a(f's_mov_b32 {s(sC)}, 0')
    a.label(f'{L}_c')
    a(f'v_cmp_ne_u32 vcc, {s(sNon)}, {v(vval)}')
    a('s_nop 4')
    a(f's_cbranch_vccz {L}_ok')
    if sleep:
        a(f's_sleep {sleep}')
    a(f'buffer_load_dword {v(vval)}, {v(vaddr)}, {s(S_WS, 4)}, 0 offen sc1')
    a(f's_add_u32 {s(sC)}, {s(sC)}, 1')
    a('s_waitcnt vmcnt(0)')
    a(f's_cmp_lt_u32 {s(sC)}, {SPIN_MAX}')
    a(f's_cbranch_scc1 {L}_c')
    a.label(f'{L}_ok')


def gen(a):
    a.label(KN)
    a('s_cmp_ge_u32 s2, 256')
    a('s_cbranch_scc1 K_end')
    a('s_load_dwordx16 s[4:19], s[0:1], 0')
    a('s_load_dwordx4 s[20:23], s[0:1], 64')
    a('s_load_dwordx2 s[24:25], s[0:1], 80')
    if OPT['codepf']:
        a('s_getpc_b64 s[26:27]')
        a('s_lshr_b32 s3, s2, 3')
        a('s_and_b32 s3, s3, 1')
        a('s_lshl_b32 s3, s3, 16')
        a('v_lshlrev_b32 v5, 7, v0')
        a('v_add_u32 v5, s3, v5')
        a('v_min_u32 v5, CODE_LAST, v5')
        a('global_load_dword v3, v5, s[26:27]')
    stamp(a, 0)
    a('v_and_b32 v1, 63, v0')
    a('v_lshrrev_b32 v2, 6, v0')
    a(f'v_readfirstlane_b32 {s(sWave)}, v2')
    a(f's_and_b32 {s(sT0)}, s2, 7')
    a(f's_lshr_b32 {s(sT1)}, s2, 3')
    a(f's_and_b32 {s(sI)}, {s(sT0)}, 1')
    a(f's_lshl_b32 {s(sI)}, {s(sI)}, 2')
    a(f's_and_b32 {s(sT2)}, {s(sT1)}, 3')
    a(f's_add_u32 {s(sI)}, {s(sI)}, {s(sT2)}')
    a(f's_lshr_b32 {s(sC)}, {s(sT0)}, 1')
    a(f's_lshl_b32 {s(sC)}, {s(sC)}, 3')
    a(f's_lshr_b32 {s(sT2)}, {s(sT1)}, 2')
    a(f's_add_u32 {s(sC)}, {s(sC)}, {s(sT2)}')
    a(f's_lshr_b32 {s(sT)}, {s(sC)}, 1')
    a(f's_and_b32 {s(sTyp)}, {s(sC)}, 1')
    a(f's_and_b32 {s(sW3)}, {s(sWave)}, 3')
    a(f's_lshr_b32 {s(sGrp)}, {s(sWave)}, 2')
    a(f's_cmp_eq_u32 {s(sTyp)}, 0')
    a(f's_mov_b32 {s(sT2)}, 0x286085C6')
    a(f's_cselect_b32 {s(sT2)}, 0x09CA0420, {s(sT2)}')
    a(f's_and_b32 {s(sT3)}, {s(sT)}, 1')
    a(f's_lshl_b32 {s(sT3)}, {s(sT3)}, 4')
    a(f's_lshr_b32 {s(sT2)}, {s(sT2)}, {s(sT3)}')
    a(f's_and_b32 {s(sP0)}, {s(sT2)}, 15')
    a(f's_bfe_u32 {s(sP1)}, {s(sT2)}, 0x40004')
    a(f's_bfe_u32 {s(sS)}, {s(sT2)}, 0x40008')
    a(f's_bfe_u32 {s(sZ2)}, {s(sT2)}, 0x4000c')
    a('v_lshrrev_b32 v2, 4, v1')
    a('v_lshrrev_b32 v6, 3, v1')
    a('v_and_b32 v7, 7, v1')
    a(f's_lshl_b32 {s(sT2)}, {s(sWave)}, 15')
    for j in range(2):
        a(f'v_xor_b32 v5, {4 * j}, v2')
        a('v_xor_b32 v5, v5, v7')
        a('v_lshlrev_b32 v5, 4, v5')
        a('v_lshl_add_u32 v5, v6, 11, v5')
        a(f's_add_u32 {s(sT3)}, {s(sT2)}, {j * (8 * 2048 - 1024)}')
        a(f'v_add_u32 {v(vXV + j)}, {s(sT3)}, v5')
    a(f's_lshl_b32 {s(sM0W)}, {s(sWave)}, 11')
    a(f's_add_u32 {s(sM0X)}, {s(sM0W)}, 65536')
    a(f's_lshl_b32 {s(sXK)}, {s(sI)}, 19')
    if OPT['xp_same']:
        a(f's_mov_b32 {s(sXK)}, 0')
    a(f's_sub_u32 {s(sXK)}, {s(sXK)}, 128')
    a(f's_mov_b32 {s(sXD)}, 65536')
    a(f's_mov_b32 {s(sWoff)}, 0')
    a(f's_mul_i32 {s(sA2)}, {s(sT)}, 448')
    if OPT['xp_same']:
        a(f's_and_b32 {s(sA2)}, {s(sT)}, 1')
        a(f's_mul_i32 {s(sA2)}, {s(sA2)}, 448')
    a(f's_cmp_ge_u32 {s(sWave)}, 4')
    a('s_cbranch_scc1 K1_setup_z3')
    a(f's_lshr_b32 {s(sT0)}, {s(sWave)}, 1')
    a(f's_lshl_b32 {s(sT2)}, {s(sT)}, 7')
    if OPT['xp_same']:
        a(f's_mov_b32 {s(sT2)}, 0')
    a(f's_add_u32 {s(sT3)}, {s(sT0)}, 1')
    a(f's_lshl_b32 {s(sT3)}, {s(sT3)}, 11')
    a(f's_cmp_eq_u32 {s(sTyp)}, 0')
    a(f's_cselect_b32 {s(sT3)}, {s(sT3)}, 0')
    a(f's_add_u32 {s(sT2)}, {s(sT2)}, {s(sT3)}')
    a(f's_lshl_b32 {s(sT3)}, {s(sZ2)}, 5')
    a(f's_add_u32 {s(sT3)}, {s(sT3)}, {s(sA2)}')
    a(f's_and_b32 {s(sT0)}, {s(sTyp)}, {s(sT0)}')
    a(f's_cselect_b32 {s(sT2)}, {s(sT3)}, {s(sT2)}')
    a(f's_movk_i32 {s(sWstr)}, 6144')
    a(f's_cselect_b32 {s(sWstr)}, 7168, {s(sWstr)}')
    a('v_lshrrev_b32 v5, 1, v7')
    a('v_and_b32 v7, 1, v2')
    a('v_xor_b32 v5, v5, v7')
    a('v_and_b32 v7, 1, v1')
    a(f'v_mul_lo_u32 v6, v6, {s(sWstr)}')
    a('v_lshl_add_u32 v6, v7, 4, v6')
    a(f's_and_b32 {s(sT3)}, {s(sWave)}, 1')
    a(f's_lshl_b32 {s(sT3)}, {s(sT3)}, 4')
    a(f's_mul_i32 {s(sT3)}, {s(sT3)}, {s(sWstr)}')
    a(f's_add_u32 {s(sT2)}, {s(sT2)}, {s(sT3)}')
    for j in range(2):
        a(f'v_xor_b32 v7, {2 * j}, v5')
        a(f'v_lshl_add_u32 v7, v7, 5, v6')
        if j:
            a(f's_lshl_b32 {s(sT3)}, {s(sWstr)}, 3')
            a(f's_add_u32 {s(sT2)}, {s(sT2)}, {s(sT3)}')
            a(f's_sub_u32 {s(sT2)}, {s(sT2)}, 1024')
        a(f'v_add_u32 {v(vWV + j)}, {s(sT2)}, v7')
    a('s_branch K1_setup_w_done')
    a.label('K1_setup_z3')
    a(f's_mov_b32 {s(sWstr)}, 7168')
    a(f's_mov_b32 {s(sT0)}, 1')
    a('v_bfe_u32 v5, v1, 1, 3')
    a('v_xor_b32 v5, v5, v2')
    a(f's_and_b32 {s(sT3)}, {s(sWave)}, 1')
    a(f's_lshl_b32 {s(sT3)}, {s(sT3)}, 2')
    a(f'v_xor_b32 v5, {s(sT3)}, v5')
    a('v_and_b32 v6, 1, v1')
    a('v_mul_u32_u24 v7, 7168, v2')
    a('v_lshl_add_u32 v7, v6, 4, v7')
    a(f's_mul_i32 {s(sT3)}, {s(sW3)}, {8 * 7168}')
    a(f's_add_u32 {s(sT2)}, {s(sA2)}, {s(sT3)}')
    a(f's_sub_u32 {s(sT3)}, {s(sP1)}, 2')
    a(f's_sub_u32 {s(sT1)}, {s(sS)}, 4')
    a(f'v_mov_b32 {v(vT + 1)}, {s(sP0)}')
    a(f'v_mov_b32 {v(vT + 2)}, {s(sT3)}')
    a('v_cmp_lt_u32 vcc, 1, v5')
    a(f'v_cndmask_b32 {v(vT + 1)}, {v(vT + 1)}, {v(vT + 2)}, vcc')
    a(f'v_mov_b32 {v(vT + 2)}, {s(sT1)}')
    a('v_cmp_lt_u32 vcc, 3, v5')
    a(f'v_cndmask_b32 {v(vT + 1)}, {v(vT + 1)}, {v(vT + 2)}, vcc')
    a(f'v_add_u32 {v(vT + 1)}, {v(vT + 1)}, v5')
    a(f'v_lshl_add_u32 {v(vT + 1)}, {v(vT + 1)}, 5, v7')
    a(f'v_add_u32 {v(vT + 1)}, {s(sT2)}, {v(vT + 1)}')
    a(f'v_mov_b32 {v(vT + 2)}, 0x40000000')
    a('v_cmp_lt_u32 vcc, 4, v5')
    a(f'v_cndmask_b32 {v(vWV)}, {v(vT + 1)}, {v(vT + 2)}, vcc')
    a(f'v_add_u32 {v(vWV + 1)}, {4 * 7168 - 1024}, {v(vWV)}')
    a.label('K1_setup_w_done')
    a(f's_lshl_b32 {s(sWstep)}, {s(sWstr)}, 5')
    a('v_lshlrev_b32 v5, 3, v2')
    a('s_waitcnt lgkmcnt(0)')
    srd(a, S_X, 4, 2048 * 1024 * 2)
    srd(a, S_W, 6, 1024 * 3072 * 2)
    a(f's_cmp_eq_u32 {s(sT0)}, 1')
    a(f's_cselect_b32 {s(S_W)}, s12, {s(S_W)}')
    a(f's_cselect_b32 {s(S_W + 1)}, s13, {s(S_W + 1)}')
    a(f's_cselect_b32 {s(S_W + 2)}, {1024 * 3584 * 2}, {s(S_W + 2)}')
    a(f's_and_b32 {s(S_W + 1)}, {s(S_W + 1)}, 0xffff')
    stamp(a, 11)
    for x in k1_dma_w(0) + k1_dma_x(0) + k1_dma_x(1):
        a(x)
    srd(a, S_B1, 14, 3584 * 2)
    srd(a, S_B1Z, 14, 3584 * 2)
    a(f's_cmp_eq_u32 {s(sTyp)}, 0')
    a(f's_cselect_b32 {s(S_B1Z + 2)}, 0, {s(S_B1Z + 2)}')
    BI = 36
    a(f's_lshl_b32 {s(sT3)}, {s(sGrp)}, 1')
    a(f's_add_u32 {s(sT3)}, {s(sT3)}, {s(sZ2)}')
    a(f's_lshl_b32 {s(sT3)}, {s(sT3)}, 5')
    a(f's_add_u32 {s(sT3)}, {s(sT3)}, {s(sA2)}')
    a(f'buffer_load_dwordx2 {v(BI, 2)}, v5, {s(S_B1Z, 4)}, {s(sT3)} offen')
    a(f'buffer_load_dwordx2 {v(BI + 2, 2)}, v5, {s(S_B1Z, 4)}, {s(sT3)} offen offset:32')
    a(f's_cmp_eq_u32 {s(sGrp)}, 0')
    a(f's_cselect_b32 {s(sT3)}, {s(sP0)}, {s(sP1)}')
    a(f's_lshl_b32 {s(sT3)}, {s(sT3)}, 5')
    a(f's_add_u32 {s(sT3)}, {s(sT3)}, {s(sA2)}')
    a(f'buffer_load_dwordx2 {v(BI + 4, 2)}, v5, {s(S_B1, 4)}, {s(sT3)} offen')
    a(f'buffer_load_dwordx2 {v(BI + 6, 2)}, v5, {s(S_B1, 4)}, {s(sT3)} offen offset:32')
    a(f's_lshl_b32 {s(sT3)}, {s(sS)}, 5')
    a(f's_add_u32 {s(sT3)}, {s(sT3)}, {s(sA2)}')
    a(f'buffer_load_dwordx2 {v(BI + 8, 2)}, v5, {s(S_B1, 4)}, {s(sT3)} offen')
    srd(a, S_WS, 24, WS_SIZE)
    srd(a, S_DBG, 22, 256)
    a(f's_mov_b32 {s(sT3)}, {EP_OFF}')
    a(f'buffer_load_dword {v(vNon)}, off, {s(S_WS, 4)}, {s(sT3)} sc1')
    if OPT['probar']:
        a('s_barrier')
    for x in k1_dma_w(1) + k1_dma_w(2) + k1_dma_x(0) + k1_dma_x(1):
        a(x)
    stamp(a, 12)
    srd(a, S_G, 18, 2048)
    a(f'v_lshlrev_b32 {v(vL16)}, 4, v1')
    a(f's_lshl_b32 {s(sRole)}, {s(sI)}, 5')
    a(f's_add_u32 {s(sRole)}, {s(sRole)}, {s(sC)}')
    a(f's_lshl_b32 {s(sFW)}, {s(sRole)}, 7')
    a(f's_add_u32 {s(sFW)}, {s(sFW)}, {F_WG}')
    a(f's_lshl_b32 {s(sT2)}, {s(sRole)}, 3')
    a(f's_add_u32 {s(sT2)}, {s(sT2)}, {s(sWave)}')
    a(f's_lshr_b32 {s(s2Kq)}, {s(sC)}, 3')
    a(f's_and_b32 {s(s2Cb)}, {s(sC)}, 7')
    a(f's_lshl_b32 {s(sEoff)}, {s(sT2)}, 2')
    a(f's_add_u32 {s(sEoff)}, {s(sEoff)}, {E_OFF}')
    a(f's_lshl_b32 {s(sGoff)}, {s(sT2)}, 11')
    a(f's_lshl_b32 {s(sH)}, {s(sT)}, 1')
    a(f's_add_u32 {s(sH)}, {s(sH)}, {s(sGrp)}')
    a(f's_mov_b32 {s(sL2E)}, {LOG2E}')
    a(f's_mov_b32 {s(sC60)}, 0x42700000')
    a(f's_mov_b32 {s(sEps)}, 0x358637bd')
    a(f's_lshl_b32 {s(sA2)}, {s(sI)}, 2')
    a(f's_add_u32 {s(sA2)}, {s(sA2)}, {s(sW3)}')
    a(f's_mul_i32 {s(sA2)}, {s(sA2)}, {4 * 144}')
    a(f's_mul_i32 {s(sT2)}, {s(sT)}, 7')
    a(f's_add_u32 {s(sA2)}, {s(sA2)}, {s(sT2)}')
    a(f's_add_u32 {s(sA2)}, {s(sA2)}, 32')
    a(f's_lshl_b32 {s(sA2)}, {s(sA2)}, 10')
    a(f'v_bfe_u32 {v(vT + 3)}, v1, 2, 2')
    a(f'v_and_b32 {v(vT + 4)}, 3, v1')
    a(f'v_lshl_add_u32 v5, v2, 3, {v(vT + 3)}')
    a(f'v_lshrrev_b32 v6, 1, {v(vT + 3)}')
    a('v_and_b32 v7, 1, v2')
    a('v_lshl_or_b32 v6, v7, 1, v6')
    a(f's_lshl_b32 {s(sT2)}, {s(sGrp)}, 1')
    for q in range(2):
        a(f's_add_u32 {s(sT3)}, {s(sT2)}, {q}')
        a(f'v_xor_b32 {v(vT)}, {s(sT3)}, v6')
        a(f'v_lshlrev_b32 {v(vT)}, 5, {v(vT)}')
        a(f'v_lshl_add_u32 {v(vT)}, v5, 7, {v(vT)}')
        a(f'v_lshl_add_u32 {v(vWZ12 + q)}, {v(vT + 4)}, 3, {v(vT)}')
    a(f'v_lshl_or_b32 v6, v7, 2, {v(vT + 3)}')
    for q in range(3):
        if q < 2:
            a(f's_add_u32 {s(sT3)}, {s(sT2)}, {q}')
        else:
            a(f's_mov_b32 {s(sT3)}, 4')
        a(f'v_xor_b32 {v(vT)}, {s(sT3)}, v6')
        a(f'v_lshlrev_b32 {v(vT)}, 5, {v(vT)}')
        a(f'v_lshl_add_u32 {v(vT)}, v5, 8, {v(vT)}')
        a(f'v_lshl_add_u32 {v(vT)}, {v(vT + 4)}, 3, {v(vT)}')
        a(f'v_add_u32 {v(vWZ3 + q)}, 8192, {v(vT)}')
    a('v_and_b32 v5, 15, v1')
    a('v_bfe_u32 v6, v1, 1, 3')
    a('v_xor_b32 v6, v6, v2')
    a(f's_lshl_b32 {s(sT3)}, {s(sW3)}, 13')
    a(f's_add_u32 {s(sT3)}, {s(sT3)}, 65536')
    a('v_lshlrev_b32 v5, 7, v5')
    a('v_lshl_add_u32 v5, v6, 4, v5')
    a(f'v_add_u32 {v(vXA0c)}, {s(sT3)}, v5')
    a(f'v_xor_b32 {v(vXA1c)}, 64, {v(vXA0c)}')
    a(f'v_mov_b32 {v(vXA0)}, {v(vXA0c)}')
    a(f'v_mov_b32 {v(vXA1)}, {v(vXA1c)}')
    a(f's_mov_b32 {s(sXR)}, 0')
    a('s_and_b32 s9, s9, 0xffff')
    pf_setup(a)
    a('v_and_b32 v5, 1, v1')
    a('v_lshlrev_b32 v5, 4, v5')
    a('v_lshl_add_u32 v5, v2, 11, v5')
    a(f's_lshl_b32 {s(sT3)}, {s(sWave)}, 13')
    a(f's_lshl_b32 {s(sT0)}, {s(s2Cb)}, 8')
    a(f's_add_u32 {s(sT3)}, {s(sT3)}, {s(sT0)}')
    a(f's_and_b32 {s(sT0)}, {s(sWave)}, 1')
    a(f's_lshl_b32 {s(sT0)}, {s(sT0)}, 2')
    a(f'v_xor_b32 v7, {s(sT0)}, v6')
    a('v_lshl_add_u32 v7, v7, 5, v5')
    a(f'v_add_u32 {v(vBV)}, {s(sT3)}, v7')
    a(f's_lshl_b32 {s(sM2)}, {s(sWave)}, 10')
    for n in range(2):
        for r in range(0, 16, 2):
            a(f'v_pk_mov_b32 {v(acc(n, 0) + r, 2)}, 0, 0')
    stamp(a, 1)
    a('s_waitcnt vmcnt(8)')
    for n in range(2, 7):
        b = BI + (n - 2) * 2
        r0 = acc(n, 0)
        a(f'v_lshlrev_b32 {v(r0)}, 16, {v(b)}')
        a(f'v_and_b32 {v(r0 + 1)}, 0xffff0000, {v(b)}')
        a(f'v_lshlrev_b32 {v(r0 + 2)}, 16, {v(b + 1)}')
        a(f'v_and_b32 {v(r0 + 3)}, 0xffff0000, {v(b + 1)}')
        for m in range(1, 4):
            for h in (0, 2):
                a(f'v_pk_mov_b32 {v(acc(n, m) + h, 2)}, {v(r0 + h, 2)}, {v(r0 + h, 2)} op_sel:[0,1]')
    a(f's_lshl_b32 {s(sT2)}, s2, 3')
    a(f's_add_u32 {s(sT2)}, {s(sT2)}, {s(sWave)}')
    a(f's_cmp_lg_u32 {s(sT2)}, 7')
    a('s_cbranch_scc1 K1_nopub')
    a(f'v_add_u32 {v(vNon)}, 1, {v(vNon)}')
    a(f'v_or_b32 {v(vNon)}, 0x80000000, {v(vNon)}')
    a(f's_mov_b32 {s(sT3)}, {EP_OFF}')
    a(f'buffer_store_dword {v(vNon)}, off, {s(S_DBG, 4)}, 0 sc1')
    a(f'buffer_store_dword {v(vNon)}, off, {s(S_WS, 4)}, {s(sT3)} sc1')
    a('s_waitcnt vmcnt(0)')
    a.label('K1_nopub')
    srd(a, S2_B, 16, 3584 * 1024 * 2)
    a(f's_mul_i32 {s(s2Boff)}, {s(s2Kq)}, {28 * 65536}')
    a(f's_mul_i32 {s(s2Ba)}, {s(s2Kq)}, {8 * 65536}')
    a(f's_lshl_b32 {s(sT2)}, {s(sTyp)}, 1')
    a(f's_add_u32 {s(sT2)}, {s(sT2)}, {s(sGrp)}')
    a(f's_cmp_eq_u32 {s(sT2)}, 1')
    a('s_cbranch_scc1 K1_v01')
    a(f's_cmp_eq_u32 {s(sT2)}, 2')
    a('s_cbranch_scc1 K1_v10')
    a(f's_cmp_eq_u32 {s(sT2)}, 3')
    a('s_cbranch_scc1 K1_v11')
    for typ in range(2):
        for grp in range(2):
            L = f'K1_v{typ}{grp}'
            a.label(L)
            if OPT['yprio'] and grp == 1:
                a('s_setprio 1')
            stamp(a, 2)
            a('s_barrier')
            stamp(a, 3)
            for x in k1_reads(grp, 0, 0, 0):
                a(x)
            a(f's_mov_b32 {s(sCnt)}, 1')
            a('s_waitcnt vmcnt(6) lgkmcnt(0)')
            a('s_barrier')
            stamp(a, 4)
            k1_substep(a, grp, typ, 0, dma=False, vm=8,
                       extra=group_dma(k1_dma_w(3) + k1_dma_x(0) + k1_dma_w(0) + k1_dma_x(1)))
            for b in range(1, 4):
                k1_substep(a, grp, typ, b, vm=8)
            a.label(L + '_loop')
            if OPT['stamp']:
                a('s_memtime s[26:27]')
                a(f's_add_u32 m0, {s(sCnt)}, 20')
                a('s_waitcnt lgkmcnt(0)')
                a(f'v_writelane_b32 v{vSt}, s26, m0')
            pf = OPT['b2pf']
            for b in range(4):
                k1_substep(a, grp, typ, b, extra=b2_touch() if pf else None, vm=8)
            a(f's_add_u32 {s(sCnt)}, {s(sCnt)}, 1')
            a(f's_cmp_lt_u32 {s(sCnt)}, 7')
            a(f's_cbranch_scc1 {L}_loop')
            stamp(a, 5)
            nl = [[f'buffer_load_dword {v(vNon)}, off, {s(S_DBG, 4)}, 0 sc1']]
            gl = [[f'buffer_load_dwordx4 {v(vE, 4)}, {v(vL16)}, {s(S_X, 4)}, {s(sGoff)} offen'],
                  [f'buffer_load_dwordx4 {v(vE + 4, 4)}, {v(vL16)}, {s(S_X, 4)}, {s(sGoff)} offen offset:1024'],
                  [f'buffer_load_dwordx4 {v(vE + 8, 4)}, {v(vL16)}, {s(S_G, 4)}, 0 offen'],
                  [f'buffer_load_dwordx4 {v(vE + 12, 4)}, {v(vL16)}, {s(S_G, 4)}, 0 offen offset:1024']]
            k1_substep(a, grp, typ, 0, dma=False, vm=9, extra=gl + nl)
            k1_substep(a, grp, typ, 1, dma=False, vm=0)
            k1_substep(a, grp, typ, 2, dma=False, vm=63, fill=gate_code())
            bd = []
            for j in range(14):
                bd += k2_dma_b(j)
            un = group_dma(bd)
            un = [un[2 * q] + un[2 * q + 1] for q in range(7)]
            k1_substep(a, grp, typ, 3, dma=False, reads=False, last=True, extra=un)
            stamp(a, 6)
            if OPT['eprio']:
                a(f's_setprio {OPT["eprio"]}')
            if typ == 0:
                k1_epilogue_A(a, grp, L)
            else:
                k1_epilogue_B(a, grp, L)
            a('s_branch P2_start')
    a.label('P2_start')
    if OPT['eprio']:
        a('s_setprio 0')
    stamp(a, 9)
    get_nonce(a, 'P2n')
    a(f's_and_b32 {s(sT0)}, {s(sRole)}, 0xf8')
    a(f's_lshl_b32 {s(sT0)}, {s(sT0)}, 7')
    a(f's_add_u32 {s(sT0)}, {s(sT0)}, {F_WG}')
    a('v_and_b32 v5, 3, v1')
    a('v_lshlrev_b32 v5, 8, v5')
    a(f'v_add_u32 {v(vF3)}, {s(sT0)}, v5')
    a(f'v_add_u32 {v(vFa)}, 128, {v(vF3)}')
    a(f'v_add_u32 {v(vOFa)}, 4, {v(vFa)}')
    a(f's_lshl_b32 {s(sT0)}, {s(sI)}, 12')
    a(f's_add_u32 {s(sT0)}, {s(sT0)}, {F_WG}')
    a('v_lshlrev_b32 v5, 7, v1')
    a(f'v_add_u32 v6, {s(sT0)}, v5')
    a('v_cmp_gt_u32 vcc, 32, v1')
    a(f'v_cndmask_b32 {v(vOFa)}, {v(vOFa)}, v6, vcc')
    a(f's_lshl_b32 {s(sT2)}, {s(sI)}, 4')
    a(f's_lshl_b32 {s(sT3)}, {s(sWave)}, 1')
    a(f's_add_u32 {s(sT2)}, {s(sT2)}, {s(sT3)}')
    a(f's_and_b32 {s(sT3)}, {s(s2Kq)}, 1')
    a(f's_add_u32 {s(sT3)}, {s(sT2)}, {s(sT3)}')
    a(f's_mul_i32 {s(sT0)}, {s(sT3)}, {144 * 1024}')
    a(f'v_add_u32 {v(k2AV)}, {s(sT0)}, {v(vL16)}')
    a(f's_xor_b32 {s(sT1)}, {s(sT3)}, 1')
    a(f's_mul_i32 {s(sT0)}, {s(sT1)}, {144 * 1024}')
    a(f'v_add_u32 {v(k2AV + 1)}, {s(sT0)}, {v(vL16)}')
    a('v_and_b32 v5, 15, v1')
    a('v_lshlrev_b32 v5, 2, v5')
    for m, sr in ((0, sT3), (1, sT1)):
        a(f's_lshl_b32 {s(sT0)}, {s(sr)}, 6')
        a(f's_add_u32 {s(sT0)}, {s(sT0)}, {E_OFF}')
        a(f'v_add_u32 {v(k2E + m)}, {s(sT0)}, v5')
    a(f's_lshl_b32 {s(sEoff)}, {s(sT3)}, 4')
    a(f's_mul_i32 {s(s2Aoff)}, {s(s2Kq)}, {28 * 1024}')
    a(f's_add_u32 {s(s2Aoff)}, {s(s2Aoff)}, {32 * 1024}')
    a(f's_lshl_b32 {s(s2Aa)}, {s(s2Kq)}, 13')
    a(f's_lshl_b32 {s(sT0)}, {s(sT)}, 7')
    a(f's_add_u32 {s(sT0)}, {s(sT0)}, {F_KV}')
    a(f'v_add_u32 {v(vKa)}, {s(sT0)}, v5')
    def noncrit(tag):
        a(f'v_bfe_u32 v3, v1, 2, 2')
        a(f'v_lshl_add_u32 v5, v2, 2, v3')
        a('v_and_b32 v6, 7, v5')
        a(f's_lshr_b32 {s(sT2)}, {s(s2Kq)}, 1')
        a(f's_lshl_b32 {s(sT2)}, {s(sT2)}, 2')
        a(f'v_xor_b32 v6, {s(sT2)}, v6')
        a('v_lshlrev_b32 v5, 8, v5')
        a('v_and_b32 v3, 3, v1')
        a('v_lshl_add_u32 v5, v3, 3, v5')
        for n in range(8):
            a(f'v_xor_b32 v7, {n}, v6')
            a(f'v_lshl_add_u32 {v(k2RA + n)}, v7, 5, v5')
            a(f'v_add_u32 {v(k2RA + 8 + n)}, 65536, {v(k2RA + n)}')
            a(f'v_add_u32 {v(k2RA + 16 + n)}, 131072, {v(k2RA + n)}')
        srd(a, S2_OUT, 20, 2048 * 1024 * 2)
        srd(a, S2_WO, 8, 1024 * 2048)
        srd(a, S2_KV, 24, WS_SIZE)
        a(f's_cmp_ge_u32 {s(sWave)}, 6')
        a(f's_cselect_b32 {s(S2_KV + 2)}, 0, {s(S2_KV + 2)}')
        a(f's_mul_i32 {s(sKVo)}, {s(sT)}, {2 * 49152}')
        a(f's_add_u32 {s(sKVo)}, {s(sKVo)}, {KVP_OFF}')
        a(f's_lshl_b32 {s(sT3)}, {s(sWave)}, 11')
        a(f's_add_u32 {s(sKVo)}, {s(sKVo)}, {s(sT3)}')
        a(f's_cmp_ge_u32 {s(sWave)}, 3')
        a(f's_cselect_b32 {s(sT3)}, {49152 - 6144}, 0')
        a(f's_add_u32 {s(sKVo)}, {s(sKVo)}, {s(sT3)}')
        a(f's_cmp_eq_u32 {s(sTyp)}, 0')
        a('s_cbranch_scc1 P2_noq' + tag)
        for n in range(2):
            for m in range(4):
                phi4(a, acc(n, m), CH + (m & 1) * 4)
        for m in range(4):
            for n in range(2):
                cvt4(a, PQ + m * 4 + 2 * n, acc(n, m))
        a.label('P2_noq' + tag)
        for r in range(0, 64, 2):
            a(f'v_pk_mov_b32 {v(k2ACC + r, 2)}, 0, 0')


    a(f's_cmp_eq_u32 {s(sGrp)}, 1')
    a('s_cbranch_scc1 P2_g1skip')
    noncrit('a')
    a.label('P2_g1skip')
    a('s_waitcnt vmcnt(0)')
    a('s_barrier')
    stamp(a, 10)
    a(f's_cmp_lg_u32 {s(sWave)}, 3')
    a('s_cbranch_scc1 P2_noflag')
    a(f'buffer_store_dword {v(vNon)}, off, {s(S_WS, 4)}, {s(sFW)} sc1')
    a(f's_cmp_eq_u32 {s(sTyp)}, 0')
    a('s_cbranch_scc1 P2_c1')
    a('v_cmp_gt_u32 vcc, 32, v1')
    a(f'v_cndmask_b32 {v(vFa)}, {v(vKa)}, {v(vFa)}, vcc')
    a.label('P2_c1')
    a(f'v_mov_b32 {v(vFv)}, 0')
    flag_check(a, 'P2c1', vFv, vFa, sleep=0)
    a.label('P2_noflag')
    a(f's_cmp_eq_u32 {s(sGrp)}, 0')
    a('s_cbranch_scc1 P2_g0skip')
    if OPT['g1mid']:
        noncrit('b')
    a.label('P2_g0skip')
    a('s_barrier')
    stamp(a, 13)
    vmc, vmb, vm7 = VM(), VM(), VM()

    def emit(lst, tag, only=None):
        for x in lst:
            a(x)
            if x.startswith('buffer_'):
                if only is None:
                    for t in (vmc, vmb, vm7):
                        t.issue(tag)
                else:
                    only.issue(tag)
    for j in range(3):
        emit(k2_load_a(j), f'A{j}')
    if not OPT['g1mid']:
        a(f's_cmp_eq_u32 {s(sGrp)}, 0')
        a('s_cbranch_scc1 P2_g0skip2')
        noncrit('b')
        a.label('P2_g0skip2')
    for x in k2_reads(0, 0):
        a(x)

    def bblock(j):
        L = f'P2b{j}'
        if j in (0, 2, 4, 6, 8):
            c = j // 2
            a(f's_cmp_eq_u32 {s(sTyp)}, 0')
            a(f's_cbranch_scc1 {L}')
            if c > 0:
                a(f's_waitcnt vmcnt({vmb.count(f"C{c - 1}")})')
                for q in range(4):
                    if c == 1:
                        a(f'v_pk_add_f32 {v(SUM + q * 2, 2)}, {v(CH + q * 2, 2)}, {v(CH + 8 + q * 2, 2)}')
                    else:
                        a(f'v_pk_add_f32 {v(SUM + q * 2, 2)}, {v(SUM + q * 2, 2)}, {v(CH + q * 2, 2)}')
                        a(f'v_pk_add_f32 {v(SUM + q * 2, 2)}, {v(SUM + q * 2, 2)}, {v(CH + 8 + q * 2, 2)}')
            if c < 4:
                for i in range(2):
                    a(f's_add_u32 {s(sT2)}, {s(sKVo)}, {(2 * c + i) * 6144}')
                    emit([f'buffer_load_dwordx4 {v(CH + (i * 2 + hh) * 4, 4)}, {v(vL16)}, {s(S2_KV, 4)}, {s(sT2)} offen offset:{hh * 1024} sc1'
                          for hh in range(2)], f'C{c}', vmb)
            else:
                for q in range(4):
                    a(f'v_cvt_pk_bf16_f32 {v(CH + q)}, {v(SUM + 2 * q)}, {v(SUM + 2 * q + 1)}')
                a(f's_lshl_b32 {s(sT3)}, {s(sWave)}, 10')
                a(f's_add_u32 {s(sT3)}, {s(sT3)}, {KFL}')
                a(f'v_add_u32 {v(k2T)}, {s(sT3)}, {v(vL16)}')
                a(f'ds_write_b128 {v(k2T)}, {v(CH, 4)}')
            a.label(L)
        if j == 12:
            a(f's_cmp_eq_u32 {s(sTyp)}, 0')
            a(f's_cbranch_scc1 {L}')
            a(f's_mul_i32 {s(sT3)}, {s(sGrp)}, 3072')
            a(f's_add_u32 {s(sT3)}, {s(sT3)}, {KFL}')
            a(f'v_add_u32 {v(k2T)}, {s(sT3)}, {v(vL16)}')
            for f in range(3):
                a(f'ds_read_b128 {v(KF + f * 4, 4)}, {v(k2T)} offset:{f * 1024}')
            a(f's_mul_i32 {s(sKVo)}, {s(sT)}, 7')
            a(f's_add_u32 {s(sKVo)}, {s(sKVo)}, 32')
            a(f's_sub_u32 {s(sKVo)}, {s(sH)}, {s(sKVo)}')
            a(f's_lshl_b32 {s(sKVo)}, {s(sKVo)}, 10')
            a(f's_add_u32 {s(sKVo)}, {s(sKVo)}, {s(sA2)}')
            a.label(L)
        if j in (13, 14, 15, 16):
            m = j - 13
            a(f's_cmp_eq_u32 {s(sTyp)}, 0')
            a(f's_cbranch_scc1 {L}')
            for b in (2, 0, 1):
                a(f'v_mfma_f32_16x16x32_bf16 {v(NUM + b * 4, 4)}, {v(KF + b * 4, 4)}, {v(PQ + m * 4, 4)}, 0')
            dn = NUM + 8
            a(f'v_add_f32 {v(dn)}, {s(sEps)}, {v(dn)}')
            a(f'v_rcp_f32 {v(dn)}, {v(dn)}')
            for b in range(2):
                r = NUM + b * 4
                for h in (0, 2):
                    a(f'v_pk_mul_f32 {v(r + h, 2)}, {v(r + h, 2)}, {v(dn, 2)} op_sel_hi:[1,0]')
                cvt4(a, OOUT + 2 * b, r)
            emit([f'buffer_store_dwordx4 {v(OOUT, 4)}, {v(vL16)}, {s(S_WS, 4)}, {s(sKVo)} offen sc1'], 'O', vmb)
            a(f's_add_u32 {s(sKVo)}, {s(sKVo)}, {144 * 1024}')
            a.label(L)
        if j == 18:
            a(f's_lshl_b32 {s(sT0)}, {s(sWave)}, 1')
            a(f's_or_b32 {s(sT0)}, {s(sT0)}, {s(sTyp)}')
            a(f's_cmp_eq_u32 {s(sT0)}, 13')
            a(f's_cbranch_scc0 {L}')
            a(f'buffer_store_dword {v(vNon)}, off, {s(S_WS, 4)}, {s(sFW)} offset:4 sc1')
            a.label(L)

    CHK = {8: (11, vF3, 'c2'), 21: (23, vOFa, 'c3')}
    for j in range(36):
        cur, nxt = j & 1, (j + 1) & 1
        kind, idx = ORDER[j]
        if j == 0:
            a(f's_waitcnt vmcnt({vmc.count("A0")}) lgkmcnt(0)')
            stamp(a, 14)
        bblock(j)
        if j in CHK:
            a(f's_cmp_lg_u32 {s(sWave)}, 7')
            a(f's_cbranch_scc1 P2_nl{j}')
            emit([f'buffer_load_dword {v(vOF)}, {v(CHK[j][1])}, {s(S_WS, 4)}, 0 offen sc1'], CHK[j][2], vm7)
            a.label(f'P2_nl{j}')
        if j == 24:
            emit([f'buffer_load_dword {v(k2E + m)}, {v(k2E + m)}, {s(S_WS, 4)}, 0 offen sc1' for m in range(2)], 'E')
        if j == 28:
            a(f's_waitcnt vmcnt({vmc.count("E")})')
            for m in range(2):
                a(f'v_rcp_f32 {v(k2E + m)}, {v(k2E + m)}')
            for q in range(2):
                for h in range(4):
                    a(f'v_mul_f32 {v(k2ACC + q * 4 + h)}, {v(k2E + (q & 1))}, {v(k2ACC + q * 4 + h)}')
        A0 = k2A + (j % NA) * 8
        if kind == 'b' and idx % 14 in (2, 11):
            a(f's_bitcmp0_b32 {s(s2Kq)}, 0')
            a(f's_cbranch_scc0 K2_sp1_{j}')
            a(f'v_swap_b32 {v(A0 + 2)}, {v(A0 + 4)}')
            a(f'v_swap_b32 {v(A0 + 3)}, {v(A0 + 5)}')
            a(f's_branch K2_spd_{j}')
            a.label(f'K2_sp1_{j}')
            a(f'v_swap_b32 {v(A0)}, {v(A0 + 6)}')
            a(f'v_swap_b32 {v(A0 + 1)}, {v(A0 + 7)}')
            a.label(f'K2_spd_{j}')
            a('s_nop 1')
        units = []
        if j + 3 < 36:
            units += [(u, f'A{j + 3}') for u in group_dma(k2_load_a(j + 3))]
        if j == 6:
            units += [(k2_dma_b(18), 'B18')]
        jb = j + 14 if j < 4 else j + 13
        if j not in (4, 5) and jb < 36:
            units += [(k2_dma_b(jb), f'B{jb}')]
        rd = k2_reads(nxt, (j + 1) % RING) if j < 35 else []
        k = ui = 0
        for n in range(8):
            for m in range(2):
                d = v(k2acc(n, m), 4)
                if j == 28 and k + 2 < 16:
                    for h in range(4):
                        a(f'v_mul_f32 {v(k2ACC + (k + 2) * 4 + h)}, {v(k2E + (k & 1))}, {v(k2ACC + (k + 2) * 4 + h)}')
                a(f'v_mfma_f32_16x16x32_bf16 {d}, {v(k2BF + cur * 32 + n * 4, 4)}, {v(A0 + m * 4, 4)}, {d}')
                for _ in range(OPT['p2rd']):
                    if rd:
                        a(rd.pop(0))
                if k in OPT['p2pos'] and ui < len(units):
                    emit(units[ui][0], units[ui][1])
                    ui += 1
                k += 1
        assert ui == len(units)
        if j == 35:
            break
        for jl, (jc, va, nm) in CHK.items():
            if j == jc:
                a(f's_cmp_lg_u32 {s(sWave)}, 7')
                a(f's_cbranch_scc1 P2_nc{j}')
                a(f's_waitcnt vmcnt({vm7.count(nm)})')
                flag_check(a, 'P2' + nm, vOF, va)
                a.label(f'P2_nc{j}')
        def need(t):
            n = t.count(f'A{j + 1}')
            if j % 6 == 5:
                for jb in range(j + 2, j + 8):
                    if 14 <= jb < 36:
                        n = min(n, t.count(f'B{jb}'))
                if j == 17 and t is vmb:
                    n = min(n, t.count('O'))
            return n
        nc, nb_ = need(vmc), need(vmb)
        if nc != nb_:
            a(f's_cmp_eq_u32 {s(sTyp)}, {1 if nc < nb_ else 0}')
            a(f's_cbranch_scc1 P2_w{j}')
            a(f's_waitcnt vmcnt({min(nc, nb_)})')
            a.label(f'P2_w{j}')
        a(f's_waitcnt vmcnt({max(nc, nb_)}) lgkmcnt(0)')
        if j % 6 == 5:
            a('s_barrier')
    stamp(a, 16)
    a(f's_lshl_b32 {s(sT2)}, {s(sWave)}, 11')
    PK = 8
    for d in (1, 2, 3):
        a(f's_xor_b32 {s(sT0)}, {s(sRole)}, {d << 3}')
        a(f's_mul_i32 {s(sT0)}, {s(sT0)}, 49152')
        a(f's_add_u32 {s(sT0)}, {s(sT0)}, {s(sT2)}')
        a(f's_add_u32 {s(sT0)}, {s(sT0)}, {XCH_OFF + (d - 1) * 16384}')
        m, nb = d & 1, (d >> 1) * 4
        p = PK + (d - 1) * 8
        for n in range(4):
            cvt4(a, p + n * 2, k2acc(nb + n, m))
        for q in range(2):
            a(f'buffer_store_dwordx4 {v(p + q * 4, 4)}, {v(vL16)}, {s(S_WS, 4)}, {s(sT0)} offen offset:{q * 1024} sc1')
    a(f'v_add_f32 {v(k2E)}, 1.0, {v(k2E)}')
    a(f'v_rcp_f32 {v(k2E)}, {v(k2E)}')
    a(f's_lshl_b32 {s(sT0)}, {s(sRole)}, 3')
    a(f's_add_u32 {s(sT0)}, {s(sT0)}, {s(sWave)}')
    a(f's_lshl_b32 {s(sT0)}, {s(sT0)}, 7')
    a('v_and_b32 v5, 3, v1')
    a('v_max_u32 v5, 1, v5')
    a('v_lshlrev_b32 v5, 13, v5')
    a(f'v_xor_b32 v5, {s(sT0)}, v5')
    a(f'v_add_u32 {v(vFa)}, {F_X}, v5')
    a(f's_add_u32 {s(sT0)}, {s(sT0)}, {F_X}')
    a(f's_mul_i32 {s(sT1)}, {s(sRole)}, 49152')
    a(f's_add_u32 {s(sT1)}, {s(sT1)}, {s(sT2)}')
    a(f's_add_u32 {s(sT1)}, {s(sT1)}, {XCH_OFF}')
    a('v_and_b32 v5, 15, v1')
    a('v_and_b32 v6, 7, v1')
    a('v_lshrrev_b32 v7, 1, v2')
    a('v_xor_b32 v6, v6, v7')
    a('v_lshlrev_b32 v5, 7, v5')
    a('v_and_b32 v7, 1, v2')
    a('v_lshl_add_u32 v5, v7, 3, v5')
    a(f's_add_u32 {s(sC)}, {s(sT2)}, {KFL}')
    a(f'v_add_u32 v5, {s(sC)}, v5')
    for n in range(4):
        a(f'v_xor_b32 v7, {2 * n}, v6')
        a(f'v_lshl_add_u32 {v(k2RA + n)}, v7, 4, v5')
    a('v_lshrrev_b32 v6, 3, v1')
    a('v_and_b32 v7, 7, v1')
    a(f'v_xor_b32 {v(k2T)}, v6, v7')
    a(f'v_lshlrev_b32 {v(k2T)}, 4, {v(k2T)}')
    a(f'v_lshl_add_u32 {v(k2T)}, v6, 7, {v(k2T)}')
    a(f'v_add_u32 {v(k2T)}, {s(sC)}, {v(k2T)}')
    a('v_lshlrev_b32 v7, 4, v7')
    a('v_lshl_add_u32 v7, v6, 11, v7')
    a(f'v_mov_b32 {v(vFv)}, 0')
    stamp(a, 17)
    a('s_waitcnt vmcnt(0)')
    a(f'buffer_store_dword {v(vNon)}, off, {s(S_WS, 4)}, {s(sT0)} sc1')
    stamp(a, 18)
    flag_check(a, 'K2x', vFv, vFa, sleep=0)
    stamp(a, 19)
    RX = 40
    for d in range(3):
        for q in range(2):
            a(f'buffer_load_dwordx4 {v(RX + d * 8 + q * 4, 4)}, {v(vL16)}, {s(S_WS, 4)}, {s(sT1)} offen offset:{q * 1024} sc1')
        if d < 2:
            a(f's_add_u32 {s(sT1)}, {s(sT1)}, 16384')
    a(f's_lshl_b32 {s(sT0)}, {s(sEoff)}, 11')
    a(f's_lshl_b32 {s(sT2)}, {s(s2Cb)}, 8')
    a(f's_add_u32 {s(sT0)}, {s(sT0)}, {s(sT2)}')
    a(f's_lshr_b32 {s(sT2)}, {s(s2Kq)}, 1')
    a(f's_lshl_b32 {s(sT2)}, {s(sT2)}, 7')
    a(f's_add_u32 {s(sT0)}, {s(sT0)}, {s(sT2)}')
    a(f's_add_u32 {s(sT2)}, {s(sT0)}, {8 * 2048}')
    UP = 64
    for d in range(3):
        a(f's_waitcnt vmcnt({4 - 2 * d})')
        for n in range(4):
            r = k2acc(n, 0)
            u = UP + (n & 1) * 4
            for h in range(2):
                src = RX + d * 8 + n * 2 + h
                a(f'v_lshlrev_b32 {v(u + 2 * h)}, 16, {v(src)}')
                a(f'v_and_b32 {v(u + 2 * h + 1)}, 0xffff0000, {v(src)}')
            for h in (0, 2):
                a(f'v_pk_add_f32 {v(r + h, 2)}, {v(r + h, 2)}, {v(u + h, 2)}')
    for n in range(4):
        r = k2acc(n, 0)
        for h in (0, 2):
            a(f'v_pk_mul_f32 {v(r + h, 2)}, {v(r + h, 2)}, {v(k2E, 2)} op_sel_hi:[1,0]')
        cvt4(a, 8 + n * 2, r)
        a(f'ds_write_b64 {v(k2RA + n)}, {v(8 + n * 2, 2)}')
    a('s_waitcnt lgkmcnt(0)')
    a(f'ds_read_b128 v[16:19], {v(k2T)}')
    a(f'ds_read_b128 v[20:23], {v(k2T)} offset:1024')
    a('s_waitcnt lgkmcnt(1)')
    a(f'buffer_store_dwordx4 v[16:19], v7, {s(S2_OUT, 4)}, {s(sT0)} offen{OPT["nto"]}')
    a('s_waitcnt lgkmcnt(0)')
    a(f'buffer_store_dwordx4 v[20:23], v7, {s(S2_OUT, 4)}, {s(sT2)} offen{OPT["nto"]}')
    if OPT['stamp']:
        a('s_waitcnt vmcnt(0)')
        stamp(a, 20)
        a(f's_lshl_b32 {s(sT0)}, s2, 3')
        a(f's_add_u32 {s(sT0)}, {s(sT0)}, {s(sWave)}')
        a(f's_lshl_b32 {s(sT0)}, {s(sT0)}, 8')
        a(f's_add_u32 {s(sT0)}, {s(sT0)}, {STAMP_OFF}')
        a('v_lshlrev_b32 v0, 2, v1')
        a(f'buffer_store_dword v{vSt}, v0, {s(S_WS, 4)}, {s(sT0)} offen')
        if OPT['dbgout']:
            a(f's_lshl_b32 {s(sT0)}, s2, 3')
            a(f's_add_u32 {s(sT0)}, {s(sT0)}, {s(sWave)}')
            a(f's_cmp_lg_u32 {s(sT0)}, {OPT["dbgout"]}')
            a('s_cbranch_scc1 K_end')
            a(f'v_readlane_b32 {s(sT1)}, v{vSt}, 32')
            for k, idx in enumerate([11, 12, 1, 3, 4, 5, 6, 7, 10, 13, 14, 16, 18, 19, 20]):
                a(f'v_readlane_b32 {s(sT2)}, v{vSt}, {32 + idx}')
                a(f's_sub_u32 {s(sT2)}, {s(sT2)}, {s(sT1)}')
                a(f'v_mov_b32 v5, {s(sT2)}')
                a(f'buffer_store_dword v5, off, {s(S_DBG, 4)}, 0 offset:{4 * (k + 1)}')
    a.label('K_end')
    a('s_endpgm')
    a.label('K_code_end')


HEADER = open('cdna_kernels/%s.s.ref' % NAME).read().split('; Override launch')[0]


def build():
    out = HEADER
    out += '; @launch grid=(256,1,1) block=(512,1,1) lds=163840\n'
    out += '.amdgcn_target "amdgcn-amd-amdhsa--gfx950"\n.text\n'
    a = Asm()
    gen(a)
    out += f'.globl {KN}\n.p2align 8\n.type {KN},@function\n'
    out += f'.set CODE_LAST, K_code_end - {KN} - 64\n'
    out += a.finalize()
    out += f'''.section .rodata,"a"
.p2align 6
.amdhsa_kernel {KN}
  .amdhsa_next_free_vgpr 256
  .amdhsa_next_free_sgpr 102
  .amdhsa_accum_offset 256
  .amdhsa_group_segment_fixed_size 0
  .amdhsa_kernarg_size 88
  .amdhsa_user_sgpr_count 2
  .amdhsa_user_sgpr_kernarg_segment_ptr 1
  .amdhsa_system_sgpr_workgroup_id_x 1
.end_amdhsa_kernel
'''
    return out


if __name__ == '__main__':
    path = sys.argv[1] if len(sys.argv) > 1 else f'cdna_kernels/{NAME}.s'
    for kv in sys.argv[2:]:
        k, val = kv.split('=', 1)
        if val in ('True', 'False'):
            val = val == 'True'
        elif val.lstrip('-').isdigit():
            val = int(val)
        elif ',' in val:
            val = tuple(int(x) for x in val.split(','))
        if k.startswith('nt'):
            val = ' ' + val.replace('_', ' ')
        OPT[k] = val
    open(path, 'w').write(build())
```

```python
import sys
from asmlib import Asm, v, s

NAME = 'gated_mix__linear_attn_block__dense_activation_mish__prompt'
KN = NAME + '_kernel'

A2_OFF = 0
E_OFF = 0x1300000
FLG_OFF = 0x1310000
F_KV = FLG_OFF
F_WG = FLG_OFF + 0x2000
F_X = 0x2500000
F_W = FLG_OFF + 0xA000
EP_OFF = FLG_OFF + 0xF000
KVP_OFF = 0x1400000
XCH_OFF = 0x1800000
STAMP_OFF = 0x3000000
WS_SIZE = 268435456
LOG2E = 0x3fb8aa3b
SPIN_MAX = 100000

OPT = dict(stamp=False, dma_every=3, b2pf=True, codepf=True, b2u=1, b2all=0, pfx=None, g1mid=False, eprio=2, yprio=False, yprio2=False, nopk=False, ntw='', ntx='', ntb='', ntp='', probar=False, xp_same=False, u1=(0,0,0,1,1,2,2,2), p2pos=(3,7,10,13), xp2='', asc=' sc1', fastmish=True, p2rd=2, b0=2)

S_X, S_W, S_WS, S_DBG, S_B1, S_B1Z, S_G, S_PF = 28, 32, 36, 40, 44, 48, 52, 88
S2_B, S2_OUT, S2_AL = 44, 48, 52
sI, sT, sTyp, sWave, sW3, sGrp = 56, 57, 58, 59, 60, 61
sP0, sP1, sS, sZ2 = 62, 63, 64, 65
sWstr, sWoff, sWstep = 66, 67, 68
sXK, sXD, sXR, sCnt = 69, 70, 71, 72
sT0, sT1, sT2, sT3 = 73, 74, 75, 76
sM0W, sM0X = 77, 78
sC, sL2E = 79, 80
sH, sNon = 82, 83
sPFo = 84
sPFu, sPFu1, sPFnr = 3, 10, 11
sPF2b, sPF2nr, sPF2o = 14, 4, 5
sC60, sEps, sEoff = 85, 86, 87
sA2 = 92
s2Cb, s2Kq = 94, 95
s2Aoff, s2Boff, sGoff, sKVo, sFW = 96, 97, 98, 99, 100
sM2, sRole = 101, 93
s2Asw = 81
s2Aa, s2Ba = 18, 19
vOF = 111
vOFa = 112
vSt = 4
WF, XF = 8, 64
vXA0c, vXA1c, vXA0, vXA1 = 96, 97, 98, 99
vWZ12, vWZ3 = 100, 102
vXV, vWV = 105, 107
vPF = 109
vNon = 110
vL16 = 113
vBV = 114
vT = 116
ACC = 128
vE = 240
RING = 18
NA = 4
k2A = 8
PQ = 40
CH = 56
SUM = 72
KF, NUM, OOUT = 56, 68, 116
k2RA = 80
k2AV = 104
k2E = 106
vFa, vFv, vKa, vF3 = 120, 121, 122, 123
k2T = 124
k2ACC = 128
k2BF = 192
S2_WO = 88
S2_KV = 28


class VM:
    def __init__(self):
        self.ops = []

    def issue(self, tag):
        self.ops.append(tag)

    def count(self, tag):
        idx = max(i for i, t in enumerate(self.ops) if t == tag)
        return min(63, len(self.ops) - 1 - idx)


def stamp(a, idx):
    if not OPT['stamp']:
        return
    a('s_memtime s[26:27]')
    a('s_waitcnt lgkmcnt(0)')
    a(f'v_writelane_b32 v{vSt}, s26, {idx}')
    a('s_memrealtime s[26:27]')
    a('s_waitcnt lgkmcnt(0)')
    a(f'v_writelane_b32 v{vSt}, s26, {idx + 32}')


def srd(a, base, ptr, nbytes):
    a(f's_mov_b32 {s(base)}, {s(ptr)}')
    a(f's_and_b32 {s(base+1)}, {s(ptr+1)}, 0xffff')
    a(f's_mov_b32 {s(base+2)}, {nbytes}')
    a(f's_mov_b32 {s(base+3)}, 0x00020000')


def acc(n, m):
    return ACC + (n * 4 + m) * 4


def wf(buf, n):
    return WF + buf * 28 + n * 4


def xf(buf, m):
    return XF + buf * 16 + m * 4


def k1_reads(grp, buf, wslot, kk):
    nt = 7 if grp == 0 else 6
    xa = vXA0 if kk == 0 else vXA1
    xs = [f'ds_read_b128 {v(xf(buf, m), 4)}, {v(xa)} offset:{m * 2048}' for m in range(4)]
    ws = []
    for n in range(nt):
        if n < 4:
            addr = vWZ12 + (n & 1)
            off = wslot * 16384 + (4096 if n >= 2 else 0)
            d2 = 512
        else:
            addr = vWZ3 + (n - 4)
            off = wslot * 16384
            d2 = 1024
        ws.append(f'ds_read_b64_tr_b16 {v(wf(buf, n), 2)}, {v(addr)} offset:{off}')
        ws.append(f'ds_read_b64_tr_b16 {v(wf(buf, n) + 2, 2)}, {v(addr)} offset:{off + d2}')
    return ws[:2] + xs + ws[2:]


def k1_dma_w(slot):
    out = [f's_add_u32 m0, {s(sM0W)}, {slot * 16384}']
    for j in range(2):
        out.append(f'buffer_load_dwordx4 {v(vWV + j)}, {s(S_W, 4)}, {s(sWoff)} offen offset:{j * 1024}{OPT["ntw"]} lds')
    out.append(f's_add_u32 {s(sWoff)}, {s(sWoff)}, {s(sWstep)}')
    return out


def k1_dma_x(par):
    out = []
    if par == 0:
        out.append(f's_add_u32 {s(sXK)}, {s(sXK)}, 128')
        out.append(f's_add_u32 {s(sXD)}, {s(sXD)}, 32768')
        out.append(f's_cmp_eq_u32 {s(sXD)}, 98304')
        out.append(f's_cselect_b32 {s(sXD)}, 0, {s(sXD)}')
        out.append(f's_add_u32 m0, {s(sXD)}, {s(sM0X)}')
        so = sXK
    else:
        out.append(f's_add_u32 {s(sT0)}, {s(sXK)}, 262144')
        out.append(f's_add_u32 {s(sT1)}, {s(sXD)}, {s(sM0X)}')
        out.append(f's_add_u32 m0, {s(sT1)}, 16384')
        so = sT0
    for j in range(2):
        out.append(f'buffer_load_dwordx4 {v(vXV + j)}, {s(S_X, 4)}, {s(so)} offen offset:{j * 1024}{OPT["ntx"]} lds')
    return out


def k1_adv_xread():
    return [f's_add_u32 {s(sXR)}, {s(sXR)}, 32768',
            f's_cmp_eq_u32 {s(sXR)}, 98304',
            f's_cselect_b32 {s(sXR)}, 0, {s(sXR)}',
            f'v_add_u32 {v(vXA0)}, {s(sXR)}, {v(vXA0c)}',
            f'v_add_u32 {v(vXA1)}, {s(sXR)}, {v(vXA1c)}']


def k1_mfmas(grp, typ, buf):
    nt = 7 if grp == 0 else 6
    out = []
    for n in range(nt):
        for m in range(4):
            d = v(acc(n, m), 4)
            W = v(wf(buf, n), 4)
            X = v(xf(buf, m), 4)
            if typ == 0 and n < 4:
                out.append(f'v_mfma_f32_16x16x32_bf16 {d}, {X}, {W}, {d}')
            else:
                out.append(f'v_mfma_f32_16x16x32_bf16 {d}, {W}, {X}, {d}')
    return out


def group_dma(lst):
    units = []
    cur = []
    for x in lst:
        cur.append(x)
        if x.startswith('buffer_'):
            units.append(cur)
            cur = []
    if cur:
        units[-1] = units[-1] + cur
    return units


_tn = [0]


def b2_touch():
    _tn[0] += 1
    L = f'PFs{_tn[0]}'
    return [[f's_sub_u32 {s(sPFu1)}, {s(sPFu1)}, 1',
             f's_cbranch_scc0 {L}',
             f'buffer_load_dword v3, {v(vPF)}, {s(S_PF, 4)}, {s(sPFo)} offen{OPT["ntp"]}',
             f's_mov_b32 {s(sPFu1)}, {s(sPFu)}',
             f's_add_u32 {s(sPFo)}, {s(sPFo)}, 8192',
             f's_mov_b32 {s(sPFu)}, 1000',
             f'{L}:']]


def pf_setup(a):
    srd(a, S_PF, 16, 3584 * 2048)
    a(f's_mov_b32 {s(sT0)}, {896 * 128}')
    a(f'v_mul_lo_u32 {v(vPF)}, v1, {s(sT0)}')
    a(f's_lshl_b32 {s(sT2)}, {s(sWave)}, 8')
    a(f's_add_u32 {s(sT2)}, {s(sT2)}, s2')
    a(f's_lshl_b32 {s(sPFo)}, {s(sT2)}, 7')
    a(f's_lshr_b32 {s(sT0)}, s2, 3')
    a(f's_mul_i32 {s(sT0)}, {s(sT0)}, 5')
    a(f's_mul_i32 {s(sT1)}, {s(sWave)}, 9')
    a(f's_add_u32 {s(sT0)}, {s(sT0)}, {s(sT1)}')
    a(f's_and_b32 {s(sT1)}, s2, 7')
    a(f's_mul_i32 {s(sT1)}, {s(sT1)}, 3')
    a(f's_add_u32 {s(sT0)}, {s(sT0)}, {s(sT1)}')
    a(f's_mul_i32 {s(sT1)}, {s(sT0)}, 2979')
    a(f's_lshr_b32 {s(sT1)}, {s(sT1)}, 16')
    a(f's_mul_i32 {s(sT1)}, {s(sT1)}, 22')
    a(f's_sub_u32 {s(sPFnr)}, {s(sT0)}, {s(sT1)}')
    a(f's_cmp_lt_u32 {s(sT2)}, 896')
    a(f's_cselect_b32 {s(sPFu1)}, {s(sPFnr)}, 1000')
    a(f's_cmp_lg_u32 {s(sWave)}, 4')
    a('s_cbranch_scc1 PF_done')
    srd(a, S_PF, 8, 1024 * 2048)
    a(f's_mov_b32 {s(sPFu1)}, {s(sPFnr)}')
    a(f's_mov_b32 {s(sPFo)}, 0')
    a('v_mul_u32_u24 v5, 5, v1')
    a('v_add_u32 v5, s2, v5')
    a('v_and_b32 v5, 255, v5')
    a('v_lshl_add_u32 v5, v1, 8, v5')
    a(f'v_lshlrev_b32 {v(vPF)}, 7, v5')
    a.label('PF_done')
    a(f's_mov_b32 {s(sPFu)}, 1000')
    if OPT['pfx']:
        lo, span = OPT['pfx']
        a(f'v_lshlrev_b32 {v(vPF)}, 7, v1')
        srd(a, S_PF, 16, 3584 * 2048)
        a(f's_lshr_b32 {s(sT0)}, s2, 3')
        a(f's_mul_i32 {s(sT1)}, {s(sT0)}, 7')
        a(f's_mul_i32 {s(sT2)}, {s(s2Kq)}, 224')
        a(f's_add_u32 {s(sT1)}, {s(sT1)}, {s(sT2)}')
        a(f's_add_u32 {s(sT1)}, {s(sT1)}, {s(sWave)}')
        a(f's_lshl_b32 {s(sPFo)}, {s(sT1)}, 13')
        a(f's_mul_i32 {s(sT1)}, {s(sWave)}, 3')
        a(f's_add_u32 {s(sT1)}, {s(sT1)}, {s(sT0)}')
        a(f's_and_b32 {s(sT1)}, {s(sT1)}, {span - 1}')
        a(f's_add_u32 {s(sPFu1)}, {s(sT1)}, {lo}')
        a(f's_cmp_lg_u32 {s(sWave)}, 7')
        a('s_cbranch_scc1 PF_done2')
        srd(a, S_PF, 8, 1024 * 2048)
        a(f's_lshl_b32 {s(sT1)}, {s(sT0)}, 1')
        a(f's_lshl_b32 {s(sT2)}, {s(s2Kq)}, 6')
        a(f's_add_u32 {s(sT1)}, {s(sT1)}, {s(sT2)}')
        a(f's_lshl_b32 {s(sPFo)}, {s(sT1)}, 13')
        a(f's_lshr_b32 {s(sPFu1)}, {s(sPFu1)}, 1')
        a(f's_mov_b32 {s(sPFu)}, 3')
        a.label('PF_done2')
    if OPT['b2all']:
        a(f's_mov_b32 {s(sPFu1)}, {OPT["b2all"]}')


def k1_substep(a, grp, typ, b, dma=True, reads=True, last=False, extra=None, fill=None, vm=None):
    cur, nxt = b & 1, (b + 1) & 1
    mf = k1_mfmas(grp, typ, cur)
    pre = []
    rd = []
    if reads:
        if b & 1:
            pre += k1_adv_xread()
        rd = k1_reads(grp, nxt, (b + 1) % 4, (b + 1) & 1)
    units = []
    if dma:
        units = group_dma(k1_dma_w(b) + k1_dma_x(0 if (b & 1) else 1))
    if extra:
        units = units + extra
    fill = list(fill or [])
    for x in pre:
        a(x)
    ri = ui = 0
    ev = OPT['dma_every']
    ph = 0 if grp == 0 else 1
    for k, mm in enumerate(mf):
        a(mm)
        if ri < len(rd):
            a(rd[ri])
            ri += 1
        if ui < len(units) and k % ev == ph:
            for x in units[ui]:
                a(x)
            ui += 1
        for _ in range(2):
            if fill:
                a(fill.pop(0))
    assert ri == len(rd) and ui == len(units), (ri, ui, len(units))
    for x in fill:
        a(x)
    if last:
        return
    a(f's_waitcnt vmcnt({vm}) lgkmcnt(0)')
    a('s_barrier')


def mish4(a, r, t):
    T, N2, W = t, t + 4, t + 8
    if OPT['fastmish'] and OPT['nopk']:
        for i in range(4):
            a(f'v_mul_f32 {v(T + i)}, {s(sL2E)}, {v(r + i)}')
        for i in range(4):
            a(f'v_exp_f32 {v(T + i)}, {v(T + i)}')
        for i in range(4):
            a(f'v_fma_f32 {v(N2 + i)}, {v(T + i)}, -0.5, -1.0')
        for i in range(4):
            a(f'v_fma_f32 {v(N2 + i)}, {v(T + i)}, {v(N2 + i)}, -1.0')
        for i in range(4):
            a(f'v_rcp_f32 {v(N2 + i)}, {v(N2 + i)}')
        for i in range(4):
            a(f'v_fmac_f32 {v(r + i)}, {v(r + i)}, {v(N2 + i)}')
        return
    if OPT['fastmish']:
        for h in (0, 2):
            a(f'v_pk_mul_f32 {v(T + h, 2)}, {v(r + h, 2)}, {s(sL2E, 2)} op_sel_hi:[1,0]')
        for i in range(4):
            a(f'v_exp_f32 {v(T + i)}, {v(T + i)}')
        for h in (0, 2):
            a(f'v_pk_fma_f32 {v(N2 + h, 2)}, {v(T + h, 2)}, -0.5, -1.0 op_sel_hi:[1,0,0]')
        for h in (0, 2):
            a(f'v_pk_fma_f32 {v(N2 + h, 2)}, {v(T + h, 2)}, {v(N2 + h, 2)}, -1.0 op_sel_hi:[1,1,0]')
        for i in range(4):
            a(f'v_rcp_f32 {v(N2 + i)}, {v(N2 + i)}')
        for h in (0, 2):
            a(f'v_pk_fma_f32 {v(r + h, 2)}, {v(r + h, 2)}, {v(N2 + h, 2)}, {v(r + h, 2)}')
        return
    for h in (0, 2):
        a(f'v_pk_mul_f32 {v(T + h, 2)}, {v(r + h, 2)}, {s(sL2E, 2)} op_sel_hi:[1,0]')
    for i in range(4):
        a(f'v_min_f32 {v(T + i)}, {s(sC60)}, {v(T + i)}')
    for i in range(4):
        a(f'v_exp_f32 {v(T + i)}, {v(T + i)}')
    for h in (0, 2):
        a(f'v_pk_add_f32 {v(N2 + h, 2)}, {v(T + h, 2)}, 2.0 op_sel_hi:[1,0]')
    for h in (0, 2):
        a(f'v_pk_mul_f32 {v(W + h, 2)}, {v(T + h, 2)}, {v(N2 + h, 2)}')
    for h in (0, 2):
        a(f'v_pk_fma_f32 {v(N2 + h, 2)}, {v(T + h, 2)}, {v(N2 + h, 2)}, 2.0 op_sel_hi:[1,1,0]')
    for i in range(4):
        a(f'v_rcp_f32 {v(N2 + i)}, {v(N2 + i)}')
    for h in (0, 2):
        a(f'v_pk_mul_f32 {v(W + h, 2)}, {v(W + h, 2)}, {v(N2 + h, 2)}')
    for h in (0, 2):
        a(f'v_pk_mul_f32 {v(r + h, 2)}, {v(r + h, 2)}, {v(W + h, 2)}')


def phi4(a, r, t):
    if OPT['nopk']:
        for i in range(4):
            a(f'v_mul_f32 {v(t + i)}, {s(sL2E)}, {v(r + i)}')
        for i in range(4):
            a(f'v_min_f32 {v(t + i)}, 0, {v(t + i)}')
        for i in range(4):
            a(f'v_exp_f32 {v(t + i)}, {v(t + i)}')
        for i in range(4):
            a(f'v_max_f32 {v(r + i)}, 0, {v(r + i)}')
        for i in range(4):
            a(f'v_add_f32 {v(r + i)}, {s(sEps)}, {v(r + i)}')
        for i in range(4):
            a(f'v_add_f32 {v(r + i)}, {v(r + i)}, {v(t + i)}')
        return
    for h in (0, 2):
        a(f'v_pk_mul_f32 {v(t + h, 2)}, {v(r + h, 2)}, {s(sL2E, 2)} op_sel_hi:[1,0]')
    for i in range(4):
        a(f'v_min_f32 {v(t + i)}, 0, {v(t + i)}')
    for i in range(4):
        a(f'v_exp_f32 {v(t + i)}, {v(t + i)}')
    for i in range(4):
        a(f'v_max_f32 {v(r + i)}, 0, {v(r + i)}')
    for h in (0, 2):
        a(f'v_pk_add_f32 {v(r + h, 2)}, {v(r + h, 2)}, {v(t + h, 2)}')
    for i in range(4):
        a(f'v_add_f32 {v(r + i)}, {s(sEps)}, {v(r + i)}')


def cvt4(a, o, r):
    a(f'v_cvt_pk_bf16_f32 {v(o)}, {v(r)}, {v(r + 1)}')
    a(f'v_cvt_pk_bf16_f32 {v(o + 1)}, {v(r + 2)}, {v(r + 3)}')


def k1_store_pair(a, n0, s_tau, plus, outregs, hook=None):
    a(f's_add_u32 {s(sT2)}, {s(s_tau)}, {plus}')
    a(f's_lshr_b32 {s(sT2)}, {s(sT2)}, 1')
    a(f's_lshl_b32 {s(sT2)}, {s(sT2)}, 10')
    a(f's_add_u32 {s(sT2)}, {s(sT2)}, {s(sA2)}')
    for m in range(4):
        o = outregs + (m & 1) * 4
        mish4(a, acc(n0, m), vE)
        mish4(a, acc(n0 + 1, m), vT)
        cvt4(a, o, acc(n0, m))
        cvt4(a, o + 2, acc(n0 + 1, m))
        a(f'buffer_store_dwordx4 {v(o, 4)}, {v(vL16)}, {s(S_WS, 4)}, {s(sT2)} offen sc1')
        if m < 3:
            a(f's_add_u32 {s(sT2)}, {s(sT2)}, {144 * 1024}')
        if hook and m == 1:
            hook()
    return 4


def k1_store_single(a, n0, outregs):
    a(f's_lshr_b32 {s(sT2)}, {s(sS)}, 1')
    a(f's_lshl_b32 {s(sT2)}, {s(sT2)}, 10')
    a(f's_add_u32 {s(sT2)}, {s(sT2)}, {s(sA2)}')
    a(f's_and_b32 {s(sT3)}, {s(sS)}, 1')
    a(f's_mul_i32 {s(sT3)}, {s(sT3)}, {144 * 1024}')
    a(f's_add_u32 {s(sT2)}, {s(sT2)}, {s(sT3)}')
    for mp in range(2):
        o = outregs + mp * 4
        mish4(a, acc(n0, 2 * mp), vE)
        mish4(a, acc(n0, 2 * mp + 1), vT)
        cvt4(a, o, acc(n0, 2 * mp))
        cvt4(a, o + 2, acc(n0, 2 * mp + 1))
        a(f'buffer_store_dwordx4 {v(o, 4)}, {v(vL16)}, {s(S_WS, 4)}, {s(sT2)} offen sc1')
        if mp == 0:
            a(f's_add_u32 {s(sT2)}, {s(sT2)}, {2 * 144 * 1024}')
    return 2


def get_nonce(a, L):
    a(f's_mov_b32 {s(sC)}, 0')
    a.label(f'{L}_nchk')
    a(f'v_readfirstlane_b32 {s(sNon)}, {v(vNon)}')
    a(f's_cmp_lg_u32 {s(sNon)}, 0')
    a(f's_cbranch_scc1 {L}_nok')
    a('s_sleep 8')
    a(f'buffer_load_dword {v(vNon)}, off, {s(S_DBG, 4)}, 0 sc1')
    a(f's_add_u32 {s(sC)}, {s(sC)}, 1')
    a('s_waitcnt vmcnt(0)')
    a(f's_cmp_lt_u32 {s(sC)}, {SPIN_MAX}')
    a(f's_cbranch_scc1 {L}_nchk')
    a.label(f'{L}_nok')


def poll_line(a, L, soff, nlanes, vtmp, sleep=4):
    a(f'v_and_b32 {v(vtmp + 1)}, {nlanes - 1}, v1')
    a(f'v_lshlrev_b32 {v(vtmp + 1)}, 2, {v(vtmp + 1)}')
    a(f's_mov_b32 {s(sC)}, 0')
    a.label(f'{L}_poll')
    a(f'buffer_load_dword {v(vtmp)}, {v(vtmp + 1)}, {s(S_WS, 4)}, {s(soff)} offen sc1')
    a(f's_add_u32 {s(sC)}, {s(sC)}, 1')
    a('s_waitcnt vmcnt(0)')
    a(f'v_cmp_ne_u32 vcc, {s(sNon)}, {v(vtmp)}')
    a('s_nop 4')
    a(f's_cbranch_vccz {L}_polled')
    a(f's_sleep {sleep}')
    a(f's_cmp_lt_u32 {s(sC)}, {SPIN_MAX}')
    a(f's_cbranch_scc1 {L}_poll')
    a.label(f'{L}_polled')


KVL = 114688
KFL = 147456


def k1_epilogue_A(a, grp, L):
    PK, VV, ONES, KV = 8, 24, 40, 44
    a('s_nop 7')
    for n in range(2):
        for m in range(4):
            phi4(a, acc(n, m), vE + (m & 1) * 4)
    for i in range(4):
        a(f'v_mov_b32 {v(ONES + i)}, 0x3f803f80')
    for src, dst in ((2, VV), (0, PK)):
        for n in range(2):
            for c in range(2):
                d = dst + (n * 2 + c) * 4
                for hh in range(2):
                    cvt4(a, d + 2 * hh, acc(src + n, 2 * c + hh))
    for c in range(2):
        for b in range(3):
            for aa in range(2):
                d = v(KV + (b * 2 + aa) * 4, 4)
                B = v(VV + (b * 2 + c) * 4, 4) if b < 2 else v(ONES, 4)
                a(f'v_mfma_f32_16x16x32_bf16 {d}, {v(PK + (aa * 2 + c) * 4, 4)}, {B}, {d if c else "0"}')
    a(f's_mul_i32 {s(sT0)}, {s(sWave)}, 6144')
    a(f's_add_u32 {s(sT0)}, {s(sT0)}, {KVL}')
    a(f'v_add_u32 {v(vT)}, {s(sT0)}, {v(vL16)}')
    for q in range(6):
        a(f'ds_write_b128 {v(vT)}, {v(KV + q * 4, 4)} offset:{q * 1024}')
    a('s_waitcnt lgkmcnt(0)')
    a('s_barrier')
    stamp(a, 7)
    a(f's_cmp_lg_u32 {s(sW3)}, 0')
    a(f's_cbranch_scc1 {L}_nosum')
    bases = (68, 8, 128)
    for w in range(3):
        for q in range(6):
            a(f'ds_read_b128 {v(bases[w] + q * 4, 4)}, {v(vT)} offset:{(w + 1) * 6144 + q * 1024}')
    a(f's_lshl_b32 {s(sT0)}, {s(sH)}, 3')
    a(f's_add_u32 {s(sT0)}, {s(sT0)}, {s(sI)}')
    a(f's_mul_i32 {s(sT1)}, {s(sT0)}, 6144')
    a(f's_add_u32 {s(sT1)}, {s(sT1)}, {KVP_OFF}')
    a(f's_add_u32 {s(sT3)}, {s(sT1)}, 4096')
    for w in range(3):
        a(f's_waitcnt lgkmcnt({12 - 6 * w})')
        for q in range(12):
            a(f'v_pk_add_f32 {v(KV + q * 2, 2)}, {v(KV + q * 2, 2)}, {v(bases[w] + q * 2, 2)}')
    for q in range(6):
        so, off = (sT1, q * 1024) if q < 4 else (sT3, (q - 4) * 1024)
        a(f'buffer_store_dwordx4 {v(KV + q * 4, 4)}, {v(vL16)}, {s(S_WS, 4)}, {s(so)} offen offset:{off} sc1')
    a(f's_lshl_b32 {s(sT0)}, {s(sT)}, 7')
    a(f's_lshl_b32 {s(sT1)}, {s(sI)}, 2')
    a(f's_add_u32 {s(sT0)}, {s(sT0)}, {s(sT1)}')
    a(f's_add_u32 {s(sT0)}, {s(sT0)}, {F_KV + grp * 32}')
    a('s_waitcnt vmcnt(0)')
    get_nonce(a, L + 'a')
    a(f'buffer_store_dword {v(vNon)}, off, {s(S_WS, 4)}, {s(sT0)} sc1')
    stamp(a, 8)
    a.label(f'{L}_nosum')
    if grp == 0:
        k1_store_pair(a, 4, sP0, 0, 72)
        k1_store_single(a, 6, 72)
    else:
        k1_store_pair(a, 4, sP1, 0, 72)


def k1_epilogue_B(a, grp, L):
    OUT = 72
    a('s_nop 7')
    k1_store_pair(a, 2, sZ2, 2 * grp, OUT)
    if grp == 0:
        k1_store_pair(a, 4, sP0, 0, OUT)
        k1_store_single(a, 6, OUT)
    else:
        k1_store_pair(a, 4, sP1, 0, OUT)
    stamp(a, 7)


def gate_code():
    GX, GW = vE, vE + 8
    o = ['v_mov_b32 v5, 0']
    for i in range(8):
        o.append(f'v_dot2_f32_bf16 v5, {v(GX + i)}, {v(GW + i)}, v5')
    o.append('s_nop 2')
    for sh in (1, 2, 4, 8):
        o.append(f'v_add_f32_dpp v5, v5, v5 row_shr:{sh} row_mask:0xf bank_mask:0xf bound_ctrl:0')
    o.append('v_add_f32_dpp v5, v5, v5 row_bcast:15 row_mask:0xa bank_mask:0xf')
    o.append('v_add_f32_dpp v5, v5, v5 row_bcast:31 row_mask:0xc bank_mask:0xf')
    o.append('v_mov_b32 v6, 0x42200000')
    o.append('v_med3_f32 v5, v5, -v6, v6')
    o.append(f'v_mul_f32 v5, {s(sL2E)}, v5')
    o.append('v_exp_f32 v5, v5')
    o.append(f'v_readlane_b32 {s(sT3)}, v5, 63')
    o.append(f'v_mov_b32 v5, {s(sT3)}')
    o.append(f'buffer_store_dword v5, off, {s(S_WS, 4)}, {s(sEoff)} sc1')
    return o


def k2acc(n, m):
    return k2ACC + (n * 2 + m) * 4


def k2_reads(buf, slot):
    out = []
    for n in range(8):
        addr = k2RA + (slot // 8) * 8 + n
        off = (slot % 8) * 8192
        d = k2BF + buf * 32 + n * 4
        out.append(f'ds_read_b64_tr_b16 {v(d, 2)}, {v(addr)} offset:{off}')
        out.append(f'ds_read_b64_tr_b16 {v(d + 2, 2)}, {v(addr)} offset:{off + 4096}')
    return out


def p2_order():
    o = []
    for lst in ((4, 5, 8, 9), (3, 6, 7, 10), (0, 1, 12, 13), (2, 11)):
        for u in range(2):
            o += [('b', 14 * u + g) for g in lst]
    o += [('a', h) for h in range(8)]
    return o


ORDER = p2_order()


def k2_dma_b(j):
    kind, idx = ORDER[j]
    slot = j % RING
    out = [f's_add_u32 m0, {s(sM2)}, {slot * 8192}']
    base, srdn = (s2Boff, S2_B) if kind == 'b' else (s2Ba, S2_WO)
    out.append(f's_add_u32 {s(sT0)}, {s(base)}, {idx * 65536}')
    out.append(f'buffer_load_dwordx4 {v(vBV)}, {s(srdn, 4)}, {s(sT0)} offen{OPT["ntb"]} lds')
    return out


def k2_load_a(j):
    kind, idx = ORDER[j]
    base = s2Aoff if kind == 'b' else s2Aa
    out = [f's_add_u32 {s(sT1)}, {s(base)}, {idx * 1024}']
    for m in range(2):
        out.append(f'buffer_load_dwordx4 {v(k2A + (j % NA) * 8 + m * 4, 4)}, {v(k2AV + m)}, {s(S_WS, 4)}, {s(sT1)} offen sc1')
    return out


def flag_check(a, L, vval, vaddr, sleep=4):
    a(f's_mov_b32 {s(sC)}, 0')
    a.label(f'{L}_c')
    a(f'v_cmp_ne_u32 vcc, {s(sNon)}, {v(vval)}')
    a('s_nop 4')
    a(f's_cbranch_vccz {L}_ok')
    if sleep:
        a(f's_sleep {sleep}')
    a(f'buffer_load_dword {v(vval)}, {v(vaddr)}, {s(S_WS, 4)}, 0 offen sc1')
    a(f's_add_u32 {s(sC)}, {s(sC)}, 1')
    a('s_waitcnt vmcnt(0)')
    a(f's_cmp_lt_u32 {s(sC)}, {SPIN_MAX}')
    a(f's_cbranch_scc1 {L}_c')
    a.label(f'{L}_ok')


def gen(a):
    a.label(KN)
    a('s_cmp_ge_u32 s2, 256')
    a('s_cbranch_scc1 K_end')
    a('s_load_dwordx16 s[4:19], s[0:1], 0')
    a('s_load_dwordx4 s[20:23], s[0:1], 64')
    a('s_load_dwordx2 s[24:25], s[0:1], 80')
    if OPT['codepf']:
        a('s_getpc_b64 s[26:27]')
        a('s_lshr_b32 s3, s2, 3')
        a('s_and_b32 s3, s3, 1')
        a('s_lshl_b32 s3, s3, 16')
        a('v_lshlrev_b32 v5, 7, v0')
        a('v_add_u32 v5, s3, v5')
        a('v_min_u32 v5, CODE_LAST, v5')
        a('global_load_dword v3, v5, s[26:27]')
    stamp(a, 0)
    a('v_and_b32 v1, 63, v0')
    a('v_lshrrev_b32 v2, 6, v0')
    a(f'v_readfirstlane_b32 {s(sWave)}, v2')
    a(f's_and_b32 {s(sT0)}, s2, 7')
    a(f's_lshr_b32 {s(sT1)}, s2, 3')
    a(f's_and_b32 {s(sI)}, {s(sT0)}, 1')
    a(f's_lshl_b32 {s(sI)}, {s(sI)}, 2')
    a(f's_and_b32 {s(sT2)}, {s(sT1)}, 3')
    a(f's_add_u32 {s(sI)}, {s(sI)}, {s(sT2)}')
    a(f's_lshr_b32 {s(sC)}, {s(sT0)}, 1')
    a(f's_lshl_b32 {s(sC)}, {s(sC)}, 3')
    a(f's_lshr_b32 {s(sT2)}, {s(sT1)}, 2')
    a(f's_add_u32 {s(sC)}, {s(sC)}, {s(sT2)}')
    a(f's_lshr_b32 {s(sT)}, {s(sC)}, 1')
    a(f's_and_b32 {s(sTyp)}, {s(sC)}, 1')
    a(f's_and_b32 {s(sW3)}, {s(sWave)}, 3')
    a(f's_lshr_b32 {s(sGrp)}, {s(sWave)}, 2')
    a(f's_cmp_eq_u32 {s(sTyp)}, 0')
    a(f's_mov_b32 {s(sT2)}, 0x286085C6')
    a(f's_cselect_b32 {s(sT2)}, 0x09CA0420, {s(sT2)}')
    a(f's_and_b32 {s(sT3)}, {s(sT)}, 1')
    a(f's_lshl_b32 {s(sT3)}, {s(sT3)}, 4')
    a(f's_lshr_b32 {s(sT2)}, {s(sT2)}, {s(sT3)}')
    a(f's_and_b32 {s(sP0)}, {s(sT2)}, 15')
    a(f's_bfe_u32 {s(sP1)}, {s(sT2)}, 0x40004')
    a(f's_bfe_u32 {s(sS)}, {s(sT2)}, 0x40008')
    a(f's_bfe_u32 {s(sZ2)}, {s(sT2)}, 0x4000c')
    a('v_lshrrev_b32 v2, 4, v1')
    a('v_lshrrev_b32 v6, 3, v1')
    a('v_and_b32 v7, 7, v1')
    a(f's_lshl_b32 {s(sT2)}, {s(sWave)}, 15')
    for j in range(2):
        a(f'v_xor_b32 v5, {4 * j}, v2')
        a('v_xor_b32 v5, v5, v7')
        a('v_lshlrev_b32 v5, 4, v5')
        a('v_lshl_add_u32 v5, v6, 11, v5')
        a(f's_add_u32 {s(sT3)}, {s(sT2)}, {j * (8 * 2048 - 1024)}')
        a(f'v_add_u32 {v(vXV + j)}, {s(sT3)}, v5')
    a(f's_lshl_b32 {s(sM0W)}, {s(sWave)}, 11')
    a(f's_add_u32 {s(sM0X)}, {s(sM0W)}, 65536')
    a(f's_lshl_b32 {s(sXK)}, {s(sI)}, 19')
    if OPT['xp_same']:
        a(f's_mov_b32 {s(sXK)}, 0')
    a(f's_sub_u32 {s(sXK)}, {s(sXK)}, 128')
    a(f's_mov_b32 {s(sXD)}, 65536')
    a(f's_mov_b32 {s(sWoff)}, 0')
    a(f's_mul_i32 {s(sA2)}, {s(sT)}, 448')
    if OPT['xp_same']:
        a(f's_and_b32 {s(sA2)}, {s(sT)}, 1')
        a(f's_mul_i32 {s(sA2)}, {s(sA2)}, 448')
    a(f's_cmp_ge_u32 {s(sWave)}, 4')
    a('s_cbranch_scc1 K1_setup_z3')
    a(f's_lshr_b32 {s(sT0)}, {s(sWave)}, 1')
    a(f's_lshl_b32 {s(sT2)}, {s(sT)}, 7')
    if OPT['xp_same']:
        a(f's_mov_b32 {s(sT2)}, 0')
    a(f's_add_u32 {s(sT3)}, {s(sT0)}, 1')
    a(f's_lshl_b32 {s(sT3)}, {s(sT3)}, 11')
    a(f's_cmp_eq_u32 {s(sTyp)}, 0')
    a(f's_cselect_b32 {s(sT3)}, {s(sT3)}, 0')
    a(f's_add_u32 {s(sT2)}, {s(sT2)}, {s(sT3)}')
    a(f's_lshl_b32 {s(sT3)}, {s(sZ2)}, 5')
    a(f's_add_u32 {s(sT3)}, {s(sT3)}, {s(sA2)}')
    a(f's_and_b32 {s(sT0)}, {s(sTyp)}, {s(sT0)}')
    a(f's_cselect_b32 {s(sT2)}, {s(sT3)}, {s(sT2)}')
    a(f's_movk_i32 {s(sWstr)}, 6144')
    a(f's_cselect_b32 {s(sWstr)}, 7168, {s(sWstr)}')
    a('v_lshrrev_b32 v5, 1, v7')
    a('v_and_b32 v7, 1, v2')
    a('v_xor_b32 v5, v5, v7')
    a('v_and_b32 v7, 1, v1')
    a(f'v_mul_lo_u32 v6, v6, {s(sWstr)}')
    a('v_lshl_add_u32 v6, v7, 4, v6')
    a(f's_and_b32 {s(sT3)}, {s(sWave)}, 1')
    a(f's_lshl_b32 {s(sT3)}, {s(sT3)}, 4')
    a(f's_mul_i32 {s(sT3)}, {s(sT3)}, {s(sWstr)}')
    a(f's_add_u32 {s(sT2)}, {s(sT2)}, {s(sT3)}')
    for j in range(2):
        a(f'v_xor_b32 v7, {2 * j}, v5')
        a(f'v_lshl_add_u32 v7, v7, 5, v6')
        if j:
            a(f's_lshl_b32 {s(sT3)}, {s(sWstr)}, 3')
            a(f's_add_u32 {s(sT2)}, {s(sT2)}, {s(sT3)}')
            a(f's_sub_u32 {s(sT2)}, {s(sT2)}, 1024')
        a(f'v_add_u32 {v(vWV + j)}, {s(sT2)}, v7')
    a('s_branch K1_setup_w_done')
    a.label('K1_setup_z3')
    a(f's_mov_b32 {s(sWstr)}, 7168')
    a(f's_mov_b32 {s(sT0)}, 1')
    a('v_bfe_u32 v5, v1, 1, 3')
    a('v_xor_b32 v5, v5, v2')
    a(f's_and_b32 {s(sT3)}, {s(sWave)}, 1')
    a(f's_lshl_b32 {s(sT3)}, {s(sT3)}, 2')
    a(f'v_xor_b32 v5, {s(sT3)}, v5')
    a('v_and_b32 v6, 1, v1')
    a('v_mul_u32_u24 v7, 7168, v2')
    a('v_lshl_add_u32 v7, v6, 4, v7')
    a(f's_mul_i32 {s(sT3)}, {s(sW3)}, {8 * 7168}')
    a(f's_add_u32 {s(sT2)}, {s(sA2)}, {s(sT3)}')
    a(f's_sub_u32 {s(sT3)}, {s(sP1)}, 2')
    a(f's_sub_u32 {s(sT1)}, {s(sS)}, 4')
    a(f'v_mov_b32 {v(vT + 1)}, {s(sP0)}')
    a(f'v_mov_b32 {v(vT + 2)}, {s(sT3)}')
    a('v_cmp_lt_u32 vcc, 1, v5')
    a(f'v_cndmask_b32 {v(vT + 1)}, {v(vT + 1)}, {v(vT + 2)}, vcc')
    a(f'v_mov_b32 {v(vT + 2)}, {s(sT1)}')
    a('v_cmp_lt_u32 vcc, 3, v5')
    a(f'v_cndmask_b32 {v(vT + 1)}, {v(vT + 1)}, {v(vT + 2)}, vcc')
    a(f'v_add_u32 {v(vT + 1)}, {v(vT + 1)}, v5')
    a(f'v_lshl_add_u32 {v(vT + 1)}, {v(vT + 1)}, 5, v7')
    a(f'v_add_u32 {v(vT + 1)}, {s(sT2)}, {v(vT + 1)}')
    a(f'v_mov_b32 {v(vT + 2)}, 0x40000000')
    a('v_cmp_lt_u32 vcc, 4, v5')
    a(f'v_cndmask_b32 {v(vWV)}, {v(vT + 1)}, {v(vT + 2)}, vcc')
    a(f'v_add_u32 {v(vWV + 1)}, {4 * 7168 - 1024}, {v(vWV)}')
    a.label('K1_setup_w_done')
    a(f's_lshl_b32 {s(sWstep)}, {s(sWstr)}, 5')
    a('v_lshlrev_b32 v5, 3, v2')
    a('s_waitcnt lgkmcnt(0)')
    srd(a, S_X, 4, 2048 * 1024 * 2)
    srd(a, S_W, 6, 1024 * 3072 * 2)
    a(f's_cmp_eq_u32 {s(sT0)}, 1')
    a(f's_cselect_b32 {s(S_W)}, s12, {s(S_W)}')
    a(f's_cselect_b32 {s(S_W + 1)}, s13, {s(S_W + 1)}')
    a(f's_cselect_b32 {s(S_W + 2)}, {1024 * 3584 * 2}, {s(S_W + 2)}')
    a(f's_and_b32 {s(S_W + 1)}, {s(S_W + 1)}, 0xffff')
    stamp(a, 11)
    for x in k1_dma_w(0) + k1_dma_x(0) + k1_dma_x(1):
        a(x)
    srd(a, S_B1, 14, 3584 * 2)
    srd(a, S_B1Z, 14, 3584 * 2)
    a(f's_cmp_eq_u32 {s(sTyp)}, 0')
    a(f's_cselect_b32 {s(S_B1Z + 2)}, 0, {s(S_B1Z + 2)}')
    BI = 36
    a(f's_lshl_b32 {s(sT3)}, {s(sGrp)}, 1')
    a(f's_add_u32 {s(sT3)}, {s(sT3)}, {s(sZ2)}')
    a(f's_lshl_b32 {s(sT3)}, {s(sT3)}, 5')
    a(f's_add_u32 {s(sT3)}, {s(sT3)}, {s(sA2)}')
    a(f'buffer_load_dwordx2 {v(BI, 2)}, v5, {s(S_B1Z, 4)}, {s(sT3)} offen')
    a(f'buffer_load_dwordx2 {v(BI + 2, 2)}, v5, {s(S_B1Z, 4)}, {s(sT3)} offen offset:32')
    a(f's_cmp_eq_u32 {s(sGrp)}, 0')
    a(f's_cselect_b32 {s(sT3)}, {s(sP0)}, {s(sP1)}')
    a(f's_lshl_b32 {s(sT3)}, {s(sT3)}, 5')
    a(f's_add_u32 {s(sT3)}, {s(sT3)}, {s(sA2)}')
    a(f'buffer_load_dwordx2 {v(BI + 4, 2)}, v5, {s(S_B1, 4)}, {s(sT3)} offen')
    a(f'buffer_load_dwordx2 {v(BI + 6, 2)}, v5, {s(S_B1, 4)}, {s(sT3)} offen offset:32')
    a(f's_lshl_b32 {s(sT3)}, {s(sS)}, 5')
    a(f's_add_u32 {s(sT3)}, {s(sT3)}, {s(sA2)}')
    a(f'buffer_load_dwordx2 {v(BI + 8, 2)}, v5, {s(S_B1, 4)}, {s(sT3)} offen')
    srd(a, S_WS, 24, WS_SIZE)
    srd(a, S_DBG, 22, 256)
    a(f's_mov_b32 {s(sT3)}, {EP_OFF}')
    a(f'buffer_load_dword {v(vNon)}, off, {s(S_WS, 4)}, {s(sT3)} sc1')
    if OPT['probar']:
        a('s_barrier')
    for x in k1_dma_w(1) + k1_dma_w(2) + k1_dma_x(0) + k1_dma_x(1):
        a(x)
    stamp(a, 12)
    srd(a, S_G, 18, 2048)
    a(f'v_lshlrev_b32 {v(vL16)}, 4, v1')
    a(f's_lshl_b32 {s(sRole)}, {s(sI)}, 5')
    a(f's_add_u32 {s(sRole)}, {s(sRole)}, {s(sC)}')
    a(f's_lshl_b32 {s(sFW)}, {s(sRole)}, 7')
    a(f's_add_u32 {s(sFW)}, {s(sFW)}, {F_WG}')
    a(f's_lshl_b32 {s(sT2)}, {s(sRole)}, 3')
    a(f's_add_u32 {s(sT2)}, {s(sT2)}, {s(sWave)}')
    a(f's_lshr_b32 {s(s2Kq)}, {s(sC)}, 3')
    a(f's_and_b32 {s(s2Cb)}, {s(sC)}, 7')
    a(f's_lshl_b32 {s(sEoff)}, {s(sT2)}, 2')
    a(f's_add_u32 {s(sEoff)}, {s(sEoff)}, {E_OFF}')
    a(f's_lshl_b32 {s(sGoff)}, {s(sT2)}, 11')
    a(f's_lshl_b32 {s(sH)}, {s(sT)}, 1')
    a(f's_add_u32 {s(sH)}, {s(sH)}, {s(sGrp)}')
    a(f's_mov_b32 {s(sL2E)}, {LOG2E}')
    a(f's_mov_b32 {s(sC60)}, 0x42700000')
    a(f's_mov_b32 {s(sEps)}, 0x358637bd')
    a(f's_lshl_b32 {s(sA2)}, {s(sI)}, 2')
    a(f's_add_u32 {s(sA2)}, {s(sA2)}, {s(sW3)}')
    a(f's_mul_i32 {s(sA2)}, {s(sA2)}, {4 * 144}')
    a(f's_mul_i32 {s(sT2)}, {s(sT)}, 7')
    a(f's_add_u32 {s(sA2)}, {s(sA2)}, {s(sT2)}')
    a(f's_add_u32 {s(sA2)}, {s(sA2)}, 32')
    a(f's_lshl_b32 {s(sA2)}, {s(sA2)}, 10')
    a(f'v_bfe_u32 {v(vT + 3)}, v1, 2, 2')
    a(f'v_and_b32 {v(vT + 4)}, 3, v1')
    a(f'v_lshl_add_u32 v5, v2, 3, {v(vT + 3)}')
    a(f'v_lshrrev_b32 v6, 1, {v(vT + 3)}')
    a('v_and_b32 v7, 1, v2')
    a('v_lshl_or_b32 v6, v7, 1, v6')
    a(f's_lshl_b32 {s(sT2)}, {s(sGrp)}, 1')
    for q in range(2):
        a(f's_add_u32 {s(sT3)}, {s(sT2)}, {q}')
        a(f'v_xor_b32 {v(vT)}, {s(sT3)}, v6')
        a(f'v_lshlrev_b32 {v(vT)}, 5, {v(vT)}')
        a(f'v_lshl_add_u32 {v(vT)}, v5, 7, {v(vT)}')
        a(f'v_lshl_add_u32 {v(vWZ12 + q)}, {v(vT + 4)}, 3, {v(vT)}')
    a(f'v_lshl_or_b32 v6, v7, 2, {v(vT + 3)}')
    for q in range(3):
        if q < 2:
            a(f's_add_u32 {s(sT3)}, {s(sT2)}, {q}')
        else:
            a(f's_mov_b32 {s(sT3)}, 4')
        a(f'v_xor_b32 {v(vT)}, {s(sT3)}, v6')
        a(f'v_lshlrev_b32 {v(vT)}, 5, {v(vT)}')
        a(f'v_lshl_add_u32 {v(vT)}, v5, 8, {v(vT)}')
        a(f'v_lshl_add_u32 {v(vT)}, {v(vT + 4)}, 3, {v(vT)}')
        a(f'v_add_u32 {v(vWZ3 + q)}, 8192, {v(vT)}')
    a('v_and_b32 v5, 15, v1')
    a('v_bfe_u32 v6, v1, 1, 3')
    a('v_xor_b32 v6, v6, v2')
    a(f's_lshl_b32 {s(sT3)}, {s(sW3)}, 13')
    a(f's_add_u32 {s(sT3)}, {s(sT3)}, 65536')
    a('v_lshlrev_b32 v5, 7, v5')
    a('v_lshl_add_u32 v5, v6, 4, v5')
    a(f'v_add_u32 {v(vXA0c)}, {s(sT3)}, v5')
    a(f'v_xor_b32 {v(vXA1c)}, 64, {v(vXA0c)}')
    a(f'v_mov_b32 {v(vXA0)}, {v(vXA0c)}')
    a(f'v_mov_b32 {v(vXA1)}, {v(vXA1c)}')
    a(f's_mov_b32 {s(sXR)}, 0')
    a('s_and_b32 s9, s9, 0xffff')
    pf_setup(a)
    a('v_and_b32 v5, 1, v1')
    a('v_lshlrev_b32 v5, 4, v5')
    a('v_lshl_add_u32 v5, v2, 11, v5')
    a(f's_lshl_b32 {s(sT3)}, {s(sWave)}, 13')
    a(f's_lshl_b32 {s(sT0)}, {s(s2Cb)}, 8')
    a(f's_add_u32 {s(sT3)}, {s(sT3)}, {s(sT0)}')
    a(f's_and_b32 {s(sT0)}, {s(sWave)}, 1')
    a(f's_lshl_b32 {s(sT0)}, {s(sT0)}, 2')
    a(f'v_xor_b32 v7, {s(sT0)}, v6')
    a('v_lshl_add_u32 v7, v7, 5, v5')
    a(f'v_add_u32 {v(vBV)}, {s(sT3)}, v7')
    a(f's_lshl_b32 {s(sM2)}, {s(sWave)}, 10')
    for n in range(2):
        for r in range(0, 16, 2):
            a(f'v_pk_mov_b32 {v(acc(n, 0) + r, 2)}, 0, 0')
    stamp(a, 1)
    a('s_waitcnt vmcnt(8)')
    for n in range(2, 7):
        b = BI + (n - 2) * 2
        r0 = acc(n, 0)
        a(f'v_lshlrev_b32 {v(r0)}, 16, {v(b)}')
        a(f'v_and_b32 {v(r0 + 1)}, 0xffff0000, {v(b)}')
        a(f'v_lshlrev_b32 {v(r0 + 2)}, 16, {v(b + 1)}')
        a(f'v_and_b32 {v(r0 + 3)}, 0xffff0000, {v(b + 1)}')
        for m in range(1, 4):
            for h in (0, 2):
                a(f'v_pk_mov_b32 {v(acc(n, m) + h, 2)}, {v(r0 + h, 2)}, {v(r0 + h, 2)} op_sel:[0,1]')
    a(f's_lshl_b32 {s(sT2)}, s2, 3')
    a(f's_add_u32 {s(sT2)}, {s(sT2)}, {s(sWave)}')
    a(f's_cmp_lg_u32 {s(sT2)}, 7')
    a('s_cbranch_scc1 K1_nopub')
    a(f'v_add_u32 {v(vNon)}, 1, {v(vNon)}')
    a(f'v_or_b32 {v(vNon)}, 0x80000000, {v(vNon)}')
    a(f's_mov_b32 {s(sT3)}, {EP_OFF}')
    a(f'buffer_store_dword {v(vNon)}, off, {s(S_DBG, 4)}, 0 sc1')
    a(f'buffer_store_dword {v(vNon)}, off, {s(S_WS, 4)}, {s(sT3)} sc1')
    a('s_waitcnt vmcnt(0)')
    a.label('K1_nopub')
    srd(a, S2_B, 16, 3584 * 1024 * 2)
    a(f's_mul_i32 {s(s2Boff)}, {s(s2Kq)}, {28 * 65536}')
    a(f's_mul_i32 {s(s2Ba)}, {s(s2Kq)}, {8 * 65536}')
    a(f's_lshl_b32 {s(sT2)}, {s(sTyp)}, 1')
    a(f's_add_u32 {s(sT2)}, {s(sT2)}, {s(sGrp)}')
    a(f's_cmp_eq_u32 {s(sT2)}, 1')
    a('s_cbranch_scc1 K1_v01')
    a(f's_cmp_eq_u32 {s(sT2)}, 2')
    a('s_cbranch_scc1 K1_v10')
    a(f's_cmp_eq_u32 {s(sT2)}, 3')
    a('s_cbranch_scc1 K1_v11')
    for typ in range(2):
        for grp in range(2):
            L = f'K1_v{typ}{grp}'
            a.label(L)
            if OPT['yprio'] and grp == 1:
                a('s_setprio 1')
            stamp(a, 2)
            a('s_barrier')
            stamp(a, 3)
            for x in k1_reads(grp, 0, 0, 0):
                a(x)
            a(f's_mov_b32 {s(sCnt)}, 1')
            a('s_waitcnt vmcnt(6) lgkmcnt(0)')
            a('s_barrier')
            stamp(a, 4)
            k1_substep(a, grp, typ, 0, dma=False, vm=8,
                       extra=group_dma(k1_dma_w(3) + k1_dma_x(0) + k1_dma_w(0) + k1_dma_x(1)))
            for b in range(1, 4):
                k1_substep(a, grp, typ, b, vm=8)
            a.label(L + '_loop')
            if OPT['stamp']:
                a('s_memtime s[26:27]')
                a(f's_add_u32 m0, {s(sCnt)}, 20')
                a('s_waitcnt lgkmcnt(0)')
                a(f'v_writelane_b32 v{vSt}, s26, m0')
            pf = OPT['b2pf']
            for b in range(4):
                k1_substep(a, grp, typ, b, extra=b2_touch() if pf else None, vm=8)
            a(f's_add_u32 {s(sCnt)}, {s(sCnt)}, 1')
            a(f's_cmp_lt_u32 {s(sCnt)}, 7')
            a(f's_cbranch_scc1 {L}_loop')
            stamp(a, 5)
            nl = [[f'buffer_load_dword {v(vNon)}, off, {s(S_DBG, 4)}, 0 sc1']]
            gl = [[f'buffer_load_dwordx4 {v(vE, 4)}, {v(vL16)}, {s(S_X, 4)}, {s(sGoff)} offen'],
                  [f'buffer_load_dwordx4 {v(vE + 4, 4)}, {v(vL16)}, {s(S_X, 4)}, {s(sGoff)} offen offset:1024'],
                  [f'buffer_load_dwordx4 {v(vE + 8, 4)}, {v(vL16)}, {s(S_G, 4)}, 0 offen'],
                  [f'buffer_load_dwordx4 {v(vE + 12, 4)}, {v(vL16)}, {s(S_G, 4)}, 0 offen offset:1024']]
            k1_substep(a, grp, typ, 0, dma=False, vm=9, extra=gl + nl)
            k1_substep(a, grp, typ, 1, dma=False, vm=0)
            k1_substep(a, grp, typ, 2, dma=False, vm=63, fill=gate_code())
            bd = []
            for j in range(14):
                bd += k2_dma_b(j)
            un = group_dma(bd)
            un = [un[2 * q] + un[2 * q + 1] for q in range(7)]
            k1_substep(a, grp, typ, 3, dma=False, reads=False, last=True, extra=un)
            stamp(a, 6)
            if OPT['eprio']:
                a(f's_setprio {OPT["eprio"]}')
            if typ == 0:
                k1_epilogue_A(a, grp, L)
            else:
                k1_epilogue_B(a, grp, L)
            a('s_branch P2_start')
    a.label('P2_start')
    if OPT['eprio']:
        a('s_setprio 0')
    stamp(a, 9)
    get_nonce(a, 'P2n')
    a(f's_and_b32 {s(sT0)}, {s(sRole)}, 0xf8')
    a(f's_lshl_b32 {s(sT0)}, {s(sT0)}, 7')
    a(f's_add_u32 {s(sT0)}, {s(sT0)}, {F_WG}')
    a('v_and_b32 v5, 3, v1')
    a('v_lshlrev_b32 v5, 8, v5')
    a(f'v_add_u32 {v(vF3)}, {s(sT0)}, v5')
    a(f'v_add_u32 {v(vFa)}, 128, {v(vF3)}')
    a(f'v_add_u32 {v(vOFa)}, 4, {v(vFa)}')
    a(f's_lshl_b32 {s(sT0)}, {s(sI)}, 12')
    a(f's_add_u32 {s(sT0)}, {s(sT0)}, {F_WG}')
    a('v_lshlrev_b32 v5, 7, v1')
    a(f'v_add_u32 v6, {s(sT0)}, v5')
    a('v_cmp_gt_u32 vcc, 32, v1')
    a(f'v_cndmask_b32 {v(vOFa)}, {v(vOFa)}, v6, vcc')
    a(f's_lshl_b32 {s(sT2)}, {s(sI)}, 4')
    a(f's_lshl_b32 {s(sT3)}, {s(sWave)}, 1')
    a(f's_add_u32 {s(sT2)}, {s(sT2)}, {s(sT3)}')
    a(f's_and_b32 {s(sT3)}, {s(s2Kq)}, 1')
    a(f's_add_u32 {s(sT3)}, {s(sT2)}, {s(sT3)}')
    a(f's_mul_i32 {s(sT0)}, {s(sT3)}, {144 * 1024}')
    a(f'v_add_u32 {v(k2AV)}, {s(sT0)}, {v(vL16)}')
    a(f's_xor_b32 {s(sT1)}, {s(sT3)}, 1')
    a(f's_mul_i32 {s(sT0)}, {s(sT1)}, {144 * 1024}')
    a(f'v_add_u32 {v(k2AV + 1)}, {s(sT0)}, {v(vL16)}')
    a('v_and_b32 v5, 15, v1')
    a('v_lshlrev_b32 v5, 2, v5')
    for m, sr in ((0, sT3), (1, sT1)):
        a(f's_lshl_b32 {s(sT0)}, {s(sr)}, 6')
        a(f's_add_u32 {s(sT0)}, {s(sT0)}, {E_OFF}')
        a(f'v_add_u32 {v(k2E + m)}, {s(sT0)}, v5')
    a(f's_lshl_b32 {s(sEoff)}, {s(sT3)}, 4')
    a(f's_mul_i32 {s(s2Aoff)}, {s(s2Kq)}, {28 * 1024}')
    a(f's_add_u32 {s(s2Aoff)}, {s(s2Aoff)}, {32 * 1024}')
    a(f's_lshl_b32 {s(s2Aa)}, {s(s2Kq)}, 13')
    a(f's_lshl_b32 {s(sT0)}, {s(sT)}, 7')
    a(f's_add_u32 {s(sT0)}, {s(sT0)}, {F_KV}')
    a(f'v_add_u32 {v(vKa)}, {s(sT0)}, v5')
    def noncrit(tag):
        a(f'v_bfe_u32 v3, v1, 2, 2')
        a(f'v_lshl_add_u32 v5, v2, 2, v3')
        a('v_and_b32 v6, 7, v5')
        a(f's_lshr_b32 {s(sT2)}, {s(s2Kq)}, 1')
        a(f's_lshl_b32 {s(sT2)}, {s(sT2)}, 2')
        a(f'v_xor_b32 v6, {s(sT2)}, v6')
        a('v_lshlrev_b32 v5, 8, v5')
        a('v_and_b32 v3, 3, v1')
        a('v_lshl_add_u32 v5, v3, 3, v5')
        for n in range(8):
            a(f'v_xor_b32 v7, {n}, v6')
            a(f'v_lshl_add_u32 {v(k2RA + n)}, v7, 5, v5')
            a(f'v_add_u32 {v(k2RA + 8 + n)}, 65536, {v(k2RA + n)}')
            a(f'v_add_u32 {v(k2RA + 16 + n)}, 131072, {v(k2RA + n)}')
        srd(a, S2_OUT, 20, 2048 * 1024 * 2)
        srd(a, S2_WO, 8, 1024 * 2048)
        srd(a, S2_KV, 24, WS_SIZE)
        a(f's_cmp_ge_u32 {s(sWave)}, 6')
        a(f's_cselect_b32 {s(S2_KV + 2)}, 0, {s(S2_KV + 2)}')
        a(f's_mul_i32 {s(sKVo)}, {s(sT)}, {2 * 49152}')
        a(f's_add_u32 {s(sKVo)}, {s(sKVo)}, {KVP_OFF}')
        a(f's_lshl_b32 {s(sT3)}, {s(sWave)}, 11')
        a(f's_add_u32 {s(sKVo)}, {s(sKVo)}, {s(sT3)}')
        a(f's_cmp_ge_u32 {s(sWave)}, 3')
        a(f's_cselect_b32 {s(sT3)}, {49152 - 6144}, 0')
        a(f's_add_u32 {s(sKVo)}, {s(sKVo)}, {s(sT3)}')
        a(f's_cmp_eq_u32 {s(sTyp)}, 0')
        a('s_cbranch_scc1 P2_noq' + tag)
        for n in range(2):
            for m in range(4):
                phi4(a, acc(n, m), CH + (m & 1) * 4)
        for m in range(4):
            for n in range(2):
                cvt4(a, PQ + m * 4 + 2 * n, acc(n, m))
        a.label('P2_noq' + tag)
        for r in range(0, 64, 2):
            a(f'v_pk_mov_b32 {v(k2ACC + r, 2)}, 0, 0')


    a(f's_cmp_eq_u32 {s(sGrp)}, 1')
    a('s_cbranch_scc1 P2_g1skip')
    noncrit('a')
    a.label('P2_g1skip')
    a('s_waitcnt vmcnt(0)')
    a('s_barrier')
    stamp(a, 10)
    a(f's_cmp_lg_u32 {s(sWave)}, 3')
    a('s_cbranch_scc1 P2_noflag')
    a(f'buffer_store_dword {v(vNon)}, off, {s(S_WS, 4)}, {s(sFW)} sc1')
    a(f's_cmp_eq_u32 {s(sTyp)}, 0')
    a('s_cbranch_scc1 P2_c1')
    a('v_cmp_gt_u32 vcc, 32, v1')
    a(f'v_cndmask_b32 {v(vFa)}, {v(vKa)}, {v(vFa)}, vcc')
    a.label('P2_c1')
    a(f'v_mov_b32 {v(vFv)}, 0')
    flag_check(a, 'P2c1', vFv, vFa, sleep=0)
    a.label('P2_noflag')
    a(f's_cmp_eq_u32 {s(sGrp)}, 0')
    a('s_cbranch_scc1 P2_g0skip')
    if OPT['g1mid']:
        noncrit('b')
    a.label('P2_g0skip')
    a('s_barrier')
    stamp(a, 13)
    vmc, vmb, vm7 = VM(), VM(), VM()

    def emit(lst, tag, only=None):
        for x in lst:
            a(x)
            if x.startswith('buffer_'):
                if only is None:
                    for t in (vmc, vmb, vm7):
                        t.issue(tag)
                else:
                    only.issue(tag)
    for j in range(3):
        emit(k2_load_a(j), f'A{j}')
    if not OPT['g1mid']:
        a(f's_cmp_eq_u32 {s(sGrp)}, 0')
        a('s_cbranch_scc1 P2_g0skip2')
        noncrit('b')
        a.label('P2_g0skip2')
    for x in k2_reads(0, 0):
        a(x)

    def bblock(j):
        L = f'P2b{j}'
        if j in (0, 2, 4, 6, 8):
            c = j // 2
            a(f's_cmp_eq_u32 {s(sTyp)}, 0')
            a(f's_cbranch_scc1 {L}')
            if c > 0:
                a(f's_waitcnt vmcnt({vmb.count(f"C{c - 1}")})')
                for q in range(4):
                    if c == 1:
                        a(f'v_pk_add_f32 {v(SUM + q * 2, 2)}, {v(CH + q * 2, 2)}, {v(CH + 8 + q * 2, 2)}')
                    else:
                        a(f'v_pk_add_f32 {v(SUM + q * 2, 2)}, {v(SUM + q * 2, 2)}, {v(CH + q * 2, 2)}')
                        a(f'v_pk_add_f32 {v(SUM + q * 2, 2)}, {v(SUM + q * 2, 2)}, {v(CH + 8 + q * 2, 2)}')
            if c < 4:
                for i in range(2):
                    a(f's_add_u32 {s(sT2)}, {s(sKVo)}, {(2 * c + i) * 6144}')
                    emit([f'buffer_load_dwordx4 {v(CH + (i * 2 + hh) * 4, 4)}, {v(vL16)}, {s(S2_KV, 4)}, {s(sT2)} offen offset:{hh * 1024} sc1'
                          for hh in range(2)], f'C{c}', vmb)
            else:
                for q in range(4):
                    a(f'v_cvt_pk_bf16_f32 {v(CH + q)}, {v(SUM + 2 * q)}, {v(SUM + 2 * q + 1)}')
                a(f's_lshl_b32 {s(sT3)}, {s(sWave)}, 10')
                a(f's_add_u32 {s(sT3)}, {s(sT3)}, {KFL}')
                a(f'v_add_u32 {v(k2T)}, {s(sT3)}, {v(vL16)}')
                a(f'ds_write_b128 {v(k2T)}, {v(CH, 4)}')
            a.label(L)
        if j == 12:
            a(f's_cmp_eq_u32 {s(sTyp)}, 0')
            a(f's_cbranch_scc1 {L}')
            a(f's_mul_i32 {s(sT3)}, {s(sGrp)}, 3072')
            a(f's_add_u32 {s(sT3)}, {s(sT3)}, {KFL}')
            a(f'v_add_u32 {v(k2T)}, {s(sT3)}, {v(vL16)}')
            for f in range(3):
                a(f'ds_read_b128 {v(KF + f * 4, 4)}, {v(k2T)} offset:{f * 1024}')
            a(f's_mul_i32 {s(sKVo)}, {s(sT)}, 7')
            a(f's_add_u32 {s(sKVo)}, {s(sKVo)}, 32')
            a(f's_sub_u32 {s(sKVo)}, {s(sH)}, {s(sKVo)}')
            a(f's_lshl_b32 {s(sKVo)}, {s(sKVo)}, 10')
            a(f's_add_u32 {s(sKVo)}, {s(sKVo)}, {s(sA2)}')
            a.label(L)
        if j in (13, 14, 15, 16):
            m = j - 13
            a(f's_cmp_eq_u32 {s(sTyp)}, 0')
            a(f's_cbranch_scc1 {L}')
            for b in (2, 0, 1):
                a(f'v_mfma_f32_16x16x32_bf16 {v(NUM + b * 4, 4)}, {v(KF + b * 4, 4)}, {v(PQ + m * 4, 4)}, 0')
            dn = NUM + 8
            a(f'v_add_f32 {v(dn)}, {s(sEps)}, {v(dn)}')
            a(f'v_rcp_f32 {v(dn)}, {v(dn)}')
            for b in range(2):
                r = NUM + b * 4
                for h in (0, 2):
                    a(f'v_pk_mul_f32 {v(r + h, 2)}, {v(r + h, 2)}, {v(dn, 2)} op_sel_hi:[1,0]')
                cvt4(a, OOUT + 2 * b, r)
            emit([f'buffer_store_dwordx4 {v(OOUT, 4)}, {v(vL16)}, {s(S_WS, 4)}, {s(sKVo)} offen sc1'], 'O', vmb)
            a(f's_add_u32 {s(sKVo)}, {s(sKVo)}, {144 * 1024}')
            a.label(L)
        if j == 18:
            a(f's_lshl_b32 {s(sT0)}, {s(sWave)}, 1')
            a(f's_or_b32 {s(sT0)}, {s(sT0)}, {s(sTyp)}')
            a(f's_cmp_eq_u32 {s(sT0)}, 13')
            a(f's_cbranch_scc0 {L}')
            a(f'buffer_store_dword {v(vNon)}, off, {s(S_WS, 4)}, {s(sFW)} offset:4 sc1')
            a.label(L)

    CHK = {8: (11, vF3, 'c2'), 21: (23, vOFa, 'c3')}
    for j in range(36):
        cur, nxt = j & 1, (j + 1) & 1
        kind, idx = ORDER[j]
        if j == 0:
            a(f's_waitcnt vmcnt({vmc.count("A0")}) lgkmcnt(0)')
            stamp(a, 14)
        bblock(j)
        if j in CHK:
            a(f's_cmp_lg_u32 {s(sWave)}, 7')
            a(f's_cbranch_scc1 P2_nl{j}')
            emit([f'buffer_load_dword {v(vOF)}, {v(CHK[j][1])}, {s(S_WS, 4)}, 0 offen sc1'], CHK[j][2], vm7)
            a.label(f'P2_nl{j}')
        if j == 24:
            emit([f'buffer_load_dword {v(k2E + m)}, {v(k2E + m)}, {s(S_WS, 4)}, 0 offen sc1' for m in range(2)], 'E')
        if j == 28:
            a(f's_waitcnt vmcnt({vmc.count("E")})')
            for m in range(2):
                a(f'v_rcp_f32 {v(k2E + m)}, {v(k2E + m)}')
            for q in range(2):
                for h in range(4):
                    a(f'v_mul_f32 {v(k2ACC + q * 4 + h)}, {v(k2E + (q & 1))}, {v(k2ACC + q * 4 + h)}')
        A0 = k2A + (j % NA) * 8
        if kind == 'b' and idx % 14 in (2, 11):
            a(f's_bitcmp0_b32 {s(s2Kq)}, 0')
            a(f's_cbranch_scc0 K2_sp1_{j}')
            a(f'v_swap_b32 {v(A0 + 2)}, {v(A0 + 4)}')
            a(f'v_swap_b32 {v(A0 + 3)}, {v(A0 + 5)}')
            a(f's_branch K2_spd_{j}')
            a.label(f'K2_sp1_{j}')
            a(f'v_swap_b32 {v(A0)}, {v(A0 + 6)}')
            a(f'v_swap_b32 {v(A0 + 1)}, {v(A0 + 7)}')
            a.label(f'K2_spd_{j}')
            a('s_nop 1')
        units = []
        if j + 3 < 36:
            units += [(u, f'A{j + 3}') for u in group_dma(k2_load_a(j + 3))]
        if j == 6:
            units += [(k2_dma_b(18), 'B18')]
        jb = j + 14 if j < 4 else j + 13
        if j not in (4, 5) and jb < 36:
            units += [(k2_dma_b(jb), f'B{jb}')]
        rd = k2_reads(nxt, (j + 1) % RING) if j < 35 else []
        k = ui = 0
        for n in range(8):
            for m in range(2):
                d = v(k2acc(n, m), 4)
                if j == 28 and k + 2 < 16:
                    for h in range(4):
                        a(f'v_mul_f32 {v(k2ACC + (k + 2) * 4 + h)}, {v(k2E + (k & 1))}, {v(k2ACC + (k + 2) * 4 + h)}')
                a(f'v_mfma_f32_16x16x32_bf16 {d}, {v(k2BF + cur * 32 + n * 4, 4)}, {v(A0 + m * 4, 4)}, {d}')
                for _ in range(OPT['p2rd']):
                    if rd:
                        a(rd.pop(0))
                if k in OPT['p2pos'] and ui < len(units):
                    emit(units[ui][0], units[ui][1])
                    ui += 1
                k += 1
        assert ui == len(units)
        if j == 35:
            break
        for jl, (jc, va, nm) in CHK.items():
            if j == jc:
                a(f's_cmp_lg_u32 {s(sWave)}, 7')
                a(f's_cbranch_scc1 P2_nc{j}')
                a(f's_waitcnt vmcnt({vm7.count(nm)})')
                flag_check(a, 'P2' + nm, vOF, va)
                a.label(f'P2_nc{j}')
        def need(t):
            n = t.count(f'A{j + 1}')
            if j % 6 == 5:
                for jb in range(j + 2, j + 8):
                    if 14 <= jb < 36:
                        n = min(n, t.count(f'B{jb}'))
                if j == 17 and t is vmb:
                    n = min(n, t.count('O'))
            return n
        nc, nb_ = need(vmc), need(vmb)
        if nc != nb_:
            a(f's_cmp_eq_u32 {s(sTyp)}, {1 if nc < nb_ else 0}')
            a(f's_cbranch_scc1 P2_w{j}')
            a(f's_waitcnt vmcnt({min(nc, nb_)})')
            a.label(f'P2_w{j}')
        a(f's_waitcnt vmcnt({max(nc, nb_)}) lgkmcnt(0)')
        if j % 6 == 5:
            a('s_barrier')
    stamp(a, 16)
    a(f's_lshl_b32 {s(sT2)}, {s(sWave)}, 11')
    PK = 8
    for d in (1, 2, 3):
        a(f's_xor_b32 {s(sT0)}, {s(sRole)}, {d << 3}')
        a(f's_mul_i32 {s(sT0)}, {s(sT0)}, 49152')
        a(f's_add_u32 {s(sT0)}, {s(sT0)}, {s(sT2)}')
        a(f's_add_u32 {s(sT0)}, {s(sT0)}, {XCH_OFF + (d - 1) * 16384}')
        m, nb = d & 1, (d >> 1) * 4
        p = PK + (d - 1) * 8
        for n in range(4):
            cvt4(a, p + n * 2, k2acc(nb + n, m))
        for q in range(2):
            a(f'buffer_store_dwordx4 {v(p + q * 4, 4)}, {v(vL16)}, {s(S_WS, 4)}, {s(sT0)} offen offset:{q * 1024} sc1')
    a(f'v_add_f32 {v(k2E)}, 1.0, {v(k2E)}')
    a(f'v_rcp_f32 {v(k2E)}, {v(k2E)}')
    a(f's_lshl_b32 {s(sT0)}, {s(sRole)}, 3')
    a(f's_add_u32 {s(sT0)}, {s(sT0)}, {s(sWave)}')
    a(f's_lshl_b32 {s(sT0)}, {s(sT0)}, 7')
    a('v_and_b32 v5, 3, v1')
    a('v_max_u32 v5, 1, v5')
    a('v_lshlrev_b32 v5, 13, v5')
    a(f'v_xor_b32 v5, {s(sT0)}, v5')
    a(f'v_add_u32 {v(vFa)}, {F_X}, v5')
    a(f's_add_u32 {s(sT0)}, {s(sT0)}, {F_X}')
    a(f's_mul_i32 {s(sT1)}, {s(sRole)}, 49152')
    a(f's_add_u32 {s(sT1)}, {s(sT1)}, {s(sT2)}')
    a(f's_add_u32 {s(sT1)}, {s(sT1)}, {XCH_OFF}')
    a('v_and_b32 v5, 15, v1')
    a('v_and_b32 v6, 7, v1')
    a('v_lshrrev_b32 v7, 1, v2')
    a('v_xor_b32 v6, v6, v7')
    a('v_lshlrev_b32 v5, 7, v5')
    a('v_and_b32 v7, 1, v2')
    a('v_lshl_add_u32 v5, v7, 3, v5')
    a(f's_add_u32 {s(sC)}, {s(sT2)}, {KFL}')
    a(f'v_add_u32 v5, {s(sC)}, v5')
    for n in range(4):
        a(f'v_xor_b32 v7, {2 * n}, v6')
        a(f'v_lshl_add_u32 {v(k2RA + n)}, v7, 4, v5')
    a('v_lshrrev_b32 v6, 3, v1')
    a('v_and_b32 v7, 7, v1')
    a(f'v_xor_b32 {v(k2T)}, v6, v7')
    a(f'v_lshlrev_b32 {v(k2T)}, 4, {v(k2T)}')
    a(f'v_lshl_add_u32 {v(k2T)}, v6, 7, {v(k2T)}')
    a(f'v_add_u32 {v(k2T)}, {s(sC)}, {v(k2T)}')
    a('v_lshlrev_b32 v7, 4, v7')
    a('v_lshl_add_u32 v7, v6, 11, v7')
    a(f'v_mov_b32 {v(vFv)}, 0')
    stamp(a, 17)
    a('s_waitcnt vmcnt(0)')
    a(f'buffer_store_dword {v(vNon)}, off, {s(S_WS, 4)}, {s(sT0)} sc1')
    stamp(a, 18)
    flag_check(a, 'K2x', vFv, vFa, sleep=0)
    stamp(a, 19)
    RX = 40
    for d in range(3):
        for q in range(2):
            a(f'buffer_load_dwordx4 {v(RX + d * 8 + q * 4, 4)}, {v(vL16)}, {s(S_WS, 4)}, {s(sT1)} offen offset:{q * 1024} sc1')
        if d < 2:
            a(f's_add_u32 {s(sT1)}, {s(sT1)}, 16384')
    a(f's_lshl_b32 {s(sT0)}, {s(sEoff)}, 11')
    a(f's_lshl_b32 {s(sT2)}, {s(s2Cb)}, 8')
    a(f's_add_u32 {s(sT0)}, {s(sT0)}, {s(sT2)}')
    a(f's_lshr_b32 {s(sT2)}, {s(s2Kq)}, 1')
    a(f's_lshl_b32 {s(sT2)}, {s(sT2)}, 7')
    a(f's_add_u32 {s(sT0)}, {s(sT0)}, {s(sT2)}')
    a(f's_add_u32 {s(sT2)}, {s(sT0)}, {8 * 2048}')
    UP = 64
    for d in range(3):
        a(f's_waitcnt vmcnt({4 - 2 * d})')
        for n in range(4):
            r = k2acc(n, 0)
            u = UP + (n & 1) * 4
            for h in range(2):
                src = RX + d * 8 + n * 2 + h
                a(f'v_lshlrev_b32 {v(u + 2 * h)}, 16, {v(src)}')
                a(f'v_and_b32 {v(u + 2 * h + 1)}, 0xffff0000, {v(src)}')
            for h in (0, 2):
                a(f'v_pk_add_f32 {v(r + h, 2)}, {v(r + h, 2)}, {v(u + h, 2)}')
    for n in range(4):
        r = k2acc(n, 0)
        for h in (0, 2):
            a(f'v_pk_mul_f32 {v(r + h, 2)}, {v(r + h, 2)}, {v(k2E, 2)} op_sel_hi:[1,0]')
        cvt4(a, 8 + n * 2, r)
        a(f'ds_write_b64 {v(k2RA + n)}, {v(8 + n * 2, 2)}')
    a('s_waitcnt lgkmcnt(0)')
    a(f'ds_read_b128 v[16:19], {v(k2T)}')
    a(f'ds_read_b128 v[20:23], {v(k2T)} offset:1024')
    a('s_waitcnt lgkmcnt(1)')
    a(f'buffer_store_dwordx4 v[16:19], v7, {s(S2_OUT, 4)}, {s(sT0)} offen')
    a('s_waitcnt lgkmcnt(0)')
    a(f'buffer_store_dwordx4 v[20:23], v7, {s(S2_OUT, 4)}, {s(sT2)} offen')
    if OPT['stamp']:
        a('s_waitcnt vmcnt(0)')
        stamp(a, 20)
        a(f's_lshl_b32 {s(sT0)}, s2, 3')
        a(f's_add_u32 {s(sT0)}, {s(sT0)}, {s(sWave)}')
        a(f's_lshl_b32 {s(sT0)}, {s(sT0)}, 8')
        a(f's_add_u32 {s(sT0)}, {s(sT0)}, {STAMP_OFF}')
        a('v_lshlrev_b32 v0, 2, v1')
        a(f'buffer_store_dword v{vSt}, v0, {s(S_WS, 4)}, {s(sT0)} offen')
    a.label('K_end')
    a('s_endpgm')
    a.label('K_code_end')


HEADER = open('cdna_kernels/%s.s.ref' % NAME).read().split('; Override launch')[0]


def build():
    out = HEADER
    out += '; @launch grid=(256,1,1) block=(512,1,1) lds=163840\n'
    out += '.amdgcn_target "amdgcn-amd-amdhsa--gfx950"\n.text\n'
    a = Asm()
    gen(a)
    out += f'.globl {KN}\n.p2align 8\n.type {KN},@function\n'
    out += f'.set CODE_LAST, K_code_end - {KN} - 64\n'
    out += a.finalize()
    out += f'''.section .rodata,"a"
.p2align 6
.amdhsa_kernel {KN}
  .amdhsa_next_free_vgpr 256
  .amdhsa_next_free_sgpr 102
  .amdhsa_accum_offset 256
  .amdhsa_group_segment_fixed_size 0
  .amdhsa_kernarg_size 88
  .amdhsa_user_sgpr_count 2
  .amdhsa_user_sgpr_kernarg_segment_ptr 1
  .amdhsa_system_sgpr_workgroup_id_x 1
.end_amdhsa_kernel
'''
    return out


if __name__ == '__main__':
    path = sys.argv[1] if len(sys.argv) > 1 else f'cdna_kernels/{NAME}.s'
    for kv in sys.argv[2:]:
        k, val = kv.split('=', 1)
        if val in ('True', 'False'):
            val = val == 'True'
        elif val.lstrip('-').isdigit():
            val = int(val)
        elif ',' in val:
            val = tuple(int(x) for x in val.split(','))
        if k.startswith('nt'):
            val = ' ' + val.replace('_', ' ')
        OPT[k] = val
    open(path, 'w').write(build())
```

```python
import sys
from asmlib import Asm, v, s

NAME = 'gated_mix__linear_attn_block__dense_activation_mish__prompt'
KN = NAME + '_kernel'

A2_OFF = 0
E_OFF = 0x1300000
FLG_OFF = 0x1310000
F_KV = FLG_OFF
F_WG = FLG_OFF + 0x2000
F_X = 0x2500000
F_W = FLG_OFF + 0xA000
EP_OFF = FLG_OFF + 0xF000
KVP_OFF = 0x1400000
XCH_OFF = 0x1800000
STAMP_OFF = 0x3000000
WS_SIZE = 268435456
LOG2E = 0x3fb8aa3b
SPIN_MAX = 100000

OPT = dict(stamp=False, dma_every=3, b2pf=True, codepf=True, b2u=1, b2all=0, pfx=None, fwarm=True, tlb=0, xsleep=0, sendfirst=True, snake=True, lateb=True, nta=' sc1', dbgout=0, nto=' nt', xp1='', g1mid=True, eprio=2, yprio=False, yprio2=False, nopk=False, ntw='', ntx='', ntb='', ntp='', probar=False, xp_same=False, u1=(0,0,0,1,1,2,2,2), p2pos=(3,7,10,13), xp2='', asc=' sc1', fastmish=True, p2rd=2, b0=2)

S_X, S_W, S_WS, S_DBG, S_B1, S_B1Z, S_G, S_PF = 28, 32, 36, 40, 44, 48, 52, 88
S2_B, S2_OUT, S2_AL = 44, 48, 52
sI, sT, sTyp, sWave, sW3, sGrp = 56, 57, 58, 59, 60, 61
sP0, sP1, sS, sZ2 = 62, 63, 64, 65
sWstr, sWoff, sWstep = 66, 67, 68
sXK, sXD, sXR, sCnt = 69, 70, 71, 72
sT0, sT1, sT2, sT3 = 73, 74, 75, 76
sM0W, sM0X = 77, 78
sC, sL2E = 79, 80
sH, sNon = 82, 83
sPFo = 84
sPFu, sPFu1, sPFnr = 3, 10, 11
sPF2b, sPF2nr, sPF2o = 14, 4, 5
sC60, sEps, sEoff = 85, 86, 87
sA2 = 92
s2Cb, s2Kq = 94, 95
s2Aoff, s2Boff, sGoff, sKVo, sFW = 96, 97, 98, 99, 100
sM2, sRole = 101, 93
s2Asw = 81
s2Aa, s2Ba = 18, 19
vOF = 111
vOFa = 112
vSt = 4
WF, XF = 8, 64
vXA0c, vXA1c, vXA0, vXA1 = 96, 97, 98, 99
vWZ12, vWZ3 = 100, 102
vXV, vWV = 105, 107
vPF = 109
vNon = 110
vL16 = 113
vBV = 114
vT = 116
ACC = 128
vE = 240
RING = 18
NA = 4
k2A = 8
PQ = 40
CH = 56
SUM = 72
KF, NUM, OOUT = 56, 68, 116
k2RA = 80
k2AV = 104
k2E = 106
vFa, vFv, vKa, vF3 = 120, 121, 122, 123
k2T = 124
k2ACC = 128
k2BF = 192
S2_WO = 88
S2_KV = 28


class VM:
    def __init__(self):
        self.ops = []

    def issue(self, tag):
        self.ops.append(tag)

    def count(self, tag):
        idx = max(i for i, t in enumerate(self.ops) if t == tag)
        return min(63, len(self.ops) - 1 - idx)


def stamp(a, idx):
    if not OPT['stamp']:
        return
    a('s_memtime s[26:27]')
    a('s_waitcnt lgkmcnt(0)')
    a(f'v_writelane_b32 v{vSt}, s26, {idx}')
    a('s_memrealtime s[26:27]')
    a('s_waitcnt lgkmcnt(0)')
    a(f'v_writelane_b32 v{vSt}, s26, {idx + 32}')


def srd(a, base, ptr, nbytes):
    a(f's_mov_b32 {s(base)}, {s(ptr)}')
    a(f's_and_b32 {s(base+1)}, {s(ptr+1)}, 0xffff')
    a(f's_mov_b32 {s(base+2)}, {nbytes}')
    a(f's_mov_b32 {s(base+3)}, 0x00020000')


def acc(n, m):
    return ACC + (n * 4 + m) * 4


def wf(buf, n):
    return WF + buf * 28 + n * 4


def xf(buf, m):
    return XF + buf * 16 + m * 4


def k1_reads(grp, buf, wslot, kk):
    nt = 7 if grp == 0 else 6
    xa = vXA0 if kk == 0 else vXA1
    xs = [f'ds_read_b128 {v(xf(buf, m), 4)}, {v(xa)} offset:{m * 2048}' for m in range(4)]
    ws = []
    for n in range(nt):
        if n < 4:
            addr = vWZ12 + (n & 1)
            off = wslot * 16384 + (4096 if n >= 2 else 0)
            d2 = 512
        else:
            addr = vWZ3 + (n - 4)
            off = wslot * 16384
            d2 = 1024
        ws.append(f'ds_read_b64_tr_b16 {v(wf(buf, n), 2)}, {v(addr)} offset:{off}')
        ws.append(f'ds_read_b64_tr_b16 {v(wf(buf, n) + 2, 2)}, {v(addr)} offset:{off + d2}')
    if 'w' in OPT['xp1']:
        ws = ws[:len(ws) // 2]
    if 'W' in OPT['xp1']:
        ws = ws[:2]
    if 'X' in OPT['xp1']:
        xs = xs[:1]
    return ws[:2] + xs + ws[2:]


def k1_dma_w(slot):
    out = [f's_add_u32 m0, {s(sM0W)}, {slot * 16384}']
    for j in range(2):
        out.append(f'buffer_load_dwordx4 {v(vWV + j)}, {s(S_W, 4)}, {s(sWoff)} offen offset:{j * 1024}{OPT["ntw"]} lds')
    out.append(f's_add_u32 {s(sWoff)}, {s(sWoff)}, {s(sWstep)}')
    return out


def k1_dma_x(par):
    out = []
    if par == 0:
        out.append(f's_add_u32 {s(sXK)}, {s(sXK)}, 128')
        out.append(f's_add_u32 {s(sXD)}, {s(sXD)}, 32768')
        out.append(f's_cmp_eq_u32 {s(sXD)}, 98304')
        out.append(f's_cselect_b32 {s(sXD)}, 0, {s(sXD)}')
        out.append(f's_add_u32 m0, {s(sXD)}, {s(sM0X)}')
        so = sXK
    else:
        out.append(f's_add_u32 {s(sT0)}, {s(sXK)}, 262144')
        out.append(f's_add_u32 {s(sT1)}, {s(sXD)}, {s(sM0X)}')
        out.append(f's_add_u32 m0, {s(sT1)}, 16384')
        so = sT0
    for j in range(2):
        out.append(f'buffer_load_dwordx4 {v(vXV + j)}, {s(S_X, 4)}, {s(so)} offen offset:{j * 1024}{OPT["ntx"]} lds')
    return out


def k1_adv_xread():
    return [f's_add_u32 {s(sXR)}, {s(sXR)}, 32768',
            f's_cmp_eq_u32 {s(sXR)}, 98304',
            f's_cselect_b32 {s(sXR)}, 0, {s(sXR)}',
            f'v_add_u32 {v(vXA0)}, {s(sXR)}, {v(vXA0c)}',
            f'v_add_u32 {v(vXA1)}, {s(sXR)}, {v(vXA1c)}']


def k1_mfmas(grp, typ, buf):
    nt = 7 if grp == 0 else 6
    out = []
    for n in range(nt):
        for m in (range(4) if (n % 2 == 0 or not OPT['snake']) else range(3, -1, -1)):
            d = v(acc(n, m), 4)
            W = v(wf(buf, n), 4)
            X = v(xf(buf, m), 4)
            if typ == 0 and n < 4:
                out.append(f'v_mfma_f32_16x16x32_bf16 {d}, {X}, {W}, {d}')
            else:
                out.append(f'v_mfma_f32_16x16x32_bf16 {d}, {W}, {X}, {d}')
    return out


def group_dma(lst):
    units = []
    cur = []
    for x in lst:
        cur.append(x)
        if x.startswith('buffer_'):
            units.append(cur)
            cur = []
    if cur:
        units[-1] = units[-1] + cur
    return units


_tn = [0]


def b2_touch():
    _tn[0] += 1
    L = f'PFs{_tn[0]}'
    return [[f's_sub_u32 {s(sPFu1)}, {s(sPFu1)}, 1',
             f's_cbranch_scc0 {L}',
             f'buffer_load_dword v3, {v(vPF)}, {s(S_PF, 4)}, {s(sPFo)} offen{OPT["ntp"]}',
             f's_mov_b32 {s(sPFu1)}, {s(sPFu)}',
             f's_add_u32 {s(sPFo)}, {s(sPFo)}, 8192',
             f's_mov_b32 {s(sPFu)}, 1000',
             f'{L}:']]


def pf_setup(a):
    srd(a, S_PF, 16, 3584 * 2048)
    a(f's_mov_b32 {s(sT0)}, {896 * 128}')
    a(f'v_mul_lo_u32 {v(vPF)}, v1, {s(sT0)}')
    a(f's_lshl_b32 {s(sT2)}, {s(sWave)}, 8')
    a(f's_add_u32 {s(sT2)}, {s(sT2)}, s2')
    a(f's_lshl_b32 {s(sPFo)}, {s(sT2)}, 7')
    a(f's_lshr_b32 {s(sT0)}, s2, 3')
    a(f's_mul_i32 {s(sT0)}, {s(sT0)}, 5')
    a(f's_mul_i32 {s(sT1)}, {s(sWave)}, 9')
    a(f's_add_u32 {s(sT0)}, {s(sT0)}, {s(sT1)}')
    a(f's_and_b32 {s(sT1)}, s2, 7')
    a(f's_mul_i32 {s(sT1)}, {s(sT1)}, 3')
    a(f's_add_u32 {s(sT0)}, {s(sT0)}, {s(sT1)}')
    a(f's_mul_i32 {s(sT1)}, {s(sT0)}, 2979')
    a(f's_lshr_b32 {s(sT1)}, {s(sT1)}, 16')
    a(f's_mul_i32 {s(sT1)}, {s(sT1)}, 22')
    a(f's_sub_u32 {s(sPFnr)}, {s(sT0)}, {s(sT1)}')
    a(f's_cmp_lt_u32 {s(sT2)}, 896')
    a(f's_cselect_b32 {s(sPFu1)}, {s(sPFnr)}, 1000')
    a(f's_cmp_lg_u32 {s(sWave)}, 4')
    a('s_cbranch_scc1 PF_done')
    srd(a, S_PF, 8, 1024 * 2048)
    a(f's_mov_b32 {s(sPFu1)}, {s(sPFnr)}')
    a(f's_mov_b32 {s(sPFo)}, 0')
    a('v_mul_u32_u24 v5, 5, v1')
    a('v_add_u32 v5, s2, v5')
    a('v_and_b32 v5, 255, v5')
    a('v_lshl_add_u32 v5, v1, 8, v5')
    a(f'v_lshlrev_b32 {v(vPF)}, 7, v5')
    a.label('PF_done')
    a(f's_mov_b32 {s(sPFu)}, 1000')
    if OPT['tlb']:
        G = OPT['tlb']
        a(f's_sub_u32 {s(sT0)}, {s(sWave)}, 5')
        a(f's_cmp_gt_u32 {s(sT0)}, 1')
        a('s_cbranch_scc1 PF_notlb')
        srd(a, S_PF, 24, 0x2540000)
        a(f's_cmp_eq_u32 {s(sT0)}, 1')
        a(f's_cselect_b32 {s(S_PF)}, s20, {s(S_PF)}')
        a(f's_cselect_b32 {s(S_PF + 1)}, s21, {s(S_PF + 1)}')
        a(f's_cselect_b32 {s(S_PF + 2)}, {2048 * 2048}, {s(S_PF + 2)}')
        a(f's_and_b32 {s(S_PF + 1)}, {s(S_PF + 1)}, 0xffff')
        a(f's_lshr_b32 {s(sT0)}, s2, 3')
        a(f's_mul_i32 {s(sPFo)}, {s(sT0)}, {G}')
        a(f's_mov_b32 {s(sT1)}, {32 * G}')
        a(f'v_mul_lo_u32 {v(vPF)}, v1, {s(sT1)}')
        a(f's_mov_b32 {s(sPFu1)}, {s(sPFnr)}')
        a.label('PF_notlb')
    if OPT['pfx']:
        lo, span = OPT['pfx']
        a(f'v_lshlrev_b32 {v(vPF)}, 7, v1')
        srd(a, S_PF, 16, 3584 * 2048)
        a(f's_lshr_b32 {s(sT0)}, s2, 3')
        a(f's_mul_i32 {s(sT1)}, {s(sT0)}, 7')
        a(f's_mul_i32 {s(sT2)}, {s(s2Kq)}, 224')
        a(f's_add_u32 {s(sT1)}, {s(sT1)}, {s(sT2)}')
        a(f's_add_u32 {s(sT1)}, {s(sT1)}, {s(sWave)}')
        a(f's_lshl_b32 {s(sPFo)}, {s(sT1)}, 13')
        a(f's_mul_i32 {s(sT1)}, {s(sWave)}, 3')
        a(f's_add_u32 {s(sT1)}, {s(sT1)}, {s(sT0)}')
        a(f's_and_b32 {s(sT1)}, {s(sT1)}, {span - 1}')
        a(f's_add_u32 {s(sPFu1)}, {s(sT1)}, {lo}')
        a(f's_cmp_lg_u32 {s(sWave)}, 7')
        a('s_cbranch_scc1 PF_done2')
        srd(a, S_PF, 8, 1024 * 2048)
        a(f's_lshl_b32 {s(sT1)}, {s(sT0)}, 1')
        a(f's_lshl_b32 {s(sT2)}, {s(s2Kq)}, 6')
        a(f's_add_u32 {s(sT1)}, {s(sT1)}, {s(sT2)}')
        a(f's_lshl_b32 {s(sPFo)}, {s(sT1)}, 13')
        a(f's_lshr_b32 {s(sPFu1)}, {s(sPFu1)}, 1')
        a(f's_mov_b32 {s(sPFu)}, 3')
        a.label('PF_done2')
    if OPT['b2all']:
        a(f's_mov_b32 {s(sPFu1)}, {OPT["b2all"]}')


def k1_substep(a, grp, typ, b, dma=True, reads=True, last=False, extra=None, fill=None, vm=None):
    cur, nxt = b & 1, (b + 1) & 1
    mf = k1_mfmas(grp, typ, cur)
    pre = []
    rd = []
    if reads:
        if b & 1:
            pre += k1_adv_xread()
        rd = k1_reads(grp, nxt, (b + 1) % 4, (b + 1) & 1)
    units = []
    if dma:
        units = group_dma(k1_dma_w(b) + k1_dma_x(0 if (b & 1) else 1))
        if 'D' in OPT['xp1']:
            units = [[y for y in u if not y.startswith('buffer')] for u in units]
    if extra:
        units = units + extra
    fill = list(fill or [])
    for x in pre:
        a(x)
    ri = ui = 0
    ev = OPT['dma_every']
    ph = 0 if grp == 0 else 1
    for k, mm in enumerate(mf):
        a(mm)
        if ri < len(rd):
            a(rd[ri])
            ri += 1
        if ui < len(units) and k % ev == ph:
            for x in units[ui]:
                a(x)
            ui += 1
        for _ in range(2):
            if fill:
                a(fill.pop(0))
    assert ri == len(rd) and ui == len(units), (ri, ui, len(units))
    for x in fill:
        a(x)
    if last:
        return
    a(f's_waitcnt vmcnt({vm}) lgkmcnt(0)')
    a('s_barrier')


def mish4(a, r, t):
    T, N2, W = t, t + 4, t + 8
    late(a)
    if OPT['fastmish'] and OPT['nopk']:
        for i in range(4):
            a(f'v_mul_f32 {v(T + i)}, {s(sL2E)}, {v(r + i)}')
        for i in range(4):
            a(f'v_exp_f32 {v(T + i)}, {v(T + i)}')
        for i in range(4):
            a(f'v_fma_f32 {v(N2 + i)}, {v(T + i)}, -0.5, -1.0')
        for i in range(4):
            a(f'v_fma_f32 {v(N2 + i)}, {v(T + i)}, {v(N2 + i)}, -1.0')
        for i in range(4):
            a(f'v_rcp_f32 {v(N2 + i)}, {v(N2 + i)}')
        for i in range(4):
            a(f'v_fmac_f32 {v(r + i)}, {v(r + i)}, {v(N2 + i)}')
        return
    if OPT['fastmish']:
        for h in (0, 2):
            a(f'v_pk_mul_f32 {v(T + h, 2)}, {v(r + h, 2)}, {s(sL2E, 2)} op_sel_hi:[1,0]')
        for i in range(4):
            a(f'v_exp_f32 {v(T + i)}, {v(T + i)}')
        for h in (0, 2):
            a(f'v_pk_fma_f32 {v(N2 + h, 2)}, {v(T + h, 2)}, -0.5, -1.0 op_sel_hi:[1,0,0]')
        for h in (0, 2):
            a(f'v_pk_fma_f32 {v(N2 + h, 2)}, {v(T + h, 2)}, {v(N2 + h, 2)}, -1.0 op_sel_hi:[1,1,0]')
        for i in range(4):
            a(f'v_rcp_f32 {v(N2 + i)}, {v(N2 + i)}')
        for h in (0, 2):
            a(f'v_pk_fma_f32 {v(r + h, 2)}, {v(r + h, 2)}, {v(N2 + h, 2)}, {v(r + h, 2)}')
        return
    for h in (0, 2):
        a(f'v_pk_mul_f32 {v(T + h, 2)}, {v(r + h, 2)}, {s(sL2E, 2)} op_sel_hi:[1,0]')
    for i in range(4):
        a(f'v_min_f32 {v(T + i)}, {s(sC60)}, {v(T + i)}')
    for i in range(4):
        a(f'v_exp_f32 {v(T + i)}, {v(T + i)}')
    for h in (0, 2):
        a(f'v_pk_add_f32 {v(N2 + h, 2)}, {v(T + h, 2)}, 2.0 op_sel_hi:[1,0]')
    for h in (0, 2):
        a(f'v_pk_mul_f32 {v(W + h, 2)}, {v(T + h, 2)}, {v(N2 + h, 2)}')
    for h in (0, 2):
        a(f'v_pk_fma_f32 {v(N2 + h, 2)}, {v(T + h, 2)}, {v(N2 + h, 2)}, 2.0 op_sel_hi:[1,1,0]')
    for i in range(4):
        a(f'v_rcp_f32 {v(N2 + i)}, {v(N2 + i)}')
    for h in (0, 2):
        a(f'v_pk_mul_f32 {v(W + h, 2)}, {v(W + h, 2)}, {v(N2 + h, 2)}')
    for h in (0, 2):
        a(f'v_pk_mul_f32 {v(r + h, 2)}, {v(r + h, 2)}, {v(W + h, 2)}')


LATE = []


def late(a, n=1):
    for _ in range(n):
        if LATE:
            for y in LATE.pop(0):
                a(y)


def phi4(a, r, t):
    late(a)
    if OPT['nopk']:
        for i in range(4):
            a(f'v_mul_f32 {v(t + i)}, {s(sL2E)}, {v(r + i)}')
        for i in range(4):
            a(f'v_min_f32 {v(t + i)}, 0, {v(t + i)}')
        for i in range(4):
            a(f'v_exp_f32 {v(t + i)}, {v(t + i)}')
        for i in range(4):
            a(f'v_max_f32 {v(r + i)}, 0, {v(r + i)}')
        for i in range(4):
            a(f'v_add_f32 {v(r + i)}, {s(sEps)}, {v(r + i)}')
        for i in range(4):
            a(f'v_add_f32 {v(r + i)}, {v(r + i)}, {v(t + i)}')
        return
    for h in (0, 2):
        a(f'v_pk_mul_f32 {v(t + h, 2)}, {v(r + h, 2)}, {s(sL2E, 2)} op_sel_hi:[1,0]')
    for i in range(4):
        a(f'v_min_f32 {v(t + i)}, 0, {v(t + i)}')
    for i in range(4):
        a(f'v_exp_f32 {v(t + i)}, {v(t + i)}')
    for i in range(4):
        a(f'v_max_f32 {v(r + i)}, 0, {v(r + i)}')
    for h in (0, 2):
        a(f'v_pk_add_f32 {v(r + h, 2)}, {v(r + h, 2)}, {v(t + h, 2)}')
    for i in range(4):
        a(f'v_add_f32 {v(r + i)}, {s(sEps)}, {v(r + i)}')


def cvt4(a, o, r):
    a(f'v_cvt_pk_bf16_f32 {v(o)}, {v(r)}, {v(r + 1)}')
    a(f'v_cvt_pk_bf16_f32 {v(o + 1)}, {v(r + 2)}, {v(r + 3)}')


def k1_store_pair(a, n0, s_tau, plus, outregs, hook=None):
    a(f's_add_u32 {s(sT2)}, {s(s_tau)}, {plus}')
    a(f's_lshr_b32 {s(sT2)}, {s(sT2)}, 1')
    a(f's_lshl_b32 {s(sT2)}, {s(sT2)}, 10')
    a(f's_add_u32 {s(sT2)}, {s(sT2)}, {s(sA2)}')
    for m in range(4):
        o = outregs + (m & 1) * 4
        mish4(a, acc(n0, m), vE)
        mish4(a, acc(n0 + 1, m), vT)
        cvt4(a, o, acc(n0, m))
        cvt4(a, o + 2, acc(n0 + 1, m))
        a(f'buffer_store_dwordx4 {v(o, 4)}, {v(vL16)}, {s(S_WS, 4)}, {s(sT2)} offen{OPT["nta"]}')
        if m < 3:
            a(f's_add_u32 {s(sT2)}, {s(sT2)}, {144 * 1024}')
        if hook and m == 1:
            hook()
    return 4


def k1_store_single(a, n0, outregs):
    a(f's_lshr_b32 {s(sT2)}, {s(sS)}, 1')
    a(f's_lshl_b32 {s(sT2)}, {s(sT2)}, 10')
    a(f's_add_u32 {s(sT2)}, {s(sT2)}, {s(sA2)}')
    a(f's_and_b32 {s(sT3)}, {s(sS)}, 1')
    a(f's_mul_i32 {s(sT3)}, {s(sT3)}, {144 * 1024}')
    a(f's_add_u32 {s(sT2)}, {s(sT2)}, {s(sT3)}')
    for mp in range(2):
        o = outregs + mp * 4
        mish4(a, acc(n0, 2 * mp), vE)
        mish4(a, acc(n0, 2 * mp + 1), vT)
        cvt4(a, o, acc(n0, 2 * mp))
        cvt4(a, o + 2, acc(n0, 2 * mp + 1))
        a(f'buffer_store_dwordx4 {v(o, 4)}, {v(vL16)}, {s(S_WS, 4)}, {s(sT2)} offen{OPT["nta"]}')
        if mp == 0:
            a(f's_add_u32 {s(sT2)}, {s(sT2)}, {2 * 144 * 1024}')
    return 2


def get_nonce(a, L):
    a(f's_mov_b32 {s(sC)}, 0')
    a.label(f'{L}_nchk')
    a(f'v_readfirstlane_b32 {s(sNon)}, {v(vNon)}')
    a(f's_cmp_lg_u32 {s(sNon)}, 0')
    a(f's_cbranch_scc1 {L}_nok')
    a('s_sleep 8')
    a(f'buffer_load_dword {v(vNon)}, off, {s(S_DBG, 4)}, 0 sc1')
    a(f's_add_u32 {s(sC)}, {s(sC)}, 1')
    a('s_waitcnt vmcnt(0)')
    a(f's_cmp_lt_u32 {s(sC)}, {SPIN_MAX}')
    a(f's_cbranch_scc1 {L}_nchk')
    a.label(f'{L}_nok')


def poll_line(a, L, soff, nlanes, vtmp, sleep=4):
    a(f'v_and_b32 {v(vtmp + 1)}, {nlanes - 1}, v1')
    a(f'v_lshlrev_b32 {v(vtmp + 1)}, 2, {v(vtmp + 1)}')
    a(f's_mov_b32 {s(sC)}, 0')
    a.label(f'{L}_poll')
    a(f'buffer_load_dword {v(vtmp)}, {v(vtmp + 1)}, {s(S_WS, 4)}, {s(soff)} offen sc1')
    a(f's_add_u32 {s(sC)}, {s(sC)}, 1')
    a('s_waitcnt vmcnt(0)')
    a(f'v_cmp_ne_u32 vcc, {s(sNon)}, {v(vtmp)}')
    a('s_nop 4')
    a(f's_cbranch_vccz {L}_polled')
    a(f's_sleep {sleep}')
    a(f's_cmp_lt_u32 {s(sC)}, {SPIN_MAX}')
    a(f's_cbranch_scc1 {L}_poll')
    a.label(f'{L}_polled')


KVL = 114688
KFL = 147456


def k1_epilogue_A(a, grp, L):
    PK, VV, ONES, KV = 8, 24, 40, 44
    a('s_nop 7')
    for n in range(2):
        for m in range(4):
            phi4(a, acc(n, m), vE + (m & 1) * 4)
    for i in range(4):
        a(f'v_mov_b32 {v(ONES + i)}, 0x3f803f80')
    for src, dst in ((2, VV), (0, PK)):
        for n in range(2):
            for c in range(2):
                d = dst + (n * 2 + c) * 4
                for hh in range(2):
                    cvt4(a, d + 2 * hh, acc(src + n, 2 * c + hh))
    for c in range(2):
        for b in range(3):
            for aa in range(2):
                d = v(KV + (b * 2 + aa) * 4, 4)
                B = v(VV + (b * 2 + c) * 4, 4) if b < 2 else v(ONES, 4)
                a(f'v_mfma_f32_16x16x32_bf16 {d}, {v(PK + (aa * 2 + c) * 4, 4)}, {B}, {d if c else "0"}')
    a(f's_mul_i32 {s(sT0)}, {s(sWave)}, 6144')
    a(f's_add_u32 {s(sT0)}, {s(sT0)}, {KVL}')
    a(f'v_add_u32 {v(vT)}, {s(sT0)}, {v(vL16)}')
    for q in range(6):
        a(f'ds_write_b128 {v(vT)}, {v(KV + q * 4, 4)} offset:{q * 1024}')
    a('s_waitcnt lgkmcnt(0)')
    a('s_barrier')
    stamp(a, 7)
    a(f's_cmp_lg_u32 {s(sW3)}, 0')
    a(f's_cbranch_scc1 {L}_nosum')
    bases = (68, 8, 128)
    for w in range(3):
        for q in range(6):
            a(f'ds_read_b128 {v(bases[w] + q * 4, 4)}, {v(vT)} offset:{(w + 1) * 6144 + q * 1024}')
    a(f's_lshl_b32 {s(sT0)}, {s(sH)}, 3')
    a(f's_add_u32 {s(sT0)}, {s(sT0)}, {s(sI)}')
    a(f's_mul_i32 {s(sT1)}, {s(sT0)}, 6144')
    a(f's_add_u32 {s(sT1)}, {s(sT1)}, {KVP_OFF}')
    a(f's_add_u32 {s(sT3)}, {s(sT1)}, 4096')
    for w in range(3):
        a(f's_waitcnt lgkmcnt({12 - 6 * w})')
        for q in range(12):
            a(f'v_pk_add_f32 {v(KV + q * 2, 2)}, {v(KV + q * 2, 2)}, {v(bases[w] + q * 2, 2)}')
    for q in range(6):
        so, off = (sT1, q * 1024) if q < 4 else (sT3, (q - 4) * 1024)
        a(f'buffer_store_dwordx4 {v(KV + q * 4, 4)}, {v(vL16)}, {s(S_WS, 4)}, {s(so)} offen offset:{off} sc1')
    a(f's_lshl_b32 {s(sT0)}, {s(sT)}, 7')
    a(f's_lshl_b32 {s(sT1)}, {s(sI)}, 2')
    a(f's_add_u32 {s(sT0)}, {s(sT0)}, {s(sT1)}')
    a(f's_add_u32 {s(sT0)}, {s(sT0)}, {F_KV + grp * 32}')
    a('s_waitcnt vmcnt(0)')
    get_nonce(a, L + 'a')
    a(f'buffer_store_dword {v(vNon)}, off, {s(S_WS, 4)}, {s(sT0)} sc1')
    stamp(a, 8)
    a.label(f'{L}_nosum')
    if grp == 0:
        k1_store_pair(a, 4, sP0, 0, 72)
        k1_store_single(a, 6, 72)
    else:
        k1_store_pair(a, 4, sP1, 0, 72)


def k1_epilogue_B(a, grp, L):
    OUT = 72
    a('s_nop 7')
    k1_store_pair(a, 2, sZ2, 2 * grp, OUT)
    if grp == 0:
        k1_store_pair(a, 4, sP0, 0, OUT)
        k1_store_single(a, 6, OUT)
    else:
        k1_store_pair(a, 4, sP1, 0, OUT)
    stamp(a, 7)


def gate_code():
    GX, GW = vE, vE + 8
    o = ['v_mov_b32 v5, 0']
    for i in range(8):
        o.append(f'v_dot2_f32_bf16 v5, {v(GX + i)}, {v(GW + i)}, v5')
    o.append('s_nop 2')
    for sh in (1, 2, 4, 8):
        o.append(f'v_add_f32_dpp v5, v5, v5 row_shr:{sh} row_mask:0xf bank_mask:0xf bound_ctrl:0')
    o.append('v_add_f32_dpp v5, v5, v5 row_bcast:15 row_mask:0xa bank_mask:0xf')
    o.append('v_add_f32_dpp v5, v5, v5 row_bcast:31 row_mask:0xc bank_mask:0xf')
    o.append('v_mov_b32 v6, 0x42200000')
    o.append('v_med3_f32 v5, v5, -v6, v6')
    o.append(f'v_mul_f32 v5, {s(sL2E)}, v5')
    o.append('v_exp_f32 v5, v5')
    o.append(f'v_readlane_b32 {s(sT3)}, v5, 63')
    o.append(f'v_mov_b32 v5, {s(sT3)}')
    o.append(f'buffer_store_dword v5, off, {s(S_WS, 4)}, {s(sEoff)} sc1')
    return o


def k2acc(n, m):
    return k2ACC + (n * 2 + m) * 4


def k2_reads(buf, slot):
    out = []
    for n in range(8):
        addr = k2RA + (slot // 8) * 8 + n
        off = (slot % 8) * 8192
        d = k2BF + buf * 32 + n * 4
        out.append(f'ds_read_b64_tr_b16 {v(d, 2)}, {v(addr)} offset:{off}')
        out.append(f'ds_read_b64_tr_b16 {v(d + 2, 2)}, {v(addr)} offset:{off + 4096}')
    return out


def k2_read1(dst, slot, n):
    addr = k2RA + (slot // 8) * 8 + n
    off = (slot % 8) * 8192
    return [f'ds_read_b64_tr_b16 {v(dst, 2)}, {v(addr)} offset:{off}',
            f'ds_read_b64_tr_b16 {v(dst + 2, 2)}, {v(addr)} offset:{off + 4096}']


def p2_order():
    o = []
    for lst in ((4, 5, 8, 9), (3, 6, 7, 10), (0, 1, 12, 13), (2, 11)):
        for u in range(2):
            o += [('b', 14 * u + g) for g in lst]
    o += [('a', h) for h in range(8)]
    return o


ORDER = p2_order()


def k2_dma_b(j):
    kind, idx = ORDER[j]
    slot = j % RING
    out = [f's_add_u32 m0, {s(sM2)}, {slot * 8192}']
    base, srdn = (s2Boff, S2_B) if kind == 'b' else (s2Ba, S2_WO)
    out.append(f's_add_u32 {s(sT0)}, {s(base)}, {idx * 65536}')
    out.append(f'buffer_load_dwordx4 {v(vBV)}, {s(srdn, 4)}, {s(sT0)} offen{OPT["ntb"]} lds')
    return out


def aset(j):
    if OPT['sendfirst'] and j >= 34:
        return 40 + (j - 34) * 8
    return k2A + (j % NA) * 8


def k2_load_a(j):
    kind, idx = ORDER[j]
    base = s2Aoff if kind == 'b' else s2Aa
    out = [f's_add_u32 {s(sT1)}, {s(base)}, {idx * 1024}']
    for m in range(2):
        out.append(f'buffer_load_dwordx4 {v(aset(j) + m * 4, 4)}, {v(k2AV + m)}, {s(S_WS, 4)}, {s(sT1)} offen sc1')
    return out


def flag_check(a, L, vval, vaddr, sleep=4):
    a(f's_mov_b32 {s(sC)}, 0')
    a.label(f'{L}_c')
    a(f'v_cmp_ne_u32 vcc, {s(sNon)}, {v(vval)}')
    a('s_nop 4')
    a(f's_cbranch_vccz {L}_ok')
    if sleep:
        a(f's_sleep {sleep}')
    a(f'buffer_load_dword {v(vval)}, {v(vaddr)}, {s(S_WS, 4)}, 0 offen sc1')
    a(f's_add_u32 {s(sC)}, {s(sC)}, 1')
    a('s_waitcnt vmcnt(0)')
    a(f's_cmp_lt_u32 {s(sC)}, {SPIN_MAX}')
    a(f's_cbranch_scc1 {L}_c')
    a.label(f'{L}_ok')


def gen(a):
    a.label(KN)
    a('s_cmp_ge_u32 s2, 256')
    a('s_cbranch_scc1 K_end')
    a('s_load_dwordx16 s[4:19], s[0:1], 0')
    a('s_load_dwordx4 s[20:23], s[0:1], 64')
    a('s_load_dwordx2 s[24:25], s[0:1], 80')
    if OPT['codepf']:
        a('s_getpc_b64 s[26:27]')
        a('s_lshr_b32 s3, s2, 3')
        a('s_and_b32 s3, s3, 1')
        a('s_lshl_b32 s3, s3, 16')
        a('v_lshlrev_b32 v5, 7, v0')
        a('v_add_u32 v5, s3, v5')
        a('v_min_u32 v5, CODE_LAST, v5')
        a('global_load_dword v3, v5, s[26:27]')
    stamp(a, 0)
    a('v_and_b32 v1, 63, v0')
    a('v_lshrrev_b32 v2, 6, v0')
    a(f'v_readfirstlane_b32 {s(sWave)}, v2')
    a(f's_and_b32 {s(sT0)}, s2, 7')
    a(f's_lshr_b32 {s(sT1)}, s2, 3')
    a(f's_and_b32 {s(sI)}, {s(sT0)}, 1')
    a(f's_lshl_b32 {s(sI)}, {s(sI)}, 2')
    a(f's_and_b32 {s(sT2)}, {s(sT1)}, 3')
    a(f's_add_u32 {s(sI)}, {s(sI)}, {s(sT2)}')
    a(f's_lshr_b32 {s(sC)}, {s(sT0)}, 1')
    a(f's_lshl_b32 {s(sC)}, {s(sC)}, 3')
    a(f's_lshr_b32 {s(sT2)}, {s(sT1)}, 2')
    a(f's_add_u32 {s(sC)}, {s(sC)}, {s(sT2)}')
    a(f's_lshr_b32 {s(sT)}, {s(sC)}, 1')
    a(f's_and_b32 {s(sTyp)}, {s(sC)}, 1')
    a(f's_and_b32 {s(sW3)}, {s(sWave)}, 3')
    a(f's_lshr_b32 {s(sGrp)}, {s(sWave)}, 2')
    a(f's_cmp_eq_u32 {s(sTyp)}, 0')
    a(f's_mov_b32 {s(sT2)}, 0x286085C6')
    a(f's_cselect_b32 {s(sT2)}, 0x09CA0420, {s(sT2)}')
    a(f's_and_b32 {s(sT3)}, {s(sT)}, 1')
    a(f's_lshl_b32 {s(sT3)}, {s(sT3)}, 4')
    a(f's_lshr_b32 {s(sT2)}, {s(sT2)}, {s(sT3)}')
    a(f's_and_b32 {s(sP0)}, {s(sT2)}, 15')
    a(f's_bfe_u32 {s(sP1)}, {s(sT2)}, 0x40004')
    a(f's_bfe_u32 {s(sS)}, {s(sT2)}, 0x40008')
    a(f's_bfe_u32 {s(sZ2)}, {s(sT2)}, 0x4000c')
    a('v_lshrrev_b32 v2, 4, v1')
    a('v_lshrrev_b32 v6, 3, v1')
    a('v_and_b32 v7, 7, v1')
    a(f's_lshl_b32 {s(sT2)}, {s(sWave)}, 15')
    for j in range(2):
        a(f'v_xor_b32 v5, {4 * j}, v2')
        a('v_xor_b32 v5, v5, v7')
        a('v_lshlrev_b32 v5, 4, v5')
        a('v_lshl_add_u32 v5, v6, 11, v5')
        a(f's_add_u32 {s(sT3)}, {s(sT2)}, {j * (8 * 2048 - 1024)}')
        a(f'v_add_u32 {v(vXV + j)}, {s(sT3)}, v5')
    a(f's_lshl_b32 {s(sM0W)}, {s(sWave)}, 11')
    a(f's_add_u32 {s(sM0X)}, {s(sM0W)}, 65536')
    a(f's_lshl_b32 {s(sXK)}, {s(sI)}, 19')
    if OPT['xp_same']:
        a(f's_mov_b32 {s(sXK)}, 0')
    a(f's_sub_u32 {s(sXK)}, {s(sXK)}, 128')
    a(f's_mov_b32 {s(sXD)}, 65536')
    a(f's_mov_b32 {s(sWoff)}, 0')
    a(f's_mul_i32 {s(sA2)}, {s(sT)}, 448')
    if OPT['xp_same']:
        a(f's_and_b32 {s(sA2)}, {s(sT)}, 1')
        a(f's_mul_i32 {s(sA2)}, {s(sA2)}, 448')
    a(f's_cmp_ge_u32 {s(sWave)}, 4')
    a('s_cbranch_scc1 K1_setup_z3')
    a(f's_lshr_b32 {s(sT0)}, {s(sWave)}, 1')
    a(f's_lshl_b32 {s(sT2)}, {s(sT)}, 7')
    if OPT['xp_same']:
        a(f's_mov_b32 {s(sT2)}, 0')
    a(f's_add_u32 {s(sT3)}, {s(sT0)}, 1')
    a(f's_lshl_b32 {s(sT3)}, {s(sT3)}, 11')
    a(f's_cmp_eq_u32 {s(sTyp)}, 0')
    a(f's_cselect_b32 {s(sT3)}, {s(sT3)}, 0')
    a(f's_add_u32 {s(sT2)}, {s(sT2)}, {s(sT3)}')
    a(f's_lshl_b32 {s(sT3)}, {s(sZ2)}, 5')
    a(f's_add_u32 {s(sT3)}, {s(sT3)}, {s(sA2)}')
    a(f's_and_b32 {s(sT0)}, {s(sTyp)}, {s(sT0)}')
    a(f's_cselect_b32 {s(sT2)}, {s(sT3)}, {s(sT2)}')
    a(f's_movk_i32 {s(sWstr)}, 6144')
    a(f's_cselect_b32 {s(sWstr)}, 7168, {s(sWstr)}')
    a('v_lshrrev_b32 v5, 1, v7')
    a('v_and_b32 v7, 1, v2')
    a('v_xor_b32 v5, v5, v7')
    a('v_and_b32 v7, 1, v1')
    a(f'v_mul_lo_u32 v6, v6, {s(sWstr)}')
    a('v_lshl_add_u32 v6, v7, 4, v6')
    a(f's_and_b32 {s(sT3)}, {s(sWave)}, 1')
    a(f's_lshl_b32 {s(sT3)}, {s(sT3)}, 4')
    a(f's_mul_i32 {s(sT3)}, {s(sT3)}, {s(sWstr)}')
    a(f's_add_u32 {s(sT2)}, {s(sT2)}, {s(sT3)}')
    for j in range(2):
        a(f'v_xor_b32 v7, {2 * j}, v5')
        a(f'v_lshl_add_u32 v7, v7, 5, v6')
        if j:
            a(f's_lshl_b32 {s(sT3)}, {s(sWstr)}, 3')
            a(f's_add_u32 {s(sT2)}, {s(sT2)}, {s(sT3)}')
            a(f's_sub_u32 {s(sT2)}, {s(sT2)}, 1024')
        a(f'v_add_u32 {v(vWV + j)}, {s(sT2)}, v7')
    a('s_branch K1_setup_w_done')
    a.label('K1_setup_z3')
    a(f's_mov_b32 {s(sWstr)}, 7168')
    a(f's_mov_b32 {s(sT0)}, 1')
    a('v_bfe_u32 v5, v1, 1, 3')
    a('v_xor_b32 v5, v5, v2')
    a(f's_and_b32 {s(sT3)}, {s(sWave)}, 1')
    a(f's_lshl_b32 {s(sT3)}, {s(sT3)}, 2')
    a(f'v_xor_b32 v5, {s(sT3)}, v5')
    a('v_and_b32 v6, 1, v1')
    a('v_mul_u32_u24 v7, 7168, v2')
    a('v_lshl_add_u32 v7, v6, 4, v7')
    a(f's_mul_i32 {s(sT3)}, {s(sW3)}, {8 * 7168}')
    a(f's_add_u32 {s(sT2)}, {s(sA2)}, {s(sT3)}')
    a(f's_sub_u32 {s(sT3)}, {s(sP1)}, 2')
    a(f's_sub_u32 {s(sT1)}, {s(sS)}, 4')
    a(f'v_mov_b32 {v(vT + 1)}, {s(sP0)}')
    a(f'v_mov_b32 {v(vT + 2)}, {s(sT3)}')
    a('v_cmp_lt_u32 vcc, 1, v5')
    a(f'v_cndmask_b32 {v(vT + 1)}, {v(vT + 1)}, {v(vT + 2)}, vcc')
    a(f'v_mov_b32 {v(vT + 2)}, {s(sT1)}')
    a('v_cmp_lt_u32 vcc, 3, v5')
    a(f'v_cndmask_b32 {v(vT + 1)}, {v(vT + 1)}, {v(vT + 2)}, vcc')
    a(f'v_add_u32 {v(vT + 1)}, {v(vT + 1)}, v5')
    a(f'v_lshl_add_u32 {v(vT + 1)}, {v(vT + 1)}, 5, v7')
    a(f'v_add_u32 {v(vT + 1)}, {s(sT2)}, {v(vT + 1)}')
    a(f'v_mov_b32 {v(vT + 2)}, 0x40000000')
    a('v_cmp_lt_u32 vcc, 4, v5')
    a(f'v_cndmask_b32 {v(vWV)}, {v(vT + 1)}, {v(vT + 2)}, vcc')
    a(f'v_add_u32 {v(vWV + 1)}, {4 * 7168 - 1024}, {v(vWV)}')
    a.label('K1_setup_w_done')
    a(f's_lshl_b32 {s(sWstep)}, {s(sWstr)}, 5')
    a('v_lshlrev_b32 v5, 3, v2')
    a('s_waitcnt lgkmcnt(0)')
    srd(a, S_X, 4, 2048 * 1024 * 2)
    srd(a, S_W, 6, 1024 * 3072 * 2)
    a(f's_cmp_eq_u32 {s(sT0)}, 1')
    a(f's_cselect_b32 {s(S_W)}, s12, {s(S_W)}')
    a(f's_cselect_b32 {s(S_W + 1)}, s13, {s(S_W + 1)}')
    a(f's_cselect_b32 {s(S_W + 2)}, {1024 * 3584 * 2}, {s(S_W + 2)}')
    a(f's_and_b32 {s(S_W + 1)}, {s(S_W + 1)}, 0xffff')
    stamp(a, 11)
    for x in k1_dma_w(0) + k1_dma_x(0) + k1_dma_x(1):
        a(x)
    srd(a, S_B1, 14, 3584 * 2)
    srd(a, S_B1Z, 14, 3584 * 2)
    a(f's_cmp_eq_u32 {s(sTyp)}, 0')
    a(f's_cselect_b32 {s(S_B1Z + 2)}, 0, {s(S_B1Z + 2)}')
    BI = 36
    a(f's_lshl_b32 {s(sT3)}, {s(sGrp)}, 1')
    a(f's_add_u32 {s(sT3)}, {s(sT3)}, {s(sZ2)}')
    a(f's_lshl_b32 {s(sT3)}, {s(sT3)}, 5')
    a(f's_add_u32 {s(sT3)}, {s(sT3)}, {s(sA2)}')
    a(f'buffer_load_dwordx2 {v(BI, 2)}, v5, {s(S_B1Z, 4)}, {s(sT3)} offen')
    a(f'buffer_load_dwordx2 {v(BI + 2, 2)}, v5, {s(S_B1Z, 4)}, {s(sT3)} offen offset:32')
    a(f's_cmp_eq_u32 {s(sGrp)}, 0')
    a(f's_cselect_b32 {s(sT3)}, {s(sP0)}, {s(sP1)}')
    a(f's_lshl_b32 {s(sT3)}, {s(sT3)}, 5')
    a(f's_add_u32 {s(sT3)}, {s(sT3)}, {s(sA2)}')
    a(f'buffer_load_dwordx2 {v(BI + 4, 2)}, v5, {s(S_B1, 4)}, {s(sT3)} offen')
    a(f'buffer_load_dwordx2 {v(BI + 6, 2)}, v5, {s(S_B1, 4)}, {s(sT3)} offen offset:32')
    a(f's_lshl_b32 {s(sT3)}, {s(sS)}, 5')
    a(f's_add_u32 {s(sT3)}, {s(sT3)}, {s(sA2)}')
    a(f'buffer_load_dwordx2 {v(BI + 8, 2)}, v5, {s(S_B1, 4)}, {s(sT3)} offen')
    srd(a, S_WS, 24, WS_SIZE)
    srd(a, S_DBG, 22, 256)
    a(f's_mov_b32 {s(sT3)}, {EP_OFF}')
    a(f'buffer_load_dword {v(vNon)}, off, {s(S_WS, 4)}, {s(sT3)} sc1')
    if OPT['probar']:
        a('s_barrier')
    for x in k1_dma_w(1) + k1_dma_w(2) + k1_dma_x(0) + k1_dma_x(1):
        a(x)
    stamp(a, 12)
    srd(a, S_G, 18, 2048)
    a(f'v_lshlrev_b32 {v(vL16)}, 4, v1')
    a(f's_lshl_b32 {s(sRole)}, {s(sI)}, 5')
    a(f's_add_u32 {s(sRole)}, {s(sRole)}, {s(sC)}')
    a(f's_lshl_b32 {s(sFW)}, {s(sRole)}, 7')
    a(f's_add_u32 {s(sFW)}, {s(sFW)}, {F_WG}')
    a(f's_lshl_b32 {s(sT2)}, {s(sRole)}, 3')
    a(f's_add_u32 {s(sT2)}, {s(sT2)}, {s(sWave)}')
    a(f's_lshr_b32 {s(s2Kq)}, {s(sC)}, 3')
    a(f's_and_b32 {s(s2Cb)}, {s(sC)}, 7')
    a(f's_lshl_b32 {s(sEoff)}, {s(sT2)}, 2')
    a(f's_add_u32 {s(sEoff)}, {s(sEoff)}, {E_OFF}')
    a(f's_lshl_b32 {s(sGoff)}, {s(sT2)}, 11')
    a(f's_lshl_b32 {s(sH)}, {s(sT)}, 1')
    a(f's_add_u32 {s(sH)}, {s(sH)}, {s(sGrp)}')
    a(f's_mov_b32 {s(sL2E)}, {LOG2E}')
    a(f's_mov_b32 {s(sC60)}, 0x42700000')
    a(f's_mov_b32 {s(sEps)}, 0x358637bd')
    a(f's_lshl_b32 {s(sA2)}, {s(sI)}, 2')
    a(f's_add_u32 {s(sA2)}, {s(sA2)}, {s(sW3)}')
    a(f's_mul_i32 {s(sA2)}, {s(sA2)}, {4 * 144}')
    a(f's_mul_i32 {s(sT2)}, {s(sT)}, 7')
    a(f's_add_u32 {s(sA2)}, {s(sA2)}, {s(sT2)}')
    a(f's_add_u32 {s(sA2)}, {s(sA2)}, 32')
    a(f's_lshl_b32 {s(sA2)}, {s(sA2)}, 10')
    a(f'v_bfe_u32 {v(vT + 3)}, v1, 2, 2')
    a(f'v_and_b32 {v(vT + 4)}, 3, v1')
    a(f'v_lshl_add_u32 v5, v2, 3, {v(vT + 3)}')
    a(f'v_lshrrev_b32 v6, 1, {v(vT + 3)}')
    a('v_and_b32 v7, 1, v2')
    a('v_lshl_or_b32 v6, v7, 1, v6')
    a(f's_lshl_b32 {s(sT2)}, {s(sGrp)}, 1')
    for q in range(2):
        a(f's_add_u32 {s(sT3)}, {s(sT2)}, {q}')
        a(f'v_xor_b32 {v(vT)}, {s(sT3)}, v6')
        a(f'v_lshlrev_b32 {v(vT)}, 5, {v(vT)}')
        a(f'v_lshl_add_u32 {v(vT)}, v5, 7, {v(vT)}')
        a(f'v_lshl_add_u32 {v(vWZ12 + q)}, {v(vT + 4)}, 3, {v(vT)}')
    a(f'v_lshl_or_b32 v6, v7, 2, {v(vT + 3)}')
    for q in range(3):
        if q < 2:
            a(f's_add_u32 {s(sT3)}, {s(sT2)}, {q}')
        else:
            a(f's_mov_b32 {s(sT3)}, 4')
        a(f'v_xor_b32 {v(vT)}, {s(sT3)}, v6')
        a(f'v_lshlrev_b32 {v(vT)}, 5, {v(vT)}')
        a(f'v_lshl_add_u32 {v(vT)}, v5, 8, {v(vT)}')
        a(f'v_lshl_add_u32 {v(vT)}, {v(vT + 4)}, 3, {v(vT)}')
        a(f'v_add_u32 {v(vWZ3 + q)}, 8192, {v(vT)}')
    a('v_and_b32 v5, 15, v1')
    a('v_bfe_u32 v6, v1, 1, 3')
    a('v_xor_b32 v6, v6, v2')
    a(f's_lshl_b32 {s(sT3)}, {s(sW3)}, 13')
    a(f's_add_u32 {s(sT3)}, {s(sT3)}, 65536')
    a('v_lshlrev_b32 v5, 7, v5')
    a('v_lshl_add_u32 v5, v6, 4, v5')
    a(f'v_add_u32 {v(vXA0c)}, {s(sT3)}, v5')
    a(f'v_xor_b32 {v(vXA1c)}, 64, {v(vXA0c)}')
    a(f'v_mov_b32 {v(vXA0)}, {v(vXA0c)}')
    a(f'v_mov_b32 {v(vXA1)}, {v(vXA1c)}')
    a(f's_mov_b32 {s(sXR)}, 0')
    a('s_and_b32 s9, s9, 0xffff')
    pf_setup(a)
    a('v_and_b32 v5, 1, v1')
    a('v_lshlrev_b32 v5, 4, v5')
    a('v_lshl_add_u32 v5, v2, 11, v5')
    a(f's_lshl_b32 {s(sT3)}, {s(sWave)}, 13')
    a(f's_lshl_b32 {s(sT0)}, {s(s2Cb)}, 8')
    a(f's_add_u32 {s(sT3)}, {s(sT3)}, {s(sT0)}')
    a(f's_and_b32 {s(sT0)}, {s(sWave)}, 1')
    a(f's_lshl_b32 {s(sT0)}, {s(sT0)}, 2')
    a(f'v_xor_b32 v7, {s(sT0)}, v6')
    a('v_lshl_add_u32 v7, v7, 5, v5')
    a(f'v_add_u32 {v(vBV)}, {s(sT3)}, v7')
    a(f's_lshl_b32 {s(sM2)}, {s(sWave)}, 10')
    for n in range(2):
        for r in range(0, 16, 2):
            a(f'v_pk_mov_b32 {v(acc(n, 0) + r, 2)}, 0, 0')
    stamp(a, 1)
    a('s_waitcnt vmcnt(8)')
    for n in range(2, 7):
        b = BI + (n - 2) * 2
        r0 = acc(n, 0)
        a(f'v_lshlrev_b32 {v(r0)}, 16, {v(b)}')
        a(f'v_and_b32 {v(r0 + 1)}, 0xffff0000, {v(b)}')
        a(f'v_lshlrev_b32 {v(r0 + 2)}, 16, {v(b + 1)}')
        a(f'v_and_b32 {v(r0 + 3)}, 0xffff0000, {v(b + 1)}')
        for m in range(1, 4):
            for h in (0, 2):
                a(f'v_pk_mov_b32 {v(acc(n, m) + h, 2)}, {v(r0 + h, 2)}, {v(r0 + h, 2)} op_sel:[0,1]')
    a(f's_lshl_b32 {s(sT2)}, s2, 3')
    a(f's_add_u32 {s(sT2)}, {s(sT2)}, {s(sWave)}')
    a(f's_cmp_lg_u32 {s(sT2)}, 7')
    a('s_cbranch_scc1 K1_nopub')
    a(f'v_add_u32 {v(vNon)}, 1, {v(vNon)}')
    a(f'v_or_b32 {v(vNon)}, 0x80000000, {v(vNon)}')
    a(f's_mov_b32 {s(sT3)}, {EP_OFF}')
    a(f'buffer_store_dword {v(vNon)}, off, {s(S_DBG, 4)}, 0 sc1')
    a(f'buffer_store_dword {v(vNon)}, off, {s(S_WS, 4)}, {s(sT3)} sc1')
    a('s_waitcnt vmcnt(0)')
    a.label('K1_nopub')
    srd(a, S2_B, 16, 3584 * 1024 * 2)
    a(f's_mul_i32 {s(s2Boff)}, {s(s2Kq)}, {28 * 65536}')
    a(f's_mul_i32 {s(s2Ba)}, {s(s2Kq)}, {8 * 65536}')
    a(f's_lshl_b32 {s(sT2)}, {s(sTyp)}, 1')
    a(f's_add_u32 {s(sT2)}, {s(sT2)}, {s(sGrp)}')
    a(f's_cmp_eq_u32 {s(sT2)}, 1')
    a('s_cbranch_scc1 K1_v01')
    a(f's_cmp_eq_u32 {s(sT2)}, 2')
    a('s_cbranch_scc1 K1_v10')
    a(f's_cmp_eq_u32 {s(sT2)}, 3')
    a('s_cbranch_scc1 K1_v11')
    for typ in range(2):
        for grp in range(2):
            L = f'K1_v{typ}{grp}'
            a.label(L)
            if OPT['yprio'] and grp == 1:
                a('s_setprio 1')
            stamp(a, 2)
            a('s_barrier')
            stamp(a, 3)
            for x in k1_reads(grp, 0, 0, 0):
                a(x)
            a(f's_mov_b32 {s(sCnt)}, 1')
            a('s_waitcnt vmcnt(6) lgkmcnt(0)')
            a('s_barrier')
            stamp(a, 4)
            k1_substep(a, grp, typ, 0, dma=False, vm=8,
                       extra=group_dma(k1_dma_w(3) + k1_dma_x(0) + k1_dma_w(0) + k1_dma_x(1)))
            for b in range(1, 4):
                k1_substep(a, grp, typ, b, vm=8)
            a.label(L + '_loop')
            if OPT['stamp']:
                a('s_memtime s[26:27]')
                a(f's_add_u32 m0, {s(sCnt)}, 20')
                a('s_waitcnt lgkmcnt(0)')
                a(f'v_writelane_b32 v{vSt}, s26, m0')
            pf = OPT['b2pf']
            for b in range(4):
                k1_substep(a, grp, typ, b, extra=b2_touch() if pf else None, vm=8)
            a(f's_add_u32 {s(sCnt)}, {s(sCnt)}, 1')
            a(f's_cmp_lt_u32 {s(sCnt)}, 7')
            a(f's_cbranch_scc1 {L}_loop')
            stamp(a, 5)
            nl = [[f'buffer_load_dword {v(vNon)}, off, {s(S_DBG, 4)}, 0 sc1']]
            gl = [[f'buffer_load_dwordx4 {v(vE, 4)}, {v(vL16)}, {s(S_X, 4)}, {s(sGoff)} offen'],
                  [f'buffer_load_dwordx4 {v(vE + 4, 4)}, {v(vL16)}, {s(S_X, 4)}, {s(sGoff)} offen offset:1024'],
                  [f'buffer_load_dwordx4 {v(vE + 8, 4)}, {v(vL16)}, {s(S_G, 4)}, 0 offen'],
                  [f'buffer_load_dwordx4 {v(vE + 12, 4)}, {v(vL16)}, {s(S_G, 4)}, 0 offen offset:1024']]
            if OPT['fwarm']:
                fw = [f's_lshl_b32 {s(sT2)}, {s(sRole)}, 3',
                      f's_add_u32 {s(sT2)}, {s(sT2)}, {s(sWave)}',
                      f's_lshl_b32 {s(sT2)}, {s(sT2)}, 7',
                      f's_add_u32 {s(sT2)}, {s(sT2)}, {F_X}',
                      f's_lshl_b32 {s(sT3)}, {s(sT)}, 7',
                      f's_add_u32 {s(sT3)}, {s(sT3)}, {F_KV}',
                      f'v_mov_b32 v6, {s(sT3)}',
                      f'v_writelane_b32 v6, {s(sT2)}, 0',
                      f'v_writelane_b32 v6, {s(sFW)}, 1',
                      f'v_writelane_b32 v6, {s(sEoff)}, 2',
                      f'buffer_load_dword v3, v6, {s(S_WS, 4)}, 0 offen sc1']
                nl = nl + [fw]
            k1_substep(a, grp, typ, 0, dma=False, vm=9 + (1 if OPT['fwarm'] else 0), extra=gl + nl)
            k1_substep(a, grp, typ, 1, dma=False, vm=0)
            k1_substep(a, grp, typ, 2, dma=False, vm=63, fill=gate_code())
            bd = []
            for j in range(14):
                bd += k2_dma_b(j)
            un = group_dma(bd)
            if OPT['lateb']:
                LATE[:] = un[4:]
                un = un[:4]
            else:
                un = [un[2 * q] + un[2 * q + 1] for q in range(7)]
            k1_substep(a, grp, typ, 3, dma=False, reads=False, last=True, extra=un)
            stamp(a, 6)
            if OPT['eprio']:
                a(f's_setprio {OPT["eprio"]}')
            if typ == 0:
                k1_epilogue_A(a, grp, L)
            else:
                k1_epilogue_B(a, grp, L)
            late(a, 99)
            a('s_branch P2_start')
    a.label('P2_start')
    if OPT['eprio']:
        a('s_setprio 0')
    stamp(a, 9)
    get_nonce(a, 'P2n')
    a(f's_and_b32 {s(sT0)}, {s(sRole)}, 0xf8')
    a(f's_lshl_b32 {s(sT0)}, {s(sT0)}, 7')
    a(f's_add_u32 {s(sT0)}, {s(sT0)}, {F_WG}')
    a('v_and_b32 v5, 3, v1')
    a('v_lshlrev_b32 v5, 8, v5')
    a(f'v_add_u32 {v(vF3)}, {s(sT0)}, v5')
    a(f'v_add_u32 {v(vFa)}, 128, {v(vF3)}')
    a(f'v_add_u32 {v(vOFa)}, 4, {v(vFa)}')
    a(f's_lshl_b32 {s(sT0)}, {s(sI)}, 12')
    a(f's_add_u32 {s(sT0)}, {s(sT0)}, {F_WG}')
    a('v_lshlrev_b32 v5, 7, v1')
    a(f'v_add_u32 v6, {s(sT0)}, v5')
    a('v_cmp_gt_u32 vcc, 32, v1')
    a(f'v_cndmask_b32 {v(vOFa)}, {v(vOFa)}, v6, vcc')
    a(f's_lshl_b32 {s(sT2)}, {s(sI)}, 4')
    a(f's_lshl_b32 {s(sT3)}, {s(sWave)}, 1')
    a(f's_add_u32 {s(sT2)}, {s(sT2)}, {s(sT3)}')
    a(f's_and_b32 {s(sT3)}, {s(s2Kq)}, 1')
    a(f's_add_u32 {s(sT3)}, {s(sT2)}, {s(sT3)}')
    a(f's_mul_i32 {s(sT0)}, {s(sT3)}, {144 * 1024}')
    a(f'v_add_u32 {v(k2AV)}, {s(sT0)}, {v(vL16)}')
    a(f's_xor_b32 {s(sT1)}, {s(sT3)}, 1')
    a(f's_mul_i32 {s(sT0)}, {s(sT1)}, {144 * 1024}')
    a(f'v_add_u32 {v(k2AV + 1)}, {s(sT0)}, {v(vL16)}')
    a('v_and_b32 v5, 15, v1')
    a('v_lshlrev_b32 v5, 2, v5')
    for m, sr in ((0, sT3), (1, sT1)):
        a(f's_lshl_b32 {s(sT0)}, {s(sr)}, 6')
        a(f's_add_u32 {s(sT0)}, {s(sT0)}, {E_OFF}')
        a(f'v_add_u32 {v(k2E + m)}, {s(sT0)}, v5')
    a(f's_lshl_b32 {s(sEoff)}, {s(sT3)}, 4')
    a(f's_mul_i32 {s(s2Aoff)}, {s(s2Kq)}, {28 * 1024}')
    a(f's_add_u32 {s(s2Aoff)}, {s(s2Aoff)}, {32 * 1024}')
    a(f's_lshl_b32 {s(s2Aa)}, {s(s2Kq)}, 13')
    a(f's_lshl_b32 {s(sT0)}, {s(sT)}, 7')
    a(f's_add_u32 {s(sT0)}, {s(sT0)}, {F_KV}')
    a(f'v_add_u32 {v(vKa)}, {s(sT0)}, v5')
    def noncrit(tag):
        a(f'v_bfe_u32 v3, v1, 2, 2')
        a(f'v_lshl_add_u32 v5, v2, 2, v3')
        a('v_and_b32 v6, 7, v5')
        a(f's_lshr_b32 {s(sT2)}, {s(s2Kq)}, 1')
        a(f's_lshl_b32 {s(sT2)}, {s(sT2)}, 2')
        a(f'v_xor_b32 v6, {s(sT2)}, v6')
        a('v_lshlrev_b32 v5, 8, v5')
        a('v_and_b32 v3, 3, v1')
        a('v_lshl_add_u32 v5, v3, 3, v5')
        for n in range(8):
            a(f'v_xor_b32 v7, {n}, v6')
            a(f'v_lshl_add_u32 {v(k2RA + n)}, v7, 5, v5')
            a(f'v_add_u32 {v(k2RA + 8 + n)}, 65536, {v(k2RA + n)}')
            a(f'v_add_u32 {v(k2RA + 16 + n)}, 131072, {v(k2RA + n)}')
        srd(a, S2_OUT, 20, 2048 * 1024 * 2)
        srd(a, S2_WO, 8, 1024 * 2048)
        srd(a, S2_KV, 24, WS_SIZE)
        a(f's_cmp_ge_u32 {s(sWave)}, 6')
        a(f's_cselect_b32 {s(S2_KV + 2)}, 0, {s(S2_KV + 2)}')
        a(f's_mul_i32 {s(sKVo)}, {s(sT)}, {2 * 49152}')
        a(f's_add_u32 {s(sKVo)}, {s(sKVo)}, {KVP_OFF}')
        a(f's_lshl_b32 {s(sT3)}, {s(sWave)}, 11')
        a(f's_add_u32 {s(sKVo)}, {s(sKVo)}, {s(sT3)}')
        a(f's_cmp_ge_u32 {s(sWave)}, 3')
        a(f's_cselect_b32 {s(sT3)}, {49152 - 6144}, 0')
        a(f's_add_u32 {s(sKVo)}, {s(sKVo)}, {s(sT3)}')
        a(f's_cmp_eq_u32 {s(sTyp)}, 0')
        a('s_cbranch_scc1 P2_noq' + tag)
        for n in range(2):
            for m in range(4):
                phi4(a, acc(n, m), CH + (m & 1) * 4)
        for m in range(4):
            for n in range(2):
                cvt4(a, PQ + m * 4 + 2 * n, acc(n, m))
        a.label('P2_noq' + tag)


    a(f's_cmp_eq_u32 {s(sGrp)}, 1')
    a('s_cbranch_scc1 P2_g1skip')
    noncrit('a')
    a.label('P2_g1skip')
    a('s_waitcnt vmcnt(0)')
    a('s_barrier')
    stamp(a, 10)
    a(f's_cmp_lg_u32 {s(sWave)}, 3')
    a('s_cbranch_scc1 P2_noflag')
    a(f'buffer_store_dword {v(vNon)}, off, {s(S_WS, 4)}, {s(sFW)} sc1')
    a(f's_cmp_eq_u32 {s(sTyp)}, 0')
    a('s_cbranch_scc1 P2_c1')
    a('v_cmp_gt_u32 vcc, 32, v1')
    a(f'v_cndmask_b32 {v(vFa)}, {v(vKa)}, {v(vFa)}, vcc')
    a.label('P2_c1')
    a(f'v_mov_b32 {v(vFv)}, 0')
    flag_check(a, 'P2c1', vFv, vFa, sleep=0)
    a.label('P2_noflag')
    a(f's_cmp_eq_u32 {s(sGrp)}, 0')
    a('s_cbranch_scc1 P2_g0skip')
    if OPT['g1mid']:
        noncrit('b')
    a.label('P2_g0skip')
    a('s_barrier')
    stamp(a, 13)
    vmc, vmb, vm7 = VM(), VM(), VM()

    def emit(lst, tag, only=None):
        for x in lst:
            a(x)
            if x.startswith('buffer_'):
                if only is None:
                    for t in (vmc, vmb, vm7):
                        t.issue(tag)
                else:
                    only.issue(tag)
    for j in range(3):
        emit(k2_load_a(j), f'A{j}')
    if not OPT['g1mid']:
        a(f's_cmp_eq_u32 {s(sGrp)}, 0')
        a('s_cbranch_scc1 P2_g0skip2')
        noncrit('b')
        a.label('P2_g0skip2')
    for x in k2_reads(0, 0):
        a(x)

    def bblock(j):
        L = f'P2b{j}'
        if j in (0, 2, 4, 6, 8):
            c = j // 2
            a(f's_cmp_eq_u32 {s(sTyp)}, 0')
            a(f's_cbranch_scc1 {L}')
            if c > 0:
                a(f's_waitcnt vmcnt({vmb.count(f"C{c - 1}")})')
                for q in range(4):
                    if c == 1:
                        a(f'v_pk_add_f32 {v(SUM + q * 2, 2)}, {v(CH + q * 2, 2)}, {v(CH + 8 + q * 2, 2)}')
                    else:
                        a(f'v_pk_add_f32 {v(SUM + q * 2, 2)}, {v(SUM + q * 2, 2)}, {v(CH + q * 2, 2)}')
                        a(f'v_pk_add_f32 {v(SUM + q * 2, 2)}, {v(SUM + q * 2, 2)}, {v(CH + 8 + q * 2, 2)}')
            if c < 4:
                for i in range(2):
                    a(f's_add_u32 {s(sT2)}, {s(sKVo)}, {(2 * c + i) * 6144}')
                    emit([f'buffer_load_dwordx4 {v(CH + (i * 2 + hh) * 4, 4)}, {v(vL16)}, {s(S2_KV, 4)}, {s(sT2)} offen offset:{hh * 1024} sc1'
                          for hh in range(2)], f'C{c}', vmb)
            else:
                for q in range(4):
                    a(f'v_cvt_pk_bf16_f32 {v(CH + q)}, {v(SUM + 2 * q)}, {v(SUM + 2 * q + 1)}')
                a(f's_lshl_b32 {s(sT3)}, {s(sWave)}, 10')
                a(f's_add_u32 {s(sT3)}, {s(sT3)}, {KFL}')
                a(f'v_add_u32 {v(k2T)}, {s(sT3)}, {v(vL16)}')
                a(f'ds_write_b128 {v(k2T)}, {v(CH, 4)}')
            a.label(L)
        if j == 12:
            a(f's_cmp_eq_u32 {s(sTyp)}, 0')
            a(f's_cbranch_scc1 {L}')
            a(f's_mul_i32 {s(sT3)}, {s(sGrp)}, 3072')
            a(f's_add_u32 {s(sT3)}, {s(sT3)}, {KFL}')
            a(f'v_add_u32 {v(k2T)}, {s(sT3)}, {v(vL16)}')
            for f in range(3):
                a(f'ds_read_b128 {v(KF + f * 4, 4)}, {v(k2T)} offset:{f * 1024}')
            a(f's_mul_i32 {s(sKVo)}, {s(sT)}, 7')
            a(f's_add_u32 {s(sKVo)}, {s(sKVo)}, 32')
            a(f's_sub_u32 {s(sKVo)}, {s(sH)}, {s(sKVo)}')
            a(f's_lshl_b32 {s(sKVo)}, {s(sKVo)}, 10')
            a(f's_add_u32 {s(sKVo)}, {s(sKVo)}, {s(sA2)}')
            a.label(L)
        if j in (13, 14, 15, 16):
            m = j - 13
            a(f's_cmp_eq_u32 {s(sTyp)}, 0')
            a(f's_cbranch_scc1 {L}')
            for b in (2, 0, 1):
                a(f'v_mfma_f32_16x16x32_bf16 {v(NUM + b * 4, 4)}, {v(KF + b * 4, 4)}, {v(PQ + m * 4, 4)}, 0')
            dn = NUM + 8
            a(f'v_add_f32 {v(dn)}, {s(sEps)}, {v(dn)}')
            a(f'v_rcp_f32 {v(dn)}, {v(dn)}')
            for b in range(2):
                r = NUM + b * 4
                for h in (0, 2):
                    a(f'v_pk_mul_f32 {v(r + h, 2)}, {v(r + h, 2)}, {v(dn, 2)} op_sel_hi:[1,0]')
                cvt4(a, OOUT + 2 * b, r)
            emit([f'buffer_store_dwordx4 {v(OOUT, 4)}, {v(vL16)}, {s(S_WS, 4)}, {s(sKVo)} offen{OPT["nta"]}'], 'O', vmb)
            a(f's_add_u32 {s(sKVo)}, {s(sKVo)}, {144 * 1024}')
            a.label(L)
        if j == 18:
            a(f's_lshl_b32 {s(sT0)}, {s(sWave)}, 1')
            a(f's_or_b32 {s(sT0)}, {s(sT0)}, {s(sTyp)}')
            a(f's_cmp_eq_u32 {s(sT0)}, 13')
            a(f's_cbranch_scc0 {L}')
            a(f'buffer_store_dword {v(vNon)}, off, {s(S_WS, 4)}, {s(sFW)} offset:4 sc1')
            a.label(L)

    CHK = {8: (11, vF3, 'c2'), 21: (23, vOFa, 'c3')}
    SF = OPT['sendfirst']
    for j in range(33 if SF else 36):
        cur, nxt = j & 1, (j + 1) & 1
        kind, idx = ORDER[j]
        if j == 0:
            a(f's_waitcnt vmcnt({vmc.count("A0")}) lgkmcnt(0)')
            stamp(a, 14)
        bblock(j)
        if j in CHK:
            a(f's_cmp_lg_u32 {s(sWave)}, 7')
            a(f's_cbranch_scc1 P2_nl{j}')
            emit([f'buffer_load_dword {v(vOF)}, {v(CHK[j][1])}, {s(S_WS, 4)}, 0 offen sc1'], CHK[j][2], vm7)
            a.label(f'P2_nl{j}')
        if j == 24:
            emit([f'buffer_load_dword {v(k2E + m)}, {v(k2E + m)}, {s(S_WS, 4)}, 0 offen sc1' for m in range(2)], 'E')
        if j == 28:
            a(f's_waitcnt vmcnt({vmc.count("E")})')
            for m in range(2):
                a(f'v_rcp_f32 {v(k2E + m)}, {v(k2E + m)}')
            for q in range(2):
                for h in range(4):
                    a(f'v_mul_f32 {v(k2ACC + q * 4 + h)}, {v(k2E + (q & 1))}, {v(k2ACC + q * 4 + h)}')
        A0 = k2A + (j % NA) * 8
        if kind == 'b' and idx % 14 in (2, 11):
            a(f's_bitcmp0_b32 {s(s2Kq)}, 0')
            a(f's_cbranch_scc0 K2_sp1_{j}')
            a(f'v_swap_b32 {v(A0 + 2)}, {v(A0 + 4)}')
            a(f'v_swap_b32 {v(A0 + 3)}, {v(A0 + 5)}')
            a(f's_branch K2_spd_{j}')
            a.label(f'K2_sp1_{j}')
            a(f'v_swap_b32 {v(A0)}, {v(A0 + 6)}')
            a(f'v_swap_b32 {v(A0 + 1)}, {v(A0 + 7)}')
            a.label(f'K2_spd_{j}')
            a('s_nop 1')
        units = []
        for ja in ([j + 3] if not (SF and j >= 30) else {30: [33, 34], 31: [35], 32: []}[j]):
            if ja < 36:
                units += [(u, f'A{ja}') for u in group_dma(k2_load_a(ja))]
        if j == 6:
            units += [(k2_dma_b(18), 'B18')]
        jb = j + 14 if j < 4 else j + 13
        if j not in (4, 5) and jb < 36:
            units += [(k2_dma_b(jb), f'B{jb}')]
        rd = k2_reads(nxt, (j + 1) % RING) if j < 35 else []
        if SF and j == 32:
            rd = []
            for q, st in enumerate((33, 34)):
                for n in range(4):
                    rd += k2_read1(k2BF + 32 + (q * 4 + n) * 4, st % RING, 4 + n)
        k = ui = 0
        for n in range(8):
            for m in ((0, 1) if (n % 2 == 0 or not OPT['snake'] or j == 28) else (1, 0)):
                d = v(k2acc(n, m), 4)
                if j == 28 and k + 2 < 16:
                    for h in range(4):
                        a(f'v_mul_f32 {v(k2ACC + (k + 2) * 4 + h)}, {v(k2E + (k & 1))}, {v(k2ACC + (k + 2) * 4 + h)}')
                a(f'v_mfma_f32_16x16x32_bf16 {d}, {v(k2BF + cur * 32 + n * 4, 4)}, {v(A0 + m * 4, 4)}, {d if j else "0"}')
                for _ in range(OPT['p2rd']):
                    if rd:
                        a(rd.pop(0))
                if k in OPT['p2pos'] and ui < len(units):
                    emit(units[ui][0], units[ui][1])
                    ui += 1
                k += 1
        assert ui == len(units)
        if j == 35:
            break
        for jl, (jc, va, nm) in CHK.items():
            if j == jc:
                a(f's_cmp_lg_u32 {s(sWave)}, 7')
                a(f's_cbranch_scc1 P2_nc{j}')
                a(f's_waitcnt vmcnt({vm7.count(nm)})')
                flag_check(a, 'P2' + nm, vOF, va)
                a.label(f'P2_nc{j}')
        def need(t):
            n = t.count(f'A{j + 1}')
            if SF and j == 32:
                n = min(n, t.count('A34'))
            if j % 6 == 5:
                for jb in range(j + 2, j + 8):
                    if 14 <= jb < 36:
                        n = min(n, t.count(f'B{jb}'))
                if j == 17 and t is vmb:
                    n = min(n, t.count('O'))
            return n
        nc, nb_ = need(vmc), need(vmb)
        if nc != nb_:
            a(f's_cmp_eq_u32 {s(sTyp)}, {1 if nc < nb_ else 0}')
            a(f's_cbranch_scc1 P2_w{j}')
            a(f's_waitcnt vmcnt({min(nc, nb_)})')
            a.label(f'P2_w{j}')
        a(f's_waitcnt vmcnt({max(nc, nb_)}) lgkmcnt(0)')
        if j % 6 == 5:
            a('s_barrier')
    PK = 56 if SF else 8

    def send(t, d):
        t(f's_xor_b32 {s(sT3)}, {s(sRole)}, {d << 3}')
        t(f's_mul_i32 {s(sT3)}, {s(sT3)}, 49152')
        t(f's_add_u32 {s(sT3)}, {s(sT3)}, {s(sT2)}')
        t(f's_add_u32 {s(sT3)}, {s(sT3)}, {XCH_OFF + (d - 1) * 16384}')
        m, nb = d & 1, (d >> 1) * 4
        p = PK + (d - 1) * 8
        for n in range(4):
            cvt4(t, p + n * 2, k2acc(nb + n, m))
            if n & 1:
                q = n >> 1
                t(f'buffer_store_dwordx4 {v(p + q * 4, 4)}, {v(vL16)}, {s(S_WS, 4)}, {s(sT3)} offen offset:{q * 1024} sc1')

    def addr(a):
        a(f'v_add_f32 {v(k2E)}, 1.0, {v(k2E)}')
        a(f'v_rcp_f32 {v(k2E)}, {v(k2E)}')
        a(f's_lshl_b32 {s(sT0)}, {s(sRole)}, 3')
        a(f's_add_u32 {s(sT0)}, {s(sT0)}, {s(sWave)}')
        a(f's_lshl_b32 {s(sT0)}, {s(sT0)}, 7')
        a('v_and_b32 v5, 3, v1')
        a('v_max_u32 v5, 1, v5')
        a('v_lshlrev_b32 v5, 13, v5')
        a(f'v_xor_b32 v5, {s(sT0)}, v5')
        a(f'v_add_u32 {v(vFa)}, {F_X}, v5')
        a(f's_add_u32 {s(sT0)}, {s(sT0)}, {F_X}')
        a(f's_mul_i32 {s(sT1)}, {s(sRole)}, 49152')
        a(f's_add_u32 {s(sT1)}, {s(sT1)}, {s(sT2)}')
        a(f's_add_u32 {s(sT1)}, {s(sT1)}, {XCH_OFF}')
        a('v_and_b32 v5, 15, v1')
        a('v_and_b32 v6, 7, v1')
        a('v_lshrrev_b32 v7, 1, v2')
        a('v_xor_b32 v6, v6, v7')
        a('v_lshlrev_b32 v5, 7, v5')
        a('v_and_b32 v7, 1, v2')
        a('v_lshl_add_u32 v5, v7, 3, v5')
        a(f's_add_u32 {s(sC)}, {s(sT2)}, {KFL}')
        a(f'v_add_u32 v5, {s(sC)}, v5')
        for n in range(4):
            a(f'v_xor_b32 v7, {2 * n}, v6')
            a(f'v_lshl_add_u32 {v(k2RA + n)}, v7, 4, v5')
        a('v_lshrrev_b32 v6, 3, v1')
        a('v_and_b32 v7, 7, v1')
        a(f'v_xor_b32 {v(k2T)}, v6, v7')
        a(f'v_lshlrev_b32 {v(k2T)}, 4, {v(k2T)}')
        a(f'v_lshl_add_u32 {v(k2T)}, v6, 7, {v(k2T)}')
        a(f'v_add_u32 {v(k2T)}, {s(sC)}, {v(k2T)}')
        a('v_lshlrev_b32 v7, 4, v7')
        a('v_lshl_add_u32 v7, v6, 11, v7')
        a(f'v_mov_b32 {v(vFv)}, 0')

    a(f's_lshl_b32 {s(sT2)}, {s(sWave)}, 11')
    if SF:
        def mm(n, m, bf, st):
            d = v(k2acc(n, m), 4)
            return f'v_mfma_f32_16x16x32_bf16 {d}, {v(bf, 4)}, {v(aset(st) + m * 4, 4)}, {d}'

        def collect(fn):
            t = Asm()
            fn(t)
            return t.lines

        def run(mf, fill, per, delay=0):
            fill = list(fill)
            for k, x in enumerate(mf):
                a(x)
                if k >= delay:
                    for _ in range(per):
                        if fill:
                            a(fill.pop(0))
            for y in fill:
                a(y)
        B0, B1 = k2BF, k2BF + 32
        rd = []
        for n in range(4):
            rd += k2_read1(B0 + n * 4, 35 % RING, 4 + n)
        for n in range(4):
            rd += k2_read1(B0 + 16 + n * 4, 33 % RING, n)
        run([mm(4 + n, m, B1 + (q * 4 + n) * 4, st) for q, st in enumerate((33, 34)) for n in range(4) for m in range(2)], rd, 2)
        a(f's_waitcnt vmcnt({vmc.count("A35")}) lgkmcnt(0)')
        rd = []
        for q, st in enumerate((34, 35)):
            for n in range(4):
                rd += k2_read1(B1 + (q * 4 + n) * 4, st % RING, n)
        run([mm(4 + n, m, B0 + n * 4, 35) for n in range(4) for m in range(2)], rd, 2)

        def low(m):
            o = [mm(n, m, B0 + 16 + n * 4, 33) for n in range(4)]
            for q, st in enumerate((34, 35)):
                o += [mm(n, m, B1 + (q * 4 + n) * 4, st) for n in range(4)]
            return o
        y = low(1)
        run(y[:4], collect(lambda t: send(t, 2))[:4], 1)
        a('s_waitcnt lgkmcnt(0)')
        run(y[4:], collect(lambda t: send(t, 2))[4:] + collect(lambda t: send(t, 3)), 3)
        run(low(0), collect(lambda t: send(t, 1)) + collect(addr), 4, delay=2)
        stamp(a, 16)
    else:
        stamp(a, 16)
        for d in (1, 2, 3):
            send(a, d)
        addr(a)
    stamp(a, 17)
    a('s_waitcnt vmcnt(0)')
    a(f'buffer_store_dword {v(vNon)}, off, {s(S_WS, 4)}, {s(sT0)} sc1')
    stamp(a, 18)
    flag_check(a, 'K2x', vFv, vFa, sleep=OPT['xsleep'])
    stamp(a, 19)
    RX = 40
    for d in range(3):
        for q in range(2):
            a(f'buffer_load_dwordx4 {v(RX + d * 8 + q * 4, 4)}, {v(vL16)}, {s(S_WS, 4)}, {s(sT1)} offen offset:{q * 1024} sc1')
        if d < 2:
            a(f's_add_u32 {s(sT1)}, {s(sT1)}, 16384')
    a(f's_lshl_b32 {s(sT0)}, {s(sEoff)}, 11')
    a(f's_lshl_b32 {s(sT2)}, {s(s2Cb)}, 8')
    a(f's_add_u32 {s(sT0)}, {s(sT0)}, {s(sT2)}')
    a(f's_lshr_b32 {s(sT2)}, {s(s2Kq)}, 1')
    a(f's_lshl_b32 {s(sT2)}, {s(sT2)}, 7')
    a(f's_add_u32 {s(sT0)}, {s(sT0)}, {s(sT2)}')
    a(f's_add_u32 {s(sT2)}, {s(sT0)}, {8 * 2048}')
    UP = 64
    for d in range(3):
        a(f's_waitcnt vmcnt({4 - 2 * d})')
        for n in range(4):
            r = k2acc(n, 0)
            u = UP + (n & 1) * 4
            for h in range(2):
                src = RX + d * 8 + n * 2 + h
                a(f'v_lshlrev_b32 {v(u + 2 * h)}, 16, {v(src)}')
                a(f'v_and_b32 {v(u + 2 * h + 1)}, 0xffff0000, {v(src)}')
            for h in (0, 2):
                a(f'v_pk_add_f32 {v(r + h, 2)}, {v(r + h, 2)}, {v(u + h, 2)}')
    for n in range(4):
        r = k2acc(n, 0)
        for h in (0, 2):
            a(f'v_pk_mul_f32 {v(r + h, 2)}, {v(r + h, 2)}, {v(k2E, 2)} op_sel_hi:[1,0]')
        cvt4(a, 8 + n * 2, r)
        a(f'ds_write_b64 {v(k2RA + n)}, {v(8 + n * 2, 2)}')
    a('s_waitcnt lgkmcnt(0)')
    a(f'ds_read_b128 v[16:19], {v(k2T)}')
    a(f'ds_read_b128 v[20:23], {v(k2T)} offset:1024')
    a('s_waitcnt lgkmcnt(1)')
    a(f'buffer_store_dwordx4 v[16:19], v7, {s(S2_OUT, 4)}, {s(sT0)} offen{OPT["nto"]}')
    a('s_waitcnt lgkmcnt(0)')
    a(f'buffer_store_dwordx4 v[20:23], v7, {s(S2_OUT, 4)}, {s(sT2)} offen{OPT["nto"]}')
    if OPT['stamp']:
        a('s_waitcnt vmcnt(0)')
        stamp(a, 20)
        a(f's_lshl_b32 {s(sT0)}, s2, 3')
        a(f's_add_u32 {s(sT0)}, {s(sT0)}, {s(sWave)}')
        a(f's_lshl_b32 {s(sT0)}, {s(sT0)}, 8')
        a(f's_add_u32 {s(sT0)}, {s(sT0)}, {STAMP_OFF}')
        a('v_lshlrev_b32 v0, 2, v1')
        a(f'buffer_store_dword v{vSt}, v0, {s(S_WS, 4)}, {s(sT0)} offen')
        if OPT['dbgout']:
            a(f's_lshl_b32 {s(sT0)}, s2, 3')
            a(f's_add_u32 {s(sT0)}, {s(sT0)}, {s(sWave)}')
            a(f's_cmp_lg_u32 {s(sT0)}, {OPT["dbgout"]}')
            a('s_cbranch_scc1 K_end')
            a(f'v_readlane_b32 {s(sT1)}, v{vSt}, 32')
            for k, idx in enumerate([11, 12, 1, 3, 4, 5, 6, 7, 10, 13, 14, 16, 18, 19, 20]):
                a(f'v_readlane_b32 {s(sT2)}, v{vSt}, {32 + idx}')
                a(f's_sub_u32 {s(sT2)}, {s(sT2)}, {s(sT1)}')
                a(f'v_mov_b32 v5, {s(sT2)}')
                a(f'buffer_store_dword v5, off, {s(S_DBG, 4)}, 0 offset:{4 * (k + 1)}')
    a.label('K_end')
    a('s_endpgm')
    a.label('K_code_end')


HEADER = open('cdna_kernels/%s.s.ref' % NAME).read().split('; Override launch')[0]


def build():
    out = HEADER
    out += '; @launch grid=(256,1,1) block=(512,1,1) lds=163840\n'
    out += '.amdgcn_target "amdgcn-amd-amdhsa--gfx950"\n.text\n'
    a = Asm()
    gen(a)
    out += f'.globl {KN}\n.p2align 8\n.type {KN},@function\n'
    out += f'.set CODE_LAST, K_code_end - {KN} - 64\n'
    out += a.finalize()
    out += f'''.section .rodata,"a"
.p2align 6
.amdhsa_kernel {KN}
  .amdhsa_next_free_vgpr 256
  .amdhsa_next_free_sgpr 102
  .amdhsa_accum_offset 256
  .amdhsa_group_segment_fixed_size 0
  .amdhsa_kernarg_size 88
  .amdhsa_user_sgpr_count 2
  .amdhsa_user_sgpr_kernarg_segment_ptr 1
  .amdhsa_system_sgpr_workgroup_id_x 1
.end_amdhsa_kernel
'''
    return out


if __name__ == '__main__':
    path = sys.argv[1] if len(sys.argv) > 1 else f'cdna_kernels/{NAME}.s'
    for kv in sys.argv[2:]:
        k, val = kv.split('=', 1)
        if val in ('True', 'False'):
            val = val == 'True'
        elif val.lstrip('-').isdigit():
            val = int(val)
        elif ',' in val:
            val = tuple(int(x) for x in val.split(','))
        if k.startswith('nt'):
            val = ' ' + val.replace('_', ' ')
        OPT[k] = val
    open(path, 'w').write(build())
```

```python
import sys
from asmlib import Asm, v, s

NAME = 'gated_mix__linear_attn_block__dense_activation_mish__prompt'
KN = NAME + '_kernel'

A2_OFF = 0
E_OFF = 0x1300000
FLG_OFF = 0x1310000
F_KV = FLG_OFF
F_WG = FLG_OFF + 0x2000
F_X = 0x2500000
F_W = FLG_OFF + 0xA000
EP_OFF = FLG_OFF + 0xF000
KVP_OFF = 0x1400000
XCH_OFF = 0x1800000
STAMP_OFF = 0x3000000
WS_SIZE = 268435456
LOG2E = 0x3fb8aa3b
SPIN_MAX = 100000

OPT = dict(stamp=False, dma_every=3, b2pf=True, codepf=True, b2u=1, b2all=0, pfx=None, map8=True, fwarm=True, tlb=0, xsleep=0, sendfirst=True, snake=True, lateb=True, nta=' sc1', dbgout=0, nto=' nt', xp1='', g1mid=True, eprio=2, yprio=False, yprio2=False, nopk=False, ntw='', ntx='', ntb='', ntp='', probar=False, xp_same=False, u1=(0,0,0,1,1,2,2,2), p2pos=(3,7,10,13), xp2='', asc=' sc1', fastmish=True, p2rd=2, b0=2)

S_X, S_W, S_WS, S_DBG, S_B1, S_B1Z, S_G, S_PF = 28, 32, 36, 40, 44, 48, 52, 88
S2_B, S2_OUT, S2_AL = 44, 48, 52
sI, sT, sTyp, sWave, sW3, sGrp = 56, 57, 58, 59, 60, 61
sP0, sP1, sS, sZ2 = 62, 63, 64, 65
sWstr, sWoff, sWstep = 66, 67, 68
sXK, sXD, sXR, sCnt = 69, 70, 71, 72
sT0, sT1, sT2, sT3 = 73, 74, 75, 76
sM0W, sM0X = 77, 78
sC, sL2E = 79, 80
sH, sNon = 82, 83
sPFo = 84
sPFu, sPFu1, sPFnr = 3, 10, 11
sPF2b, sPF2nr, sPF2o = 14, 4, 5
sC60, sEps, sEoff = 85, 86, 87
sA2 = 92
s2Cb, s2Kq = 94, 95
s2Aoff, s2Boff, sGoff, sKVo, sFW = 96, 97, 98, 99, 100
sM2, sRole = 101, 93
s2Asw = 81
s2Aa, s2Ba = 18, 19
vOF = 111
vOFa = 112
vSt = 4
WF, XF = 8, 64
vXA0c, vXA1c, vXA0, vXA1 = 96, 97, 98, 99
vWZ12, vWZ3 = 100, 102
vXV, vWV = 105, 107
vPF = 109
vNon = 110
vL16 = 113
vBV = 114
vT = 116
ACC = 128
vE = 240
RING = 18
NA = 4
k2A = 8
PQ = 40
CH = 56
SUM = 72
KF, NUM, OOUT = 56, 68, 116
k2RA = 80
k2AV = 104
k2E = 106
vFa, vFv, vKa, vF3 = 120, 121, 122, 123
k2T = 124
k2ACC = 128
k2BF = 192
S2_WO = 88
S2_KV = 28


class VM:
    def __init__(self):
        self.ops = []

    def issue(self, tag):
        self.ops.append(tag)

    def count(self, tag):
        idx = max(i for i, t in enumerate(self.ops) if t == tag)
        return min(63, len(self.ops) - 1 - idx)


def stamp(a, idx):
    if not OPT['stamp']:
        return
    a('s_memtime s[26:27]')
    a('s_waitcnt lgkmcnt(0)')
    a(f'v_writelane_b32 v{vSt}, s26, {idx}')
    a('s_memrealtime s[26:27]')
    a('s_waitcnt lgkmcnt(0)')
    a(f'v_writelane_b32 v{vSt}, s26, {idx + 32}')


def srd(a, base, ptr, nbytes):
    a(f's_mov_b32 {s(base)}, {s(ptr)}')
    a(f's_and_b32 {s(base+1)}, {s(ptr+1)}, 0xffff')
    a(f's_mov_b32 {s(base+2)}, {nbytes}')
    a(f's_mov_b32 {s(base+3)}, 0x00020000')


def acc(n, m):
    return ACC + (n * 4 + m) * 4


def wf(buf, n):
    return WF + buf * 28 + n * 4


def xf(buf, m):
    return XF + buf * 16 + m * 4


def k1_reads(grp, buf, wslot, kk):
    nt = 7 if grp == 0 else 6
    xa = vXA0 if kk == 0 else vXA1
    xs = [f'ds_read_b128 {v(xf(buf, m), 4)}, {v(xa)} offset:{m * 2048}' for m in range(4)]
    ws = []
    for n in range(nt):
        if n < 4:
            addr = vWZ12 + (n & 1)
            off = wslot * 16384 + (4096 if n >= 2 else 0)
            d2 = 512
        else:
            addr = vWZ3 + (n - 4)
            off = wslot * 16384
            d2 = 1024
        ws.append(f'ds_read_b64_tr_b16 {v(wf(buf, n), 2)}, {v(addr)} offset:{off}')
        ws.append(f'ds_read_b64_tr_b16 {v(wf(buf, n) + 2, 2)}, {v(addr)} offset:{off + d2}')
    if 'w' in OPT['xp1']:
        ws = ws[:len(ws) // 2]
    if 'W' in OPT['xp1']:
        ws = ws[:2]
    if 'X' in OPT['xp1']:
        xs = xs[:1]
    return ws[:2] + xs + ws[2:]


def k1_dma_w(slot):
    out = [f's_add_u32 m0, {s(sM0W)}, {slot * 16384}']
    for j in range(2):
        out.append(f'buffer_load_dwordx4 {v(vWV + j)}, {s(S_W, 4)}, {s(sWoff)} offen offset:{j * 1024}{OPT["ntw"]} lds')
    out.append(f's_add_u32 {s(sWoff)}, {s(sWoff)}, {s(sWstep)}')
    return out


def k1_dma_x(par):
    out = []
    if par == 0:
        out.append(f's_add_u32 {s(sXK)}, {s(sXK)}, 128')
        out.append(f's_add_u32 {s(sXD)}, {s(sXD)}, 32768')
        out.append(f's_cmp_eq_u32 {s(sXD)}, 98304')
        out.append(f's_cselect_b32 {s(sXD)}, 0, {s(sXD)}')
        out.append(f's_add_u32 m0, {s(sXD)}, {s(sM0X)}')
        so = sXK
    else:
        out.append(f's_add_u32 {s(sT0)}, {s(sXK)}, 262144')
        out.append(f's_add_u32 {s(sT1)}, {s(sXD)}, {s(sM0X)}')
        out.append(f's_add_u32 m0, {s(sT1)}, 16384')
        so = sT0
    for j in range(2):
        out.append(f'buffer_load_dwordx4 {v(vXV + j)}, {s(S_X, 4)}, {s(so)} offen offset:{j * 1024}{OPT["ntx"]} lds')
    return out


def k1_adv_xread():
    return [f's_add_u32 {s(sXR)}, {s(sXR)}, 32768',
            f's_cmp_eq_u32 {s(sXR)}, 98304',
            f's_cselect_b32 {s(sXR)}, 0, {s(sXR)}',
            f'v_add_u32 {v(vXA0)}, {s(sXR)}, {v(vXA0c)}',
            f'v_add_u32 {v(vXA1)}, {s(sXR)}, {v(vXA1c)}']


def k1_mfmas(grp, typ, buf):
    nt = 7 if grp == 0 else 6
    out = []
    for n in range(nt):
        for m in (range(4) if (n % 2 == 0 or not OPT['snake']) else range(3, -1, -1)):
            d = v(acc(n, m), 4)
            W = v(wf(buf, n), 4)
            X = v(xf(buf, m), 4)
            if typ == 0 and n < 4:
                out.append(f'v_mfma_f32_16x16x32_bf16 {d}, {X}, {W}, {d}')
            else:
                out.append(f'v_mfma_f32_16x16x32_bf16 {d}, {W}, {X}, {d}')
    return out


def group_dma(lst):
    units = []
    cur = []
    for x in lst:
        cur.append(x)
        if x.startswith('buffer_'):
            units.append(cur)
            cur = []
    if cur:
        units[-1] = units[-1] + cur
    return units


_tn = [0]


def b2_touch():
    _tn[0] += 1
    L = f'PFs{_tn[0]}'
    return [[f's_sub_u32 {s(sPFu1)}, {s(sPFu1)}, 1',
             f's_cbranch_scc0 {L}',
             f'buffer_load_dword v3, {v(vPF)}, {s(S_PF, 4)}, {s(sPFo)} offen{OPT["ntp"]}',
             f's_mov_b32 {s(sPFu1)}, {s(sPFu)}',
             f's_add_u32 {s(sPFo)}, {s(sPFo)}, 8192',
             f's_mov_b32 {s(sPFu)}, 1000',
             f'{L}:']]


def pf_setup(a):
    srd(a, S_PF, 16, 3584 * 2048)
    a(f's_mov_b32 {s(sT0)}, {896 * 128}')
    a(f'v_mul_lo_u32 {v(vPF)}, v1, {s(sT0)}')
    a(f's_lshl_b32 {s(sT2)}, {s(sWave)}, 8')
    a(f's_add_u32 {s(sT2)}, {s(sT2)}, s2')
    a(f's_lshl_b32 {s(sPFo)}, {s(sT2)}, 7')
    a(f's_lshr_b32 {s(sT0)}, s2, 3')
    a(f's_mul_i32 {s(sT0)}, {s(sT0)}, 5')
    a(f's_mul_i32 {s(sT1)}, {s(sWave)}, 9')
    a(f's_add_u32 {s(sT0)}, {s(sT0)}, {s(sT1)}')
    a(f's_and_b32 {s(sT1)}, s2, 7')
    a(f's_mul_i32 {s(sT1)}, {s(sT1)}, 3')
    a(f's_add_u32 {s(sT0)}, {s(sT0)}, {s(sT1)}')
    a(f's_mul_i32 {s(sT1)}, {s(sT0)}, 2979')
    a(f's_lshr_b32 {s(sT1)}, {s(sT1)}, 16')
    a(f's_mul_i32 {s(sT1)}, {s(sT1)}, 22')
    a(f's_sub_u32 {s(sPFnr)}, {s(sT0)}, {s(sT1)}')
    a(f's_cmp_lt_u32 {s(sT2)}, 896')
    a(f's_cselect_b32 {s(sPFu1)}, {s(sPFnr)}, 1000')
    a(f's_cmp_lg_u32 {s(sWave)}, 4')
    a('s_cbranch_scc1 PF_done')
    srd(a, S_PF, 8, 1024 * 2048)
    a(f's_mov_b32 {s(sPFu1)}, {s(sPFnr)}')
    a(f's_mov_b32 {s(sPFo)}, 0')
    a('v_mul_u32_u24 v5, 5, v1')
    a('v_add_u32 v5, s2, v5')
    a('v_and_b32 v5, 255, v5')
    a('v_lshl_add_u32 v5, v1, 8, v5')
    a(f'v_lshlrev_b32 {v(vPF)}, 7, v5')
    a.label('PF_done')
    a(f's_mov_b32 {s(sPFu)}, 1000')
    if OPT['tlb']:
        G = OPT['tlb']
        a(f's_sub_u32 {s(sT0)}, {s(sWave)}, 5')
        a(f's_cmp_gt_u32 {s(sT0)}, 1')
        a('s_cbranch_scc1 PF_notlb')
        srd(a, S_PF, 24, 0x2540000)
        a(f's_cmp_eq_u32 {s(sT0)}, 1')
        a(f's_cselect_b32 {s(S_PF)}, s20, {s(S_PF)}')
        a(f's_cselect_b32 {s(S_PF + 1)}, s21, {s(S_PF + 1)}')
        a(f's_cselect_b32 {s(S_PF + 2)}, {2048 * 2048}, {s(S_PF + 2)}')
        a(f's_and_b32 {s(S_PF + 1)}, {s(S_PF + 1)}, 0xffff')
        a(f's_lshr_b32 {s(sT0)}, s2, 3')
        a(f's_mul_i32 {s(sPFo)}, {s(sT0)}, {G}')
        a(f's_mov_b32 {s(sT1)}, {32 * G}')
        a(f'v_mul_lo_u32 {v(vPF)}, v1, {s(sT1)}')
        a(f's_mov_b32 {s(sPFu1)}, {s(sPFnr)}')
        a.label('PF_notlb')
    if OPT['pfx']:
        lo, span = OPT['pfx']
        a(f'v_lshlrev_b32 {v(vPF)}, 7, v1')
        srd(a, S_PF, 16, 3584 * 2048)
        a(f's_lshr_b32 {s(sT0)}, s2, 3')
        a(f's_mul_i32 {s(sT1)}, {s(sT0)}, 7')
        a(f's_mul_i32 {s(sT2)}, {s(s2Kq)}, 224')
        a(f's_add_u32 {s(sT1)}, {s(sT1)}, {s(sT2)}')
        a(f's_add_u32 {s(sT1)}, {s(sT1)}, {s(sWave)}')
        a(f's_lshl_b32 {s(sPFo)}, {s(sT1)}, 13')
        a(f's_mul_i32 {s(sT1)}, {s(sWave)}, 3')
        a(f's_add_u32 {s(sT1)}, {s(sT1)}, {s(sT0)}')
        a(f's_and_b32 {s(sT1)}, {s(sT1)}, {span - 1}')
        a(f's_add_u32 {s(sPFu1)}, {s(sT1)}, {lo}')
        a(f's_cmp_lg_u32 {s(sWave)}, 7')
        a('s_cbranch_scc1 PF_done2')
        srd(a, S_PF, 8, 1024 * 2048)
        a(f's_lshl_b32 {s(sT1)}, {s(sT0)}, 1')
        a(f's_lshl_b32 {s(sT2)}, {s(s2Kq)}, 6')
        a(f's_add_u32 {s(sT1)}, {s(sT1)}, {s(sT2)}')
        a(f's_lshl_b32 {s(sPFo)}, {s(sT1)}, 13')
        a(f's_lshr_b32 {s(sPFu1)}, {s(sPFu1)}, 1')
        a(f's_mov_b32 {s(sPFu)}, 3')
        a.label('PF_done2')
    if OPT['b2all']:
        a(f's_mov_b32 {s(sPFu1)}, {OPT["b2all"]}')


def k1_substep(a, grp, typ, b, dma=True, reads=True, last=False, extra=None, fill=None, vm=None):
    cur, nxt = b & 1, (b + 1) & 1
    mf = k1_mfmas(grp, typ, cur)
    pre = []
    rd = []
    if reads:
        if b & 1:
            pre += k1_adv_xread()
        rd = k1_reads(grp, nxt, (b + 1) % 4, (b + 1) & 1)
    units = []
    if dma:
        units = group_dma(k1_dma_w(b) + k1_dma_x(0 if (b & 1) else 1))
        if 'D' in OPT['xp1']:
            units = [[y for y in u if not y.startswith('buffer')] for u in units]
    if extra:
        units = units + extra
    fill = list(fill or [])
    for x in pre:
        a(x)
    ri = ui = 0
    ev = OPT['dma_every']
    ph = 0 if grp == 0 else 1
    for k, mm in enumerate(mf):
        a(mm)
        if ri < len(rd):
            a(rd[ri])
            ri += 1
        if ui < len(units) and k % ev == ph:
            for x in units[ui]:
                a(x)
            ui += 1
        for _ in range(2):
            if fill:
                a(fill.pop(0))
    assert ri == len(rd) and ui == len(units), (ri, ui, len(units))
    for x in fill:
        a(x)
    if last:
        return
    a(f's_waitcnt vmcnt({vm}) lgkmcnt(0)')
    a('s_barrier')


def mish4(a, r, t):
    T, N2, W = t, t + 4, t + 8
    late(a)
    if OPT['fastmish'] and OPT['nopk']:
        for i in range(4):
            a(f'v_mul_f32 {v(T + i)}, {s(sL2E)}, {v(r + i)}')
        for i in range(4):
            a(f'v_exp_f32 {v(T + i)}, {v(T + i)}')
        for i in range(4):
            a(f'v_fma_f32 {v(N2 + i)}, {v(T + i)}, -0.5, -1.0')
        for i in range(4):
            a(f'v_fma_f32 {v(N2 + i)}, {v(T + i)}, {v(N2 + i)}, -1.0')
        for i in range(4):
            a(f'v_rcp_f32 {v(N2 + i)}, {v(N2 + i)}')
        for i in range(4):
            a(f'v_fmac_f32 {v(r + i)}, {v(r + i)}, {v(N2 + i)}')
        return
    if OPT['fastmish']:
        for h in (0, 2):
            a(f'v_pk_mul_f32 {v(T + h, 2)}, {v(r + h, 2)}, {s(sL2E, 2)} op_sel_hi:[1,0]')
        for i in range(4):
            a(f'v_exp_f32 {v(T + i)}, {v(T + i)}')
        for h in (0, 2):
            a(f'v_pk_fma_f32 {v(N2 + h, 2)}, {v(T + h, 2)}, -0.5, -1.0 op_sel_hi:[1,0,0]')
        for h in (0, 2):
            a(f'v_pk_fma_f32 {v(N2 + h, 2)}, {v(T + h, 2)}, {v(N2 + h, 2)}, -1.0 op_sel_hi:[1,1,0]')
        for i in range(4):
            a(f'v_rcp_f32 {v(N2 + i)}, {v(N2 + i)}')
        for h in (0, 2):
            a(f'v_pk_fma_f32 {v(r + h, 2)}, {v(r + h, 2)}, {v(N2 + h, 2)}, {v(r + h, 2)}')
        return
    for h in (0, 2):
        a(f'v_pk_mul_f32 {v(T + h, 2)}, {v(r + h, 2)}, {s(sL2E, 2)} op_sel_hi:[1,0]')
    for i in range(4):
        a(f'v_min_f32 {v(T + i)}, {s(sC60)}, {v(T + i)}')
    for i in range(4):
        a(f'v_exp_f32 {v(T + i)}, {v(T + i)}')
    for h in (0, 2):
        a(f'v_pk_add_f32 {v(N2 + h, 2)}, {v(T + h, 2)}, 2.0 op_sel_hi:[1,0]')
    for h in (0, 2):
        a(f'v_pk_mul_f32 {v(W + h, 2)}, {v(T + h, 2)}, {v(N2 + h, 2)}')
    for h in (0, 2):
        a(f'v_pk_fma_f32 {v(N2 + h, 2)}, {v(T + h, 2)}, {v(N2 + h, 2)}, 2.0 op_sel_hi:[1,1,0]')
    for i in range(4):
        a(f'v_rcp_f32 {v(N2 + i)}, {v(N2 + i)}')
    for h in (0, 2):
        a(f'v_pk_mul_f32 {v(W + h, 2)}, {v(W + h, 2)}, {v(N2 + h, 2)}')
    for h in (0, 2):
        a(f'v_pk_mul_f32 {v(r + h, 2)}, {v(r + h, 2)}, {v(W + h, 2)}')


LATE = []


def late(a, n=1):
    for _ in range(n):
        if LATE:
            for y in LATE.pop(0):
                a(y)


def phi4(a, r, t):
    late(a)
    if OPT['nopk']:
        for i in range(4):
            a(f'v_mul_f32 {v(t + i)}, {s(sL2E)}, {v(r + i)}')
        for i in range(4):
            a(f'v_min_f32 {v(t + i)}, 0, {v(t + i)}')
        for i in range(4):
            a(f'v_exp_f32 {v(t + i)}, {v(t + i)}')
        for i in range(4):
            a(f'v_max_f32 {v(r + i)}, 0, {v(r + i)}')
        for i in range(4):
            a(f'v_add_f32 {v(r + i)}, {s(sEps)}, {v(r + i)}')
        for i in range(4):
            a(f'v_add_f32 {v(r + i)}, {v(r + i)}, {v(t + i)}')
        return
    for h in (0, 2):
        a(f'v_pk_mul_f32 {v(t + h, 2)}, {v(r + h, 2)}, {s(sL2E, 2)} op_sel_hi:[1,0]')
    for i in range(4):
        a(f'v_min_f32 {v(t + i)}, 0, {v(t + i)}')
    for i in range(4):
        a(f'v_exp_f32 {v(t + i)}, {v(t + i)}')
    for i in range(4):
        a(f'v_max_f32 {v(r + i)}, 0, {v(r + i)}')
    for h in (0, 2):
        a(f'v_pk_add_f32 {v(r + h, 2)}, {v(r + h, 2)}, {v(t + h, 2)}')
    for i in range(4):
        a(f'v_add_f32 {v(r + i)}, {s(sEps)}, {v(r + i)}')


def cvt4(a, o, r):
    a(f'v_cvt_pk_bf16_f32 {v(o)}, {v(r)}, {v(r + 1)}')
    a(f'v_cvt_pk_bf16_f32 {v(o + 1)}, {v(r + 2)}, {v(r + 3)}')


def k1_store_pair(a, n0, s_tau, plus, outregs, hook=None):
    a(f's_add_u32 {s(sT2)}, {s(s_tau)}, {plus}')
    a(f's_lshr_b32 {s(sT2)}, {s(sT2)}, 1')
    a(f's_lshl_b32 {s(sT2)}, {s(sT2)}, 10')
    a(f's_add_u32 {s(sT2)}, {s(sT2)}, {s(sA2)}')
    for m in range(4):
        o = outregs + (m & 1) * 4
        mish4(a, acc(n0, m), vE)
        mish4(a, acc(n0 + 1, m), vT)
        cvt4(a, o, acc(n0, m))
        cvt4(a, o + 2, acc(n0 + 1, m))
        a(f'buffer_store_dwordx4 {v(o, 4)}, {v(vL16)}, {s(S_WS, 4)}, {s(sT2)} offen{OPT["nta"]}')
        if m < 3:
            a(f's_add_u32 {s(sT2)}, {s(sT2)}, {144 * 1024}')
        if hook and m == 1:
            hook()
    return 4


def k1_store_single(a, n0, outregs):
    a(f's_lshr_b32 {s(sT2)}, {s(sS)}, 1')
    a(f's_lshl_b32 {s(sT2)}, {s(sT2)}, 10')
    a(f's_add_u32 {s(sT2)}, {s(sT2)}, {s(sA2)}')
    a(f's_and_b32 {s(sT3)}, {s(sS)}, 1')
    a(f's_mul_i32 {s(sT3)}, {s(sT3)}, {144 * 1024}')
    a(f's_add_u32 {s(sT2)}, {s(sT2)}, {s(sT3)}')
    for mp in range(2):
        o = outregs + mp * 4
        mish4(a, acc(n0, 2 * mp), vE)
        mish4(a, acc(n0, 2 * mp + 1), vT)
        cvt4(a, o, acc(n0, 2 * mp))
        cvt4(a, o + 2, acc(n0, 2 * mp + 1))
        a(f'buffer_store_dwordx4 {v(o, 4)}, {v(vL16)}, {s(S_WS, 4)}, {s(sT2)} offen{OPT["nta"]}')
        if mp == 0:
            a(f's_add_u32 {s(sT2)}, {s(sT2)}, {2 * 144 * 1024}')
    return 2


def get_nonce(a, L):
    a(f's_mov_b32 {s(sC)}, 0')
    a.label(f'{L}_nchk')
    a(f'v_readfirstlane_b32 {s(sNon)}, {v(vNon)}')
    a(f's_cmp_lg_u32 {s(sNon)}, 0')
    a(f's_cbranch_scc1 {L}_nok')
    a('s_sleep 8')
    a(f'buffer_load_dword {v(vNon)}, off, {s(S_DBG, 4)}, 0 sc1')
    a(f's_add_u32 {s(sC)}, {s(sC)}, 1')
    a('s_waitcnt vmcnt(0)')
    a(f's_cmp_lt_u32 {s(sC)}, {SPIN_MAX}')
    a(f's_cbranch_scc1 {L}_nchk')
    a.label(f'{L}_nok')


def poll_line(a, L, soff, nlanes, vtmp, sleep=4):
    a(f'v_and_b32 {v(vtmp + 1)}, {nlanes - 1}, v1')
    a(f'v_lshlrev_b32 {v(vtmp + 1)}, 2, {v(vtmp + 1)}')
    a(f's_mov_b32 {s(sC)}, 0')
    a.label(f'{L}_poll')
    a(f'buffer_load_dword {v(vtmp)}, {v(vtmp + 1)}, {s(S_WS, 4)}, {s(soff)} offen sc1')
    a(f's_add_u32 {s(sC)}, {s(sC)}, 1')
    a('s_waitcnt vmcnt(0)')
    a(f'v_cmp_ne_u32 vcc, {s(sNon)}, {v(vtmp)}')
    a('s_nop 4')
    a(f's_cbranch_vccz {L}_polled')
    a(f's_sleep {sleep}')
    a(f's_cmp_lt_u32 {s(sC)}, {SPIN_MAX}')
    a(f's_cbranch_scc1 {L}_poll')
    a.label(f'{L}_polled')


KVL = 114688
KFL = 147456


def k1_epilogue_A(a, grp, L):
    PK, VV, ONES, KV = 8, 24, 40, 44
    a('s_nop 7')
    for n in range(2):
        for m in range(4):
            phi4(a, acc(n, m), vE + (m & 1) * 4)
    for i in range(4):
        a(f'v_mov_b32 {v(ONES + i)}, 0x3f803f80')
    for src, dst in ((2, VV), (0, PK)):
        for n in range(2):
            for c in range(2):
                d = dst + (n * 2 + c) * 4
                for hh in range(2):
                    cvt4(a, d + 2 * hh, acc(src + n, 2 * c + hh))
    for c in range(2):
        for b in range(3):
            for aa in range(2):
                d = v(KV + (b * 2 + aa) * 4, 4)
                B = v(VV + (b * 2 + c) * 4, 4) if b < 2 else v(ONES, 4)
                a(f'v_mfma_f32_16x16x32_bf16 {d}, {v(PK + (aa * 2 + c) * 4, 4)}, {B}, {d if c else "0"}')
    a(f's_mul_i32 {s(sT0)}, {s(sWave)}, 6144')
    a(f's_add_u32 {s(sT0)}, {s(sT0)}, {KVL}')
    a(f'v_add_u32 {v(vT)}, {s(sT0)}, {v(vL16)}')
    for q in range(6):
        a(f'ds_write_b128 {v(vT)}, {v(KV + q * 4, 4)} offset:{q * 1024}')
    a('s_waitcnt lgkmcnt(0)')
    a('s_barrier')
    stamp(a, 7)
    a(f's_cmp_lg_u32 {s(sW3)}, 0')
    a(f's_cbranch_scc1 {L}_nosum')
    bases = (68, 8, 128)
    for w in range(3):
        for q in range(6):
            a(f'ds_read_b128 {v(bases[w] + q * 4, 4)}, {v(vT)} offset:{(w + 1) * 6144 + q * 1024}')
    a(f's_lshl_b32 {s(sT0)}, {s(sH)}, 3')
    a(f's_add_u32 {s(sT0)}, {s(sT0)}, {s(sI)}')
    a(f's_mul_i32 {s(sT1)}, {s(sT0)}, 6144')
    a(f's_add_u32 {s(sT1)}, {s(sT1)}, {KVP_OFF}')
    a(f's_add_u32 {s(sT3)}, {s(sT1)}, 4096')
    for w in range(3):
        a(f's_waitcnt lgkmcnt({12 - 6 * w})')
        for q in range(12):
            a(f'v_pk_add_f32 {v(KV + q * 2, 2)}, {v(KV + q * 2, 2)}, {v(bases[w] + q * 2, 2)}')
    for q in range(6):
        so, off = (sT1, q * 1024) if q < 4 else (sT3, (q - 4) * 1024)
        a(f'buffer_store_dwordx4 {v(KV + q * 4, 4)}, {v(vL16)}, {s(S_WS, 4)}, {s(so)} offen offset:{off} sc1')
    a(f's_lshl_b32 {s(sT0)}, {s(sT)}, 7')
    a(f's_lshl_b32 {s(sT1)}, {s(sI)}, 2')
    a(f's_add_u32 {s(sT0)}, {s(sT0)}, {s(sT1)}')
    a(f's_add_u32 {s(sT0)}, {s(sT0)}, {F_KV + grp * 32}')
    a('s_waitcnt vmcnt(0)')
    get_nonce(a, L + 'a')
    a(f'buffer_store_dword {v(vNon)}, off, {s(S_WS, 4)}, {s(sT0)} sc1')
    stamp(a, 8)
    a.label(f'{L}_nosum')
    if grp == 0:
        k1_store_pair(a, 4, sP0, 0, 72)
        k1_store_single(a, 6, 72)
    else:
        k1_store_pair(a, 4, sP1, 0, 72)


def k1_epilogue_B(a, grp, L):
    OUT = 72
    a('s_nop 7')
    k1_store_pair(a, 2, sZ2, 2 * grp, OUT)
    if grp == 0:
        k1_store_pair(a, 4, sP0, 0, OUT)
        k1_store_single(a, 6, OUT)
    else:
        k1_store_pair(a, 4, sP1, 0, OUT)
    stamp(a, 7)


def gate_code():
    GX, GW = vE, vE + 8
    o = ['v_mov_b32 v5, 0']
    for i in range(8):
        o.append(f'v_dot2_f32_bf16 v5, {v(GX + i)}, {v(GW + i)}, v5')
    o.append('s_nop 2')
    for sh in (1, 2, 4, 8):
        o.append(f'v_add_f32_dpp v5, v5, v5 row_shr:{sh} row_mask:0xf bank_mask:0xf bound_ctrl:0')
    o.append('v_add_f32_dpp v5, v5, v5 row_bcast:15 row_mask:0xa bank_mask:0xf')
    o.append('v_add_f32_dpp v5, v5, v5 row_bcast:31 row_mask:0xc bank_mask:0xf')
    o.append('v_mov_b32 v6, 0x42200000')
    o.append('v_med3_f32 v5, v5, -v6, v6')
    o.append(f'v_mul_f32 v5, {s(sL2E)}, v5')
    o.append('v_exp_f32 v5, v5')
    o.append(f'v_readlane_b32 {s(sT3)}, v5, 63')
    o.append(f'v_mov_b32 v5, {s(sT3)}')
    o.append(f'buffer_store_dword v5, off, {s(S_WS, 4)}, {s(sEoff)} sc1')
    return o


def k2acc(n, m):
    return k2ACC + (n * 2 + m) * 4


def k2_reads(buf, slot):
    out = []
    for n in range(8):
        addr = k2RA + (slot // 8) * 8 + n
        off = (slot % 8) * 8192
        d = k2BF + buf * 32 + n * 4
        out.append(f'ds_read_b64_tr_b16 {v(d, 2)}, {v(addr)} offset:{off}')
        out.append(f'ds_read_b64_tr_b16 {v(d + 2, 2)}, {v(addr)} offset:{off + 4096}')
    return out


def k2_read1(dst, slot, n):
    addr = k2RA + (slot // 8) * 8 + n
    off = (slot % 8) * 8192
    return [f'ds_read_b64_tr_b16 {v(dst, 2)}, {v(addr)} offset:{off}',
            f'ds_read_b64_tr_b16 {v(dst + 2, 2)}, {v(addr)} offset:{off + 4096}']


def p2_order():
    o = []
    for lst in ((4, 5, 8, 9), (3, 6, 7, 10), (0, 1, 12, 13), (2, 11)):
        for u in range(2):
            o += [('b', 14 * u + g) for g in lst]
    o += [('a', h) for h in range(8)]
    return o


ORDER = p2_order()


def k2_dma_b(j):
    kind, idx = ORDER[j]
    slot = j % RING
    out = [f's_add_u32 m0, {s(sM2)}, {slot * 8192}']
    base, srdn = (s2Boff, S2_B) if kind == 'b' else (s2Ba, S2_WO)
    out.append(f's_add_u32 {s(sT0)}, {s(base)}, {idx * 65536}')
    out.append(f'buffer_load_dwordx4 {v(vBV)}, {s(srdn, 4)}, {s(sT0)} offen{OPT["ntb"]} lds')
    return out


def aset(j):
    if OPT['sendfirst'] and j >= 34:
        return 40 + (j - 34) * 8
    return k2A + (j % NA) * 8


def k2_load_a(j):
    kind, idx = ORDER[j]
    base = s2Aoff if kind == 'b' else s2Aa
    out = [f's_add_u32 {s(sT1)}, {s(base)}, {idx * 1024}']
    for m in range(2):
        out.append(f'buffer_load_dwordx4 {v(aset(j) + m * 4, 4)}, {v(k2AV + m)}, {s(S_WS, 4)}, {s(sT1)} offen sc1')
    return out


def flag_check(a, L, vval, vaddr, sleep=4):
    a(f's_mov_b32 {s(sC)}, 0')
    a.label(f'{L}_c')
    a(f'v_cmp_ne_u32 vcc, {s(sNon)}, {v(vval)}')
    a('s_nop 4')
    a(f's_cbranch_vccz {L}_ok')
    if sleep:
        a(f's_sleep {sleep}')
    a(f'buffer_load_dword {v(vval)}, {v(vaddr)}, {s(S_WS, 4)}, 0 offen sc1')
    a(f's_add_u32 {s(sC)}, {s(sC)}, 1')
    a('s_waitcnt vmcnt(0)')
    a(f's_cmp_lt_u32 {s(sC)}, {SPIN_MAX}')
    a(f's_cbranch_scc1 {L}_c')
    a.label(f'{L}_ok')


def gen(a):
    a.label(KN)
    a('s_cmp_ge_u32 s2, 256')
    a('s_cbranch_scc1 K_end')
    a('s_load_dwordx16 s[4:19], s[0:1], 0')
    a('s_load_dwordx4 s[20:23], s[0:1], 64')
    a('s_load_dwordx2 s[24:25], s[0:1], 80')
    if OPT['codepf']:
        a('s_getpc_b64 s[26:27]')
        a('s_lshr_b32 s3, s2, 3')
        a('s_and_b32 s3, s3, 1')
        a('s_lshl_b32 s3, s3, 16')
        a('v_lshlrev_b32 v5, 7, v0')
        a('v_add_u32 v5, s3, v5')
        a('v_min_u32 v5, CODE_LAST, v5')
        a('global_load_dword v3, v5, s[26:27]')
    stamp(a, 0)
    a('v_and_b32 v1, 63, v0')
    a('v_lshrrev_b32 v2, 6, v0')
    a(f'v_readfirstlane_b32 {s(sWave)}, v2')
    a(f's_and_b32 {s(sT0)}, s2, 7')
    a(f's_lshr_b32 {s(sT1)}, s2, 3')
    if OPT['map8']:
        a(f's_and_b32 {s(sI)}, {s(sT1)}, 7')
        a(f's_lshl_b32 {s(sC)}, {s(sT0)}, 2')
        a(f's_lshr_b32 {s(sT2)}, {s(sT1)}, 3')
        a(f's_add_u32 {s(sC)}, {s(sC)}, {s(sT2)}')
    else:
        a(f's_and_b32 {s(sI)}, {s(sT0)}, 1')
        a(f's_lshl_b32 {s(sI)}, {s(sI)}, 2')
        a(f's_and_b32 {s(sT2)}, {s(sT1)}, 3')
        a(f's_add_u32 {s(sI)}, {s(sI)}, {s(sT2)}')
        a(f's_lshr_b32 {s(sC)}, {s(sT0)}, 1')
        a(f's_lshl_b32 {s(sC)}, {s(sC)}, 3')
        a(f's_lshr_b32 {s(sT2)}, {s(sT1)}, 2')
        a(f's_add_u32 {s(sC)}, {s(sC)}, {s(sT2)}')
    a(f's_lshr_b32 {s(sT)}, {s(sC)}, 1')
    a(f's_and_b32 {s(sTyp)}, {s(sC)}, 1')
    a(f's_and_b32 {s(sW3)}, {s(sWave)}, 3')
    a(f's_lshr_b32 {s(sGrp)}, {s(sWave)}, 2')
    a(f's_cmp_eq_u32 {s(sTyp)}, 0')
    a(f's_mov_b32 {s(sT2)}, 0x286085C6')
    a(f's_cselect_b32 {s(sT2)}, 0x09CA0420, {s(sT2)}')
    a(f's_and_b32 {s(sT3)}, {s(sT)}, 1')
    a(f's_lshl_b32 {s(sT3)}, {s(sT3)}, 4')
    a(f's_lshr_b32 {s(sT2)}, {s(sT2)}, {s(sT3)}')
    a(f's_and_b32 {s(sP0)}, {s(sT2)}, 15')
    a(f's_bfe_u32 {s(sP1)}, {s(sT2)}, 0x40004')
    a(f's_bfe_u32 {s(sS)}, {s(sT2)}, 0x40008')
    a(f's_bfe_u32 {s(sZ2)}, {s(sT2)}, 0x4000c')
    a('v_lshrrev_b32 v2, 4, v1')
    a('v_lshrrev_b32 v6, 3, v1')
    a('v_and_b32 v7, 7, v1')
    a(f's_lshl_b32 {s(sT2)}, {s(sWave)}, 15')
    for j in range(2):
        a(f'v_xor_b32 v5, {4 * j}, v2')
        a('v_xor_b32 v5, v5, v7')
        a('v_lshlrev_b32 v5, 4, v5')
        a('v_lshl_add_u32 v5, v6, 11, v5')
        a(f's_add_u32 {s(sT3)}, {s(sT2)}, {j * (8 * 2048 - 1024)}')
        a(f'v_add_u32 {v(vXV + j)}, {s(sT3)}, v5')
    a(f's_lshl_b32 {s(sM0W)}, {s(sWave)}, 11')
    a(f's_add_u32 {s(sM0X)}, {s(sM0W)}, 65536')
    a(f's_lshl_b32 {s(sXK)}, {s(sI)}, 19')
    if OPT['xp_same']:
        a(f's_mov_b32 {s(sXK)}, 0')
    a(f's_sub_u32 {s(sXK)}, {s(sXK)}, 128')
    a(f's_mov_b32 {s(sXD)}, 65536')
    a(f's_mov_b32 {s(sWoff)}, 0')
    a(f's_mul_i32 {s(sA2)}, {s(sT)}, 448')
    if OPT['xp_same']:
        a(f's_and_b32 {s(sA2)}, {s(sT)}, 1')
        a(f's_mul_i32 {s(sA2)}, {s(sA2)}, 448')
    a(f's_cmp_ge_u32 {s(sWave)}, 4')
    a('s_cbranch_scc1 K1_setup_z3')
    a(f's_lshr_b32 {s(sT0)}, {s(sWave)}, 1')
    a(f's_lshl_b32 {s(sT2)}, {s(sT)}, 7')
    if OPT['xp_same']:
        a(f's_mov_b32 {s(sT2)}, 0')
    a(f's_add_u32 {s(sT3)}, {s(sT0)}, 1')
    a(f's_lshl_b32 {s(sT3)}, {s(sT3)}, 11')
    a(f's_cmp_eq_u32 {s(sTyp)}, 0')
    a(f's_cselect_b32 {s(sT3)}, {s(sT3)}, 0')
    a(f's_add_u32 {s(sT2)}, {s(sT2)}, {s(sT3)}')
    a(f's_lshl_b32 {s(sT3)}, {s(sZ2)}, 5')
    a(f's_add_u32 {s(sT3)}, {s(sT3)}, {s(sA2)}')
    a(f's_and_b32 {s(sT0)}, {s(sTyp)}, {s(sT0)}')
    a(f's_cselect_b32 {s(sT2)}, {s(sT3)}, {s(sT2)}')
    a(f's_movk_i32 {s(sWstr)}, 6144')
    a(f's_cselect_b32 {s(sWstr)}, 7168, {s(sWstr)}')
    a('v_lshrrev_b32 v5, 1, v7')
    a('v_and_b32 v7, 1, v2')
    a('v_xor_b32 v5, v5, v7')
    a('v_and_b32 v7, 1, v1')
    a(f'v_mul_lo_u32 v6, v6, {s(sWstr)}')
    a('v_lshl_add_u32 v6, v7, 4, v6')
    a(f's_and_b32 {s(sT3)}, {s(sWave)}, 1')
    a(f's_lshl_b32 {s(sT3)}, {s(sT3)}, 4')
    a(f's_mul_i32 {s(sT3)}, {s(sT3)}, {s(sWstr)}')
    a(f's_add_u32 {s(sT2)}, {s(sT2)}, {s(sT3)}')
    for j in range(2):
        a(f'v_xor_b32 v7, {2 * j}, v5')
        a(f'v_lshl_add_u32 v7, v7, 5, v6')
        if j:
            a(f's_lshl_b32 {s(sT3)}, {s(sWstr)}, 3')
            a(f's_add_u32 {s(sT2)}, {s(sT2)}, {s(sT3)}')
            a(f's_sub_u32 {s(sT2)}, {s(sT2)}, 1024')
        a(f'v_add_u32 {v(vWV + j)}, {s(sT2)}, v7')
    a('s_branch K1_setup_w_done')
    a.label('K1_setup_z3')
    a(f's_mov_b32 {s(sWstr)}, 7168')
    a(f's_mov_b32 {s(sT0)}, 1')
    a('v_bfe_u32 v5, v1, 1, 3')
    a('v_xor_b32 v5, v5, v2')
    a(f's_and_b32 {s(sT3)}, {s(sWave)}, 1')
    a(f's_lshl_b32 {s(sT3)}, {s(sT3)}, 2')
    a(f'v_xor_b32 v5, {s(sT3)}, v5')
    a('v_and_b32 v6, 1, v1')
    a('v_mul_u32_u24 v7, 7168, v2')
    a('v_lshl_add_u32 v7, v6, 4, v7')
    a(f's_mul_i32 {s(sT3)}, {s(sW3)}, {8 * 7168}')
    a(f's_add_u32 {s(sT2)}, {s(sA2)}, {s(sT3)}')
    a(f's_sub_u32 {s(sT3)}, {s(sP1)}, 2')
    a(f's_sub_u32 {s(sT1)}, {s(sS)}, 4')
    a(f'v_mov_b32 {v(vT + 1)}, {s(sP0)}')
    a(f'v_mov_b32 {v(vT + 2)}, {s(sT3)}')
    a('v_cmp_lt_u32 vcc, 1, v5')
    a(f'v_cndmask_b32 {v(vT + 1)}, {v(vT + 1)}, {v(vT + 2)}, vcc')
    a(f'v_mov_b32 {v(vT + 2)}, {s(sT1)}')
    a('v_cmp_lt_u32 vcc, 3, v5')
    a(f'v_cndmask_b32 {v(vT + 1)}, {v(vT + 1)}, {v(vT + 2)}, vcc')
    a(f'v_add_u32 {v(vT + 1)}, {v(vT + 1)}, v5')
    a(f'v_lshl_add_u32 {v(vT + 1)}, {v(vT + 1)}, 5, v7')
    a(f'v_add_u32 {v(vT + 1)}, {s(sT2)}, {v(vT + 1)}')
    a(f'v_mov_b32 {v(vT + 2)}, 0x40000000')
    a('v_cmp_lt_u32 vcc, 4, v5')
    a(f'v_cndmask_b32 {v(vWV)}, {v(vT + 1)}, {v(vT + 2)}, vcc')
    a(f'v_add_u32 {v(vWV + 1)}, {4 * 7168 - 1024}, {v(vWV)}')
    a.label('K1_setup_w_done')
    a(f's_lshl_b32 {s(sWstep)}, {s(sWstr)}, 5')
    a('v_lshlrev_b32 v5, 3, v2')
    a('s_waitcnt lgkmcnt(0)')
    srd(a, S_X, 4, 2048 * 1024 * 2)
    srd(a, S_W, 6, 1024 * 3072 * 2)
    a(f's_cmp_eq_u32 {s(sT0)}, 1')
    a(f's_cselect_b32 {s(S_W)}, s12, {s(S_W)}')
    a(f's_cselect_b32 {s(S_W + 1)}, s13, {s(S_W + 1)}')
    a(f's_cselect_b32 {s(S_W + 2)}, {1024 * 3584 * 2}, {s(S_W + 2)}')
    a(f's_and_b32 {s(S_W + 1)}, {s(S_W + 1)}, 0xffff')
    stamp(a, 11)
    for x in k1_dma_w(0) + k1_dma_x(0) + k1_dma_x(1):
        a(x)
    srd(a, S_B1, 14, 3584 * 2)
    srd(a, S_B1Z, 14, 3584 * 2)
    a(f's_cmp_eq_u32 {s(sTyp)}, 0')
    a(f's_cselect_b32 {s(S_B1Z + 2)}, 0, {s(S_B1Z + 2)}')
    BI = 36
    a(f's_lshl_b32 {s(sT3)}, {s(sGrp)}, 1')
    a(f's_add_u32 {s(sT3)}, {s(sT3)}, {s(sZ2)}')
    a(f's_lshl_b32 {s(sT3)}, {s(sT3)}, 5')
    a(f's_add_u32 {s(sT3)}, {s(sT3)}, {s(sA2)}')
    a(f'buffer_load_dwordx2 {v(BI, 2)}, v5, {s(S_B1Z, 4)}, {s(sT3)} offen')
    a(f'buffer_load_dwordx2 {v(BI + 2, 2)}, v5, {s(S_B1Z, 4)}, {s(sT3)} offen offset:32')
    a(f's_cmp_eq_u32 {s(sGrp)}, 0')
    a(f's_cselect_b32 {s(sT3)}, {s(sP0)}, {s(sP1)}')
    a(f's_lshl_b32 {s(sT3)}, {s(sT3)}, 5')
    a(f's_add_u32 {s(sT3)}, {s(sT3)}, {s(sA2)}')
    a(f'buffer_load_dwordx2 {v(BI + 4, 2)}, v5, {s(S_B1, 4)}, {s(sT3)} offen')
    a(f'buffer_load_dwordx2 {v(BI + 6, 2)}, v5, {s(S_B1, 4)}, {s(sT3)} offen offset:32')
    a(f's_lshl_b32 {s(sT3)}, {s(sS)}, 5')
    a(f's_add_u32 {s(sT3)}, {s(sT3)}, {s(sA2)}')
    a(f'buffer_load_dwordx2 {v(BI + 8, 2)}, v5, {s(S_B1, 4)}, {s(sT3)} offen')
    srd(a, S_WS, 24, WS_SIZE)
    srd(a, S_DBG, 22, 256)
    a(f's_mov_b32 {s(sT3)}, {EP_OFF}')
    a(f'buffer_load_dword {v(vNon)}, off, {s(S_WS, 4)}, {s(sT3)} sc1')
    if OPT['probar']:
        a('s_barrier')
    for x in k1_dma_w(1) + k1_dma_w(2) + k1_dma_x(0) + k1_dma_x(1):
        a(x)
    stamp(a, 12)
    srd(a, S_G, 18, 2048)
    a(f'v_lshlrev_b32 {v(vL16)}, 4, v1')
    a(f's_lshl_b32 {s(sRole)}, {s(sI)}, 5')
    a(f's_add_u32 {s(sRole)}, {s(sRole)}, {s(sC)}')
    a(f's_lshl_b32 {s(sFW)}, {s(sRole)}, 7')
    a(f's_add_u32 {s(sFW)}, {s(sFW)}, {F_WG}')
    a(f's_lshl_b32 {s(sT2)}, {s(sRole)}, 3')
    a(f's_add_u32 {s(sT2)}, {s(sT2)}, {s(sWave)}')
    if OPT['map8']:
        a(f's_bfe_u32 {s(s2Kq)}, s2, 0x20001')
        a(f's_bfe_u32 {s(s2Cb)}, s2, 0x10007')
        a(f's_lshl_b32 {s(s2Cb)}, {s(s2Cb)}, 1')
        a(f's_bfe_u32 {s(sT0)}, s2, 0x10005')
        a(f's_or_b32 {s(s2Cb)}, {s(s2Cb)}, {s(sT0)}')
        a(f's_lshl_b32 {s(s2Cb)}, {s(s2Cb)}, 1')
        a(f's_bfe_u32 {s(sT0)}, s2, 0x10006')
        a(f's_or_b32 {s(s2Cb)}, {s(s2Cb)}, {s(sT0)}')
        a(f's_and_b32 {s(sRole)}, s2, 1')
        a(f's_lshl_b32 {s(sRole)}, {s(sRole)}, 2')
        a(f's_bfe_u32 {s(sT0)}, s2, 0x20003')
        a(f's_or_b32 {s(sRole)}, {s(sRole)}, {s(sT0)}')
        a(f's_lshl_b32 {s(sRole)}, {s(sRole)}, 2')
        a(f's_or_b32 {s(sRole)}, {s(sRole)}, {s(s2Kq)}')
        a(f's_lshl_b32 {s(sRole)}, {s(sRole)}, 3')
        a(f's_or_b32 {s(sRole)}, {s(sRole)}, {s(s2Cb)}')
    else:
        a(f's_lshr_b32 {s(s2Kq)}, {s(sC)}, 3')
        a(f's_and_b32 {s(s2Cb)}, {s(sC)}, 7')
    a(f's_lshl_b32 {s(sEoff)}, {s(sT2)}, 2')
    a(f's_add_u32 {s(sEoff)}, {s(sEoff)}, {E_OFF}')
    a(f's_lshl_b32 {s(sGoff)}, {s(sT2)}, 11')
    a(f's_lshl_b32 {s(sH)}, {s(sT)}, 1')
    a(f's_add_u32 {s(sH)}, {s(sH)}, {s(sGrp)}')
    a(f's_mov_b32 {s(sL2E)}, {LOG2E}')
    a(f's_mov_b32 {s(sC60)}, 0x42700000')
    a(f's_mov_b32 {s(sEps)}, 0x358637bd')
    a(f's_lshl_b32 {s(sA2)}, {s(sI)}, 2')
    a(f's_add_u32 {s(sA2)}, {s(sA2)}, {s(sW3)}')
    a(f's_mul_i32 {s(sA2)}, {s(sA2)}, {4 * 144}')
    a(f's_mul_i32 {s(sT2)}, {s(sT)}, 7')
    a(f's_add_u32 {s(sA2)}, {s(sA2)}, {s(sT2)}')
    a(f's_add_u32 {s(sA2)}, {s(sA2)}, 32')
    a(f's_lshl_b32 {s(sA2)}, {s(sA2)}, 10')
    a(f'v_bfe_u32 {v(vT + 3)}, v1, 2, 2')
    a(f'v_and_b32 {v(vT + 4)}, 3, v1')
    a(f'v_lshl_add_u32 v5, v2, 3, {v(vT + 3)}')
    a(f'v_lshrrev_b32 v6, 1, {v(vT + 3)}')
    a('v_and_b32 v7, 1, v2')
    a('v_lshl_or_b32 v6, v7, 1, v6')
    a(f's_lshl_b32 {s(sT2)}, {s(sGrp)}, 1')
    for q in range(2):
        a(f's_add_u32 {s(sT3)}, {s(sT2)}, {q}')
        a(f'v_xor_b32 {v(vT)}, {s(sT3)}, v6')
        a(f'v_lshlrev_b32 {v(vT)}, 5, {v(vT)}')
        a(f'v_lshl_add_u32 {v(vT)}, v5, 7, {v(vT)}')
        a(f'v_lshl_add_u32 {v(vWZ12 + q)}, {v(vT + 4)}, 3, {v(vT)}')
    a(f'v_lshl_or_b32 v6, v7, 2, {v(vT + 3)}')
    for q in range(3):
        if q < 2:
            a(f's_add_u32 {s(sT3)}, {s(sT2)}, {q}')
        else:
            a(f's_mov_b32 {s(sT3)}, 4')
        a(f'v_xor_b32 {v(vT)}, {s(sT3)}, v6')
        a(f'v_lshlrev_b32 {v(vT)}, 5, {v(vT)}')
        a(f'v_lshl_add_u32 {v(vT)}, v5, 8, {v(vT)}')
        a(f'v_lshl_add_u32 {v(vT)}, {v(vT + 4)}, 3, {v(vT)}')
        a(f'v_add_u32 {v(vWZ3 + q)}, 8192, {v(vT)}')
    a('v_and_b32 v5, 15, v1')
    a('v_bfe_u32 v6, v1, 1, 3')
    a('v_xor_b32 v6, v6, v2')
    a(f's_lshl_b32 {s(sT3)}, {s(sW3)}, 13')
    a(f's_add_u32 {s(sT3)}, {s(sT3)}, 65536')
    a('v_lshlrev_b32 v5, 7, v5')
    a('v_lshl_add_u32 v5, v6, 4, v5')
    a(f'v_add_u32 {v(vXA0c)}, {s(sT3)}, v5')
    a(f'v_xor_b32 {v(vXA1c)}, 64, {v(vXA0c)}')
    a(f'v_mov_b32 {v(vXA0)}, {v(vXA0c)}')
    a(f'v_mov_b32 {v(vXA1)}, {v(vXA1c)}')
    a(f's_mov_b32 {s(sXR)}, 0')
    a('s_and_b32 s9, s9, 0xffff')
    pf_setup(a)
    a('v_and_b32 v5, 1, v1')
    a('v_lshlrev_b32 v5, 4, v5')
    a('v_lshl_add_u32 v5, v2, 11, v5')
    a(f's_lshl_b32 {s(sT3)}, {s(sWave)}, 13')
    a(f's_lshl_b32 {s(sT0)}, {s(s2Cb)}, 8')
    a(f's_add_u32 {s(sT3)}, {s(sT3)}, {s(sT0)}')
    a(f's_and_b32 {s(sT0)}, {s(sWave)}, 1')
    a(f's_lshl_b32 {s(sT0)}, {s(sT0)}, 2')
    a(f'v_xor_b32 v7, {s(sT0)}, v6')
    a('v_lshl_add_u32 v7, v7, 5, v5')
    a(f'v_add_u32 {v(vBV)}, {s(sT3)}, v7')
    a(f's_lshl_b32 {s(sM2)}, {s(sWave)}, 10')
    for n in range(2):
        for r in range(0, 16, 2):
            a(f'v_pk_mov_b32 {v(acc(n, 0) + r, 2)}, 0, 0')
    stamp(a, 1)
    a('s_waitcnt vmcnt(8)')
    for n in range(2, 7):
        b = BI + (n - 2) * 2
        r0 = acc(n, 0)
        a(f'v_lshlrev_b32 {v(r0)}, 16, {v(b)}')
        a(f'v_and_b32 {v(r0 + 1)}, 0xffff0000, {v(b)}')
        a(f'v_lshlrev_b32 {v(r0 + 2)}, 16, {v(b + 1)}')
        a(f'v_and_b32 {v(r0 + 3)}, 0xffff0000, {v(b + 1)}')
        for m in range(1, 4):
            for h in (0, 2):
                a(f'v_pk_mov_b32 {v(acc(n, m) + h, 2)}, {v(r0 + h, 2)}, {v(r0 + h, 2)} op_sel:[0,1]')
    a(f's_lshl_b32 {s(sT2)}, s2, 3')
    a(f's_add_u32 {s(sT2)}, {s(sT2)}, {s(sWave)}')
    a(f's_cmp_lg_u32 {s(sT2)}, 7')
    a('s_cbranch_scc1 K1_nopub')
    a(f'v_add_u32 {v(vNon)}, 1, {v(vNon)}')
    a(f'v_or_b32 {v(vNon)}, 0x80000000, {v(vNon)}')
    a(f's_mov_b32 {s(sT3)}, {EP_OFF}')
    a(f'buffer_store_dword {v(vNon)}, off, {s(S_DBG, 4)}, 0 sc1')
    a(f'buffer_store_dword {v(vNon)}, off, {s(S_WS, 4)}, {s(sT3)} sc1')
    a('s_waitcnt vmcnt(0)')
    a.label('K1_nopub')
    srd(a, S2_B, 16, 3584 * 1024 * 2)
    a(f's_mul_i32 {s(s2Boff)}, {s(s2Kq)}, {28 * 65536}')
    a(f's_mul_i32 {s(s2Ba)}, {s(s2Kq)}, {8 * 65536}')
    a(f's_lshl_b32 {s(sT2)}, {s(sTyp)}, 1')
    a(f's_add_u32 {s(sT2)}, {s(sT2)}, {s(sGrp)}')
    a(f's_cmp_eq_u32 {s(sT2)}, 1')
    a('s_cbranch_scc1 K1_v01')
    a(f's_cmp_eq_u32 {s(sT2)}, 2')
    a('s_cbranch_scc1 K1_v10')
    a(f's_cmp_eq_u32 {s(sT2)}, 3')
    a('s_cbranch_scc1 K1_v11')
    for typ in range(2):
        for grp in range(2):
            L = f'K1_v{typ}{grp}'
            a.label(L)
            if OPT['yprio'] and grp == 1:
                a('s_setprio 1')
            stamp(a, 2)
            a('s_barrier')
            stamp(a, 3)
            for x in k1_reads(grp, 0, 0, 0):
                a(x)
            a(f's_mov_b32 {s(sCnt)}, 1')
            a('s_waitcnt vmcnt(6) lgkmcnt(0)')
            a('s_barrier')
            stamp(a, 4)
            k1_substep(a, grp, typ, 0, dma=False, vm=8,
                       extra=group_dma(k1_dma_w(3) + k1_dma_x(0) + k1_dma_w(0) + k1_dma_x(1)))
            for b in range(1, 4):
                k1_substep(a, grp, typ, b, vm=8)
            a.label(L + '_loop')
            if OPT['stamp']:
                a('s_memtime s[26:27]')
                a(f's_add_u32 m0, {s(sCnt)}, 20')
                a('s_waitcnt lgkmcnt(0)')
                a(f'v_writelane_b32 v{vSt}, s26, m0')
            pf = OPT['b2pf']
            for b in range(4):
                k1_substep(a, grp, typ, b, extra=b2_touch() if pf else None, vm=8)
            a(f's_add_u32 {s(sCnt)}, {s(sCnt)}, 1')
            a(f's_cmp_lt_u32 {s(sCnt)}, 7')
            a(f's_cbranch_scc1 {L}_loop')
            stamp(a, 5)
            nl = [[f'buffer_load_dword {v(vNon)}, off, {s(S_DBG, 4)}, 0 sc1']]
            gl = [[f'buffer_load_dwordx4 {v(vE, 4)}, {v(vL16)}, {s(S_X, 4)}, {s(sGoff)} offen'],
                  [f'buffer_load_dwordx4 {v(vE + 4, 4)}, {v(vL16)}, {s(S_X, 4)}, {s(sGoff)} offen offset:1024'],
                  [f'buffer_load_dwordx4 {v(vE + 8, 4)}, {v(vL16)}, {s(S_G, 4)}, 0 offen'],
                  [f'buffer_load_dwordx4 {v(vE + 12, 4)}, {v(vL16)}, {s(S_G, 4)}, 0 offen offset:1024']]
            if OPT['fwarm']:
                fw = [f's_lshl_b32 {s(sT2)}, {s(sRole)}, 3',
                      f's_add_u32 {s(sT2)}, {s(sT2)}, {s(sWave)}',
                      f's_lshl_b32 {s(sT2)}, {s(sT2)}, 7',
                      f's_add_u32 {s(sT2)}, {s(sT2)}, {F_X}',
                      f's_lshl_b32 {s(sT3)}, {s(sT)}, 7',
                      f's_add_u32 {s(sT3)}, {s(sT3)}, {F_KV}',
                      f'v_mov_b32 v6, {s(sT3)}',
                      f'v_writelane_b32 v6, {s(sT2)}, 0',
                      f'v_writelane_b32 v6, {s(sFW)}, 1',
                      f'v_writelane_b32 v6, {s(sEoff)}, 2',
                      f'buffer_load_dword v3, v6, {s(S_WS, 4)}, 0 offen sc1']
                nl = nl + [fw]
            k1_substep(a, grp, typ, 0, dma=False, vm=9 + (1 if OPT['fwarm'] else 0), extra=gl + nl)
            k1_substep(a, grp, typ, 1, dma=False, vm=0)
            k1_substep(a, grp, typ, 2, dma=False, vm=63, fill=gate_code())
            bd = []
            for j in range(14):
                bd += k2_dma_b(j)
            un = group_dma(bd)
            if OPT['lateb']:
                LATE[:] = un[4:]
                un = un[:4]
            else:
                un = [un[2 * q] + un[2 * q + 1] for q in range(7)]
            k1_substep(a, grp, typ, 3, dma=False, reads=False, last=True, extra=un)
            stamp(a, 6)
            if OPT['eprio']:
                a(f's_setprio {OPT["eprio"]}')
            if typ == 0:
                k1_epilogue_A(a, grp, L)
            else:
                k1_epilogue_B(a, grp, L)
            late(a, 99)
            a('s_branch P2_start')
    a.label('P2_start')
    if OPT['eprio']:
        a('s_setprio 0')
    stamp(a, 9)
    get_nonce(a, 'P2n')
    a(f's_and_b32 {s(sT0)}, {s(sRole)}, 0xf8')
    a(f's_lshl_b32 {s(sT0)}, {s(sT0)}, 7')
    a(f's_add_u32 {s(sT0)}, {s(sT0)}, {F_WG}')
    a('v_and_b32 v5, 3, v1')
    a('v_lshlrev_b32 v5, 8, v5')
    a(f'v_add_u32 {v(vF3)}, {s(sT0)}, v5')
    a(f'v_add_u32 {v(vFa)}, 128, {v(vF3)}')
    a(f'v_add_u32 {v(vOFa)}, 4, {v(vFa)}')
    a(f's_lshr_b32 {s(sI)}, {s(sRole)}, 5')
    a(f's_lshl_b32 {s(sT0)}, {s(sI)}, 12')
    a(f's_add_u32 {s(sT0)}, {s(sT0)}, {F_WG}')
    a('v_lshlrev_b32 v5, 7, v1')
    a(f'v_add_u32 v6, {s(sT0)}, v5')
    a('v_cmp_gt_u32 vcc, 32, v1')
    a(f'v_cndmask_b32 {v(vOFa)}, {v(vOFa)}, v6, vcc')
    a(f's_lshl_b32 {s(sT2)}, {s(sI)}, 4')
    a(f's_lshl_b32 {s(sT3)}, {s(sWave)}, 1')
    a(f's_add_u32 {s(sT2)}, {s(sT2)}, {s(sT3)}')
    a(f's_and_b32 {s(sT3)}, {s(s2Kq)}, 1')
    a(f's_add_u32 {s(sT3)}, {s(sT2)}, {s(sT3)}')
    a(f's_mul_i32 {s(sT0)}, {s(sT3)}, {144 * 1024}')
    a(f'v_add_u32 {v(k2AV)}, {s(sT0)}, {v(vL16)}')
    a(f's_xor_b32 {s(sT1)}, {s(sT3)}, 1')
    a(f's_mul_i32 {s(sT0)}, {s(sT1)}, {144 * 1024}')
    a(f'v_add_u32 {v(k2AV + 1)}, {s(sT0)}, {v(vL16)}')
    a('v_and_b32 v5, 15, v1')
    a('v_lshlrev_b32 v5, 2, v5')
    for m, sr in ((0, sT3), (1, sT1)):
        a(f's_lshl_b32 {s(sT0)}, {s(sr)}, 6')
        a(f's_add_u32 {s(sT0)}, {s(sT0)}, {E_OFF}')
        a(f'v_add_u32 {v(k2E + m)}, {s(sT0)}, v5')
    a(f's_lshl_b32 {s(sEoff)}, {s(sT3)}, 4')
    a(f's_mul_i32 {s(s2Aoff)}, {s(s2Kq)}, {28 * 1024}')
    a(f's_add_u32 {s(s2Aoff)}, {s(s2Aoff)}, {32 * 1024}')
    a(f's_lshl_b32 {s(s2Aa)}, {s(s2Kq)}, 13')
    a(f's_lshl_b32 {s(sT0)}, {s(sT)}, 7')
    a(f's_add_u32 {s(sT0)}, {s(sT0)}, {F_KV}')
    a(f'v_add_u32 {v(vKa)}, {s(sT0)}, v5')
    def noncrit(tag):
        a(f'v_bfe_u32 v3, v1, 2, 2')
        a(f'v_lshl_add_u32 v5, v2, 2, v3')
        a('v_and_b32 v6, 7, v5')
        a(f's_lshr_b32 {s(sT2)}, {s(s2Kq)}, 1')
        a(f's_lshl_b32 {s(sT2)}, {s(sT2)}, 2')
        a(f'v_xor_b32 v6, {s(sT2)}, v6')
        a('v_lshlrev_b32 v5, 8, v5')
        a('v_and_b32 v3, 3, v1')
        a('v_lshl_add_u32 v5, v3, 3, v5')
        for n in range(8):
            a(f'v_xor_b32 v7, {n}, v6')
            a(f'v_lshl_add_u32 {v(k2RA + n)}, v7, 5, v5')
            a(f'v_add_u32 {v(k2RA + 8 + n)}, 65536, {v(k2RA + n)}')
            a(f'v_add_u32 {v(k2RA + 16 + n)}, 131072, {v(k2RA + n)}')
        srd(a, S2_OUT, 20, 2048 * 1024 * 2)
        srd(a, S2_WO, 8, 1024 * 2048)
        srd(a, S2_KV, 24, WS_SIZE)
        a(f's_cmp_ge_u32 {s(sWave)}, 6')
        a(f's_cselect_b32 {s(S2_KV + 2)}, 0, {s(S2_KV + 2)}')
        a(f's_mul_i32 {s(sKVo)}, {s(sT)}, {2 * 49152}')
        a(f's_add_u32 {s(sKVo)}, {s(sKVo)}, {KVP_OFF}')
        a(f's_lshl_b32 {s(sT3)}, {s(sWave)}, 11')
        a(f's_add_u32 {s(sKVo)}, {s(sKVo)}, {s(sT3)}')
        a(f's_cmp_ge_u32 {s(sWave)}, 3')
        a(f's_cselect_b32 {s(sT3)}, {49152 - 6144}, 0')
        a(f's_add_u32 {s(sKVo)}, {s(sKVo)}, {s(sT3)}')
        a(f's_cmp_eq_u32 {s(sTyp)}, 0')
        a('s_cbranch_scc1 P2_noq' + tag)
        for n in range(2):
            for m in range(4):
                phi4(a, acc(n, m), CH + (m & 1) * 4)
        for m in range(4):
            for n in range(2):
                cvt4(a, PQ + m * 4 + 2 * n, acc(n, m))
        a.label('P2_noq' + tag)


    a(f's_cmp_eq_u32 {s(sGrp)}, 1')
    a('s_cbranch_scc1 P2_g1skip')
    noncrit('a')
    a.label('P2_g1skip')
    a('s_waitcnt vmcnt(0)')
    a('s_barrier')
    stamp(a, 10)
    a(f's_cmp_lg_u32 {s(sWave)}, 3')
    a('s_cbranch_scc1 P2_noflag')
    a(f'buffer_store_dword {v(vNon)}, off, {s(S_WS, 4)}, {s(sFW)} sc1')
    a(f's_cmp_eq_u32 {s(sTyp)}, 0')
    a('s_cbranch_scc1 P2_c1')
    a('v_cmp_gt_u32 vcc, 32, v1')
    a(f'v_cndmask_b32 {v(vFa)}, {v(vKa)}, {v(vFa)}, vcc')
    a.label('P2_c1')
    a(f'v_mov_b32 {v(vFv)}, 0')
    flag_check(a, 'P2c1', vFv, vFa, sleep=0)
    a.label('P2_noflag')
    a(f's_cmp_eq_u32 {s(sGrp)}, 0')
    a('s_cbranch_scc1 P2_g0skip')
    if OPT['g1mid']:
        noncrit('b')
    a.label('P2_g0skip')
    a('s_barrier')
    stamp(a, 13)
    vmc, vmb, vm7 = VM(), VM(), VM()

    def emit(lst, tag, only=None):
        for x in lst:
            a(x)
            if x.startswith('buffer_'):
                if only is None:
                    for t in (vmc, vmb, vm7):
                        t.issue(tag)
                else:
                    only.issue(tag)
    for j in range(3):
        emit(k2_load_a(j), f'A{j}')
    if not OPT['g1mid']:
        a(f's_cmp_eq_u32 {s(sGrp)}, 0')
        a('s_cbranch_scc1 P2_g0skip2')
        noncrit('b')
        a.label('P2_g0skip2')
    for x in k2_reads(0, 0):
        a(x)

    def bblock(j):
        L = f'P2b{j}'
        if j in (0, 2, 4, 6, 8):
            c = j // 2
            a(f's_cmp_eq_u32 {s(sTyp)}, 0')
            a(f's_cbranch_scc1 {L}')
            if c > 0:
                a(f's_waitcnt vmcnt({vmb.count(f"C{c - 1}")})')
                for q in range(4):
                    if c == 1:
                        a(f'v_pk_add_f32 {v(SUM + q * 2, 2)}, {v(CH + q * 2, 2)}, {v(CH + 8 + q * 2, 2)}')
                    else:
                        a(f'v_pk_add_f32 {v(SUM + q * 2, 2)}, {v(SUM + q * 2, 2)}, {v(CH + q * 2, 2)}')
                        a(f'v_pk_add_f32 {v(SUM + q * 2, 2)}, {v(SUM + q * 2, 2)}, {v(CH + 8 + q * 2, 2)}')
            if c < 4:
                for i in range(2):
                    a(f's_add_u32 {s(sT2)}, {s(sKVo)}, {(2 * c + i) * 6144}')
                    emit([f'buffer_load_dwordx4 {v(CH + (i * 2 + hh) * 4, 4)}, {v(vL16)}, {s(S2_KV, 4)}, {s(sT2)} offen offset:{hh * 1024} sc1'
                          for hh in range(2)], f'C{c}', vmb)
            else:
                for q in range(4):
                    a(f'v_cvt_pk_bf16_f32 {v(CH + q)}, {v(SUM + 2 * q)}, {v(SUM + 2 * q + 1)}')
                a(f's_lshl_b32 {s(sT3)}, {s(sWave)}, 10')
                a(f's_add_u32 {s(sT3)}, {s(sT3)}, {KFL}')
                a(f'v_add_u32 {v(k2T)}, {s(sT3)}, {v(vL16)}')
                a(f'ds_write_b128 {v(k2T)}, {v(CH, 4)}')
            a.label(L)
        if j == 12:
            a(f's_cmp_eq_u32 {s(sTyp)}, 0')
            a(f's_cbranch_scc1 {L}')
            a(f's_mul_i32 {s(sT3)}, {s(sGrp)}, 3072')
            a(f's_add_u32 {s(sT3)}, {s(sT3)}, {KFL}')
            a(f'v_add_u32 {v(k2T)}, {s(sT3)}, {v(vL16)}')
            for f in range(3):
                a(f'ds_read_b128 {v(KF + f * 4, 4)}, {v(k2T)} offset:{f * 1024}')
            a(f's_mul_i32 {s(sKVo)}, {s(sT)}, 7')
            a(f's_add_u32 {s(sKVo)}, {s(sKVo)}, 32')
            a(f's_sub_u32 {s(sKVo)}, {s(sH)}, {s(sKVo)}')
            a(f's_lshl_b32 {s(sKVo)}, {s(sKVo)}, 10')
            a(f's_add_u32 {s(sKVo)}, {s(sKVo)}, {s(sA2)}')
            a.label(L)
        if j in (13, 14, 15, 16):
            m = j - 13
            a(f's_cmp_eq_u32 {s(sTyp)}, 0')
            a(f's_cbranch_scc1 {L}')
            for b in (2, 0, 1):
                a(f'v_mfma_f32_16x16x32_bf16 {v(NUM + b * 4, 4)}, {v(KF + b * 4, 4)}, {v(PQ + m * 4, 4)}, 0')
            dn = NUM + 8
            a(f'v_add_f32 {v(dn)}, {s(sEps)}, {v(dn)}')
            a(f'v_rcp_f32 {v(dn)}, {v(dn)}')
            for b in range(2):
                r = NUM + b * 4
                for h in (0, 2):
                    a(f'v_pk_mul_f32 {v(r + h, 2)}, {v(r + h, 2)}, {v(dn, 2)} op_sel_hi:[1,0]')
                cvt4(a, OOUT + 2 * b, r)
            emit([f'buffer_store_dwordx4 {v(OOUT, 4)}, {v(vL16)}, {s(S_WS, 4)}, {s(sKVo)} offen{OPT["nta"]}'], 'O', vmb)
            a(f's_add_u32 {s(sKVo)}, {s(sKVo)}, {144 * 1024}')
            a.label(L)
        if j == 18:
            a(f's_lshl_b32 {s(sT0)}, {s(sWave)}, 1')
            a(f's_or_b32 {s(sT0)}, {s(sT0)}, {s(sTyp)}')
            a(f's_cmp_eq_u32 {s(sT0)}, 13')
            a(f's_cbranch_scc0 {L}')
            a(f'buffer_store_dword {v(vNon)}, off, {s(S_WS, 4)}, {s(sFW)} offset:4 sc1')
            a.label(L)

    CHK = {8: (11, vF3, 'c2'), 21: (23, vOFa, 'c3')}
    SF = OPT['sendfirst']
    for j in range(33 if SF else 36):
        cur, nxt = j & 1, (j + 1) & 1
        kind, idx = ORDER[j]
        if j == 0:
            a(f's_waitcnt vmcnt({vmc.count("A0")}) lgkmcnt(0)')
            stamp(a, 14)
        bblock(j)
        if j in CHK:
            a(f's_cmp_lg_u32 {s(sWave)}, 7')
            a(f's_cbranch_scc1 P2_nl{j}')
            emit([f'buffer_load_dword {v(vOF)}, {v(CHK[j][1])}, {s(S_WS, 4)}, 0 offen sc1'], CHK[j][2], vm7)
            a.label(f'P2_nl{j}')
        if j == 24:
            emit([f'buffer_load_dword {v(k2E + m)}, {v(k2E + m)}, {s(S_WS, 4)}, 0 offen sc1' for m in range(2)], 'E')
        if j == 28:
            a(f's_waitcnt vmcnt({vmc.count("E")})')
            for m in range(2):
                a(f'v_rcp_f32 {v(k2E + m)}, {v(k2E + m)}')
            for q in range(2):
                for h in range(4):
                    a(f'v_mul_f32 {v(k2ACC + q * 4 + h)}, {v(k2E + (q & 1))}, {v(k2ACC + q * 4 + h)}')
        A0 = k2A + (j % NA) * 8
        if kind == 'b' and idx % 14 in (2, 11):
            a(f's_bitcmp0_b32 {s(s2Kq)}, 0')
            a(f's_cbranch_scc0 K2_sp1_{j}')
            a(f'v_swap_b32 {v(A0 + 2)}, {v(A0 + 4)}')
            a(f'v_swap_b32 {v(A0 + 3)}, {v(A0 + 5)}')
            a(f's_branch K2_spd_{j}')
            a.label(f'K2_sp1_{j}')
            a(f'v_swap_b32 {v(A0)}, {v(A0 + 6)}')
            a(f'v_swap_b32 {v(A0 + 1)}, {v(A0 + 7)}')
            a.label(f'K2_spd_{j}')
            a('s_nop 1')
        units = []
        for ja in ([j + 3] if not (SF and j >= 30) else {30: [33, 34], 31: [35], 32: []}[j]):
            if ja < 36:
                units += [(u, f'A{ja}') for u in group_dma(k2_load_a(ja))]
        if j == 6:
            units += [(k2_dma_b(18), 'B18')]
        jb = j + 14 if j < 4 else j + 13
        if j not in (4, 5) and jb < 36:
            units += [(k2_dma_b(jb), f'B{jb}')]
        rd = k2_reads(nxt, (j + 1) % RING) if j < 35 else []
        if SF and j == 32:
            rd = []
            for q, st in enumerate((33, 34)):
                for n in range(4):
                    rd += k2_read1(k2BF + 32 + (q * 4 + n) * 4, st % RING, 4 + n)
        k = ui = 0
        for n in range(8):
            for m in ((0, 1) if (n % 2 == 0 or not OPT['snake'] or j == 28) else (1, 0)):
                d = v(k2acc(n, m), 4)
                if j == 28 and k + 2 < 16:
                    for h in range(4):
                        a(f'v_mul_f32 {v(k2ACC + (k + 2) * 4 + h)}, {v(k2E + (k & 1))}, {v(k2ACC + (k + 2) * 4 + h)}')
                a(f'v_mfma_f32_16x16x32_bf16 {d}, {v(k2BF + cur * 32 + n * 4, 4)}, {v(A0 + m * 4, 4)}, {d if j else "0"}')
                for _ in range(OPT['p2rd']):
                    if rd:
                        a(rd.pop(0))
                if k in OPT['p2pos'] and ui < len(units):
                    emit(units[ui][0], units[ui][1])
                    ui += 1
                k += 1
        assert ui == len(units)
        if j == 35:
            break
        for jl, (jc, va, nm) in CHK.items():
            if j == jc:
                a(f's_cmp_lg_u32 {s(sWave)}, 7')
                a(f's_cbranch_scc1 P2_nc{j}')
                a(f's_waitcnt vmcnt({vm7.count(nm)})')
                flag_check(a, 'P2' + nm, vOF, va)
                a.label(f'P2_nc{j}')
        def need(t):
            n = t.count(f'A{j + 1}')
            if SF and j == 32:
                n = min(n, t.count('A34'))
            if j % 6 == 5:
                for jb in range(j + 2, j + 8):
                    if 14 <= jb < 36:
                        n = min(n, t.count(f'B{jb}'))
                if j == 17 and t is vmb:
                    n = min(n, t.count('O'))
            return n
        nc, nb_ = need(vmc), need(vmb)
        if nc != nb_:
            a(f's_cmp_eq_u32 {s(sTyp)}, {1 if nc < nb_ else 0}')
            a(f's_cbranch_scc1 P2_w{j}')
            a(f's_waitcnt vmcnt({min(nc, nb_)})')
            a.label(f'P2_w{j}')
        a(f's_waitcnt vmcnt({max(nc, nb_)}) lgkmcnt(0)')
        if j % 6 == 5:
            a('s_barrier')
    PK = 56 if SF else 8

    def send(t, d):
        t(f's_xor_b32 {s(sT3)}, {s(sRole)}, {d << 3}')
        t(f's_mul_i32 {s(sT3)}, {s(sT3)}, 49152')
        t(f's_add_u32 {s(sT3)}, {s(sT3)}, {s(sT2)}')
        t(f's_add_u32 {s(sT3)}, {s(sT3)}, {XCH_OFF + (d - 1) * 16384}')
        m, nb = d & 1, (d >> 1) * 4
        p = PK + (d - 1) * 8
        for n in range(4):
            cvt4(t, p + n * 2, k2acc(nb + n, m))
            if n & 1:
                q = n >> 1
                t(f'buffer_store_dwordx4 {v(p + q * 4, 4)}, {v(vL16)}, {s(S_WS, 4)}, {s(sT3)} offen offset:{q * 1024} sc1')

    def addr(a):
        a(f'v_add_f32 {v(k2E)}, 1.0, {v(k2E)}')
        a(f'v_rcp_f32 {v(k2E)}, {v(k2E)}')
        a(f's_lshl_b32 {s(sT0)}, {s(sRole)}, 3')
        a(f's_add_u32 {s(sT0)}, {s(sT0)}, {s(sWave)}')
        a(f's_lshl_b32 {s(sT0)}, {s(sT0)}, 7')
        a('v_and_b32 v5, 3, v1')
        a('v_max_u32 v5, 1, v5')
        a('v_lshlrev_b32 v5, 13, v5')
        a(f'v_xor_b32 v5, {s(sT0)}, v5')
        a(f'v_add_u32 {v(vFa)}, {F_X}, v5')
        a(f's_add_u32 {s(sT0)}, {s(sT0)}, {F_X}')
        a(f's_mul_i32 {s(sT1)}, {s(sRole)}, 49152')
        a(f's_add_u32 {s(sT1)}, {s(sT1)}, {s(sT2)}')
        a(f's_add_u32 {s(sT1)}, {s(sT1)}, {XCH_OFF}')
        a('v_and_b32 v5, 15, v1')
        a('v_and_b32 v6, 7, v1')
        a('v_lshrrev_b32 v7, 1, v2')
        a('v_xor_b32 v6, v6, v7')
        a('v_lshlrev_b32 v5, 7, v5')
        a('v_and_b32 v7, 1, v2')
        a('v_lshl_add_u32 v5, v7, 3, v5')
        a(f's_add_u32 {s(sC)}, {s(sT2)}, {KFL}')
        a(f'v_add_u32 v5, {s(sC)}, v5')
        for n in range(4):
            a(f'v_xor_b32 v7, {2 * n}, v6')
            a(f'v_lshl_add_u32 {v(k2RA + n)}, v7, 4, v5')
        a('v_lshrrev_b32 v6, 3, v1')
        a('v_and_b32 v7, 7, v1')
        a(f'v_xor_b32 {v(k2T)}, v6, v7')
        a(f'v_lshlrev_b32 {v(k2T)}, 4, {v(k2T)}')
        a(f'v_lshl_add_u32 {v(k2T)}, v6, 7, {v(k2T)}')
        a(f'v_add_u32 {v(k2T)}, {s(sC)}, {v(k2T)}')
        a('v_lshlrev_b32 v7, 4, v7')
        a('v_lshl_add_u32 v7, v6, 11, v7')
        a(f'v_mov_b32 {v(vFv)}, 0')

    a(f's_lshl_b32 {s(sT2)}, {s(sWave)}, 11')
    if SF:
        def mm(n, m, bf, st):
            d = v(k2acc(n, m), 4)
            return f'v_mfma_f32_16x16x32_bf16 {d}, {v(bf, 4)}, {v(aset(st) + m * 4, 4)}, {d}'

        def collect(fn):
            t = Asm()
            fn(t)
            return t.lines

        def run(mf, fill, per, delay=0):
            fill = list(fill)
            for k, x in enumerate(mf):
                a(x)
                if k >= delay:
                    for _ in range(per):
                        if fill:
                            a(fill.pop(0))
            for y in fill:
                a(y)
        B0, B1 = k2BF, k2BF + 32
        rd = []
        for n in range(4):
            rd += k2_read1(B0 + n * 4, 35 % RING, 4 + n)
        for n in range(4):
            rd += k2_read1(B0 + 16 + n * 4, 33 % RING, n)
        run([mm(4 + n, m, B1 + (q * 4 + n) * 4, st) for q, st in enumerate((33, 34)) for n in range(4) for m in range(2)], rd, 2)
        a(f's_waitcnt vmcnt({vmc.count("A35")}) lgkmcnt(0)')
        rd = []
        for q, st in enumerate((34, 35)):
            for n in range(4):
                rd += k2_read1(B1 + (q * 4 + n) * 4, st % RING, n)
        run([mm(4 + n, m, B0 + n * 4, 35) for n in range(4) for m in range(2)], rd, 2)

        def low(m):
            o = [mm(n, m, B0 + 16 + n * 4, 33) for n in range(4)]
            for q, st in enumerate((34, 35)):
                o += [mm(n, m, B1 + (q * 4 + n) * 4, st) for n in range(4)]
            return o
        y = low(1)
        run(y[:4], collect(lambda t: send(t, 2))[:4], 1)
        a('s_waitcnt lgkmcnt(0)')
        run(y[4:], collect(lambda t: send(t, 2))[4:] + collect(lambda t: send(t, 3)), 3)
        run(low(0), collect(lambda t: send(t, 1)) + collect(addr), 4, delay=2)
        stamp(a, 16)
    else:
        stamp(a, 16)
        for d in (1, 2, 3):
            send(a, d)
        addr(a)
    stamp(a, 17)
    a('s_waitcnt vmcnt(0)')
    a(f'buffer_store_dword {v(vNon)}, off, {s(S_WS, 4)}, {s(sT0)} sc1')
    stamp(a, 18)
    flag_check(a, 'K2x', vFv, vFa, sleep=OPT['xsleep'])
    stamp(a, 19)
    RX = 40
    for d in range(3):
        for q in range(2):
            a(f'buffer_load_dwordx4 {v(RX + d * 8 + q * 4, 4)}, {v(vL16)}, {s(S_WS, 4)}, {s(sT1)} offen offset:{q * 1024} sc1')
        if d < 2:
            a(f's_add_u32 {s(sT1)}, {s(sT1)}, 16384')
    a(f's_lshl_b32 {s(sT0)}, {s(sEoff)}, 11')
    a(f's_lshl_b32 {s(sT2)}, {s(s2Cb)}, 8')
    a(f's_add_u32 {s(sT0)}, {s(sT0)}, {s(sT2)}')
    a(f's_lshr_b32 {s(sT2)}, {s(s2Kq)}, 1')
    a(f's_lshl_b32 {s(sT2)}, {s(sT2)}, 7')
    a(f's_add_u32 {s(sT0)}, {s(sT0)}, {s(sT2)}')
    a(f's_add_u32 {s(sT2)}, {s(sT0)}, {8 * 2048}')
    UP = 64
    for d in range(3):
        a(f's_waitcnt vmcnt({4 - 2 * d})')
        for n in range(4):
            r = k2acc(n, 0)
            u = UP + (n & 1) * 4
            for h in range(2):
                src = RX + d * 8 + n * 2 + h
                a(f'v_lshlrev_b32 {v(u + 2 * h)}, 16, {v(src)}')
                a(f'v_and_b32 {v(u + 2 * h + 1)}, 0xffff0000, {v(src)}')
            for h in (0, 2):
                a(f'v_pk_add_f32 {v(r + h, 2)}, {v(r + h, 2)}, {v(u + h, 2)}')
    for n in range(4):
        r = k2acc(n, 0)
        for h in (0, 2):
            a(f'v_pk_mul_f32 {v(r + h, 2)}, {v(r + h, 2)}, {v(k2E, 2)} op_sel_hi:[1,0]')
        cvt4(a, 8 + n * 2, r)
        a(f'ds_write_b64 {v(k2RA + n)}, {v(8 + n * 2, 2)}')
    a('s_waitcnt lgkmcnt(0)')
    a(f'ds_read_b128 v[16:19], {v(k2T)}')
    a(f'ds_read_b128 v[20:23], {v(k2T)} offset:1024')
    a('s_waitcnt lgkmcnt(1)')
    a(f'buffer_store_dwordx4 v[16:19], v7, {s(S2_OUT, 4)}, {s(sT0)} offen{OPT["nto"]}')
    a('s_waitcnt lgkmcnt(0)')
    a(f'buffer_store_dwordx4 v[20:23], v7, {s(S2_OUT, 4)}, {s(sT2)} offen{OPT["nto"]}')
    if OPT['stamp']:
        a('s_waitcnt vmcnt(0)')
        stamp(a, 20)
        a(f's_lshl_b32 {s(sT0)}, s2, 3')
        a(f's_add_u32 {s(sT0)}, {s(sT0)}, {s(sWave)}')
        a(f's_lshl_b32 {s(sT0)}, {s(sT0)}, 8')
        a(f's_add_u32 {s(sT0)}, {s(sT0)}, {STAMP_OFF}')
        a('v_lshlrev_b32 v0, 2, v1')
        a(f'buffer_store_dword v{vSt}, v0, {s(S_WS, 4)}, {s(sT0)} offen')
        if OPT['dbgout']:
            a(f's_lshl_b32 {s(sT0)}, s2, 3')
            a(f's_add_u32 {s(sT0)}, {s(sT0)}, {s(sWave)}')
            a(f's_cmp_lg_u32 {s(sT0)}, {OPT["dbgout"]}')
            a('s_cbranch_scc1 K_end')
            a(f'v_readlane_b32 {s(sT1)}, v{vSt}, 32')
            for k, idx in enumerate([11, 12, 1, 3, 4, 5, 6, 7, 10, 13, 14, 16, 18, 19, 20]):
                a(f'v_readlane_b32 {s(sT2)}, v{vSt}, {32 + idx}')
                a(f's_sub_u32 {s(sT2)}, {s(sT2)}, {s(sT1)}')
                a(f'v_mov_b32 v5, {s(sT2)}')
                a(f'buffer_store_dword v5, off, {s(S_DBG, 4)}, 0 offset:{4 * (k + 1)}')
    a.label('K_end')
    a('s_endpgm')
    a.label('K_code_end')


HEADER = open('cdna_kernels/%s.s.ref' % NAME).read().split('; Override launch')[0]


def build():
    out = HEADER
    out += '; @launch grid=(256,1,1) block=(512,1,1) lds=163840\n'
    out += '.amdgcn_target "amdgcn-amd-amdhsa--gfx950"\n.text\n'
    a = Asm()
    gen(a)
    out += f'.globl {KN}\n.p2align 8\n.type {KN},@function\n'
    out += f'.set CODE_LAST, K_code_end - {KN} - 64\n'
    out += a.finalize()
    out += f'''.section .rodata,"a"
.p2align 6
.amdhsa_kernel {KN}
  .amdhsa_next_free_vgpr 256
  .amdhsa_next_free_sgpr 102
  .amdhsa_accum_offset 256
  .amdhsa_group_segment_fixed_size 0
  .amdhsa_kernarg_size 88
  .amdhsa_user_sgpr_count 2
  .amdhsa_user_sgpr_kernarg_segment_ptr 1
  .amdhsa_system_sgpr_workgroup_id_x 1
.end_amdhsa_kernel
'''
    return out


if __name__ == '__main__':
    path = sys.argv[1] if len(sys.argv) > 1 else f'cdna_kernels/{NAME}.s'
    for kv in sys.argv[2:]:
        k, val = kv.split('=', 1)
        if val in ('True', 'False'):
            val = val == 'True'
        elif val.lstrip('-').isdigit():
            val = int(val)
        elif ',' in val:
            val = tuple(int(x) for x in val.split(','))
        if k.startswith('nt'):
            val = ' ' + val.replace('_', ' ')
        OPT[k] = val
    open(path, 'w').write(build())
```

```python
import sys
from asmlib import Asm, v, s

NAME = 'gated_mix__linear_attn_block__dense_activation_mish__prompt'
KN = NAME + '_kernel'

A2_OFF = 0
E_OFF = 0x1300000
FLG_OFF = 0x1310000
F_KV = FLG_OFF
F_WG = FLG_OFF + 0x2000
F_X = 0x2500000
F_W = FLG_OFF + 0xA000
EP_OFF = FLG_OFF + 0xF000
KVP_OFF = 0x1400000
XCH_OFF = 0x1800000
STAMP_OFF = 0x3000000
WS_SIZE = 268435456
LOG2E = 0x3fb8aa3b
SPIN_MAX = 100000

OPT = dict(stamp=False, dma_every=3, b2pf=True, codepf=True, b2u=1, b2all=0, pfx=None, cp1=True, late2=True, map8=True, fwarm=True, tlb=0, xsleep=0, sendfirst=True, snake=True, lateb=False, nta=' sc1', dbgout=0, nto=' nt', xp1='', g1mid=False, eprio=2, yprio=False, yprio2=False, nopk=False, ntw='', ntx='', ntb='', ntp='', probar=False, xp_same=False, u1=(0,0,0,1,1,2,2,2), p2pos=(3,7,10,13), xp2='', asc=' sc1', fastmish=True, p2rd=2, b0=2)

S_X, S_W, S_WS, S_DBG, S_B1, S_B1Z, S_G, S_PF = 28, 32, 36, 40, 44, 48, 52, 88
S2_B, S2_OUT, S2_AL = 44, 48, 52
sI, sT, sTyp, sWave, sW3, sGrp = 56, 57, 58, 59, 60, 61
sP0, sP1, sS, sZ2 = 62, 63, 64, 65
sWstr, sWoff, sWstep = 66, 67, 68
sXK, sXD, sXR, sCnt = 69, 70, 71, 72
sT0, sT1, sT2, sT3 = 73, 74, 75, 76
sM0W, sM0X = 77, 78
sC, sL2E = 79, 80
sH, sNon = 82, 83
sPFo = 84
sPFu, sPFu1, sPFnr = 3, 10, 11
sPF2b, sPF2nr, sPF2o = 14, 4, 5
sC60, sEps, sEoff = 85, 86, 87
sA2 = 92
s2Cb, s2Kq = 94, 95
s2Aoff, s2Boff, sGoff, sKVo, sFW = 96, 97, 98, 99, 100
sM2, sRole = 101, 93
s2Asw = 81
s2Aa, s2Ba = 18, 19
vOF = 111
vOFa = 112
vSt = 4
WF, XF = 8, 64
vXA0c, vXA1c, vXA0, vXA1 = 96, 97, 98, 99
vWZ12, vWZ3 = 100, 102
vXV, vWV = 105, 107
vPF = 109
vNon = 110
vL16 = 113
vBV = 114
vT = 116
ACC = 128
vE = 240
RING = 18
NA = 4
k2A = 8
PQ = 40
CH = 56
SUM = 72
KF, NUM, OOUT = 56, 68, 116
k2RA = 80
k2AV = 104
k2E = 106
vFa, vFv, vKa, vF3 = 120, 121, 122, 123
k2T = 124
k2ACC = 128
k2BF = 192
S2_WO = 88
S2_KV = 28


class VM:
    def __init__(self):
        self.ops = []

    def issue(self, tag):
        self.ops.append(tag)

    def count(self, tag):
        idx = max(i for i, t in enumerate(self.ops) if t == tag)
        return min(63, len(self.ops) - 1 - idx)


def stamp(a, idx):
    if not OPT['stamp']:
        return
    a('s_memtime s[26:27]')
    a('s_waitcnt lgkmcnt(0)')
    a(f'v_writelane_b32 v{vSt}, s26, {idx}')
    a('s_memrealtime s[26:27]')
    a('s_waitcnt lgkmcnt(0)')
    a(f'v_writelane_b32 v{vSt}, s26, {idx + 32}')


def srd(a, base, ptr, nbytes):
    a(f's_mov_b32 {s(base)}, {s(ptr)}')
    a(f's_and_b32 {s(base+1)}, {s(ptr+1)}, 0xffff')
    a(f's_mov_b32 {s(base+2)}, {nbytes}')
    a(f's_mov_b32 {s(base+3)}, 0x00020000')


def acc(n, m):
    return ACC + (n * 4 + m) * 4


def wf(buf, n):
    return WF + buf * 28 + n * 4


def xf(buf, m):
    return XF + buf * 16 + m * 4


def k1_reads(grp, buf, wslot, kk):
    nt = 7 if grp == 0 else 6
    xa = vXA0 if kk == 0 else vXA1
    xs = [f'ds_read_b128 {v(xf(buf, m), 4)}, {v(xa)} offset:{m * 2048}' for m in range(4)]
    ws = []
    for n in range(nt):
        if n < 4:
            addr = vWZ12 + (n & 1)
            off = wslot * 16384 + (4096 if n >= 2 else 0)
            d2 = 512
        else:
            addr = vWZ3 + (n - 4)
            off = wslot * 16384
            d2 = 1024
        ws.append(f'ds_read_b64_tr_b16 {v(wf(buf, n), 2)}, {v(addr)} offset:{off}')
        ws.append(f'ds_read_b64_tr_b16 {v(wf(buf, n) + 2, 2)}, {v(addr)} offset:{off + d2}')
    if 'w' in OPT['xp1']:
        ws = ws[:len(ws) // 2]
    if 'W' in OPT['xp1']:
        ws = ws[:2]
    if 'X' in OPT['xp1']:
        xs = xs[:1]
    return ws[:2] + xs + ws[2:]


def k1_dma_w(slot):
    out = [f's_add_u32 m0, {s(sM0W)}, {slot * 16384}']
    for j in range(2):
        out.append(f'buffer_load_dwordx4 {v(vWV + j)}, {s(S_W, 4)}, {s(sWoff)} offen offset:{j * 1024}{OPT["ntw"]} lds')
    out.append(f's_add_u32 {s(sWoff)}, {s(sWoff)}, {s(sWstep)}')
    return out


def k1_dma_x(par):
    out = []
    if par == 0:
        out.append(f's_add_u32 {s(sXK)}, {s(sXK)}, 128')
        out.append(f's_add_u32 {s(sXD)}, {s(sXD)}, 32768')
        out.append(f's_cmp_eq_u32 {s(sXD)}, 98304')
        out.append(f's_cselect_b32 {s(sXD)}, 0, {s(sXD)}')
        out.append(f's_add_u32 m0, {s(sXD)}, {s(sM0X)}')
        so = sXK
    else:
        out.append(f's_add_u32 {s(sT0)}, {s(sXK)}, 262144')
        out.append(f's_add_u32 {s(sT1)}, {s(sXD)}, {s(sM0X)}')
        out.append(f's_add_u32 m0, {s(sT1)}, 16384')
        so = sT0
    for j in range(2):
        out.append(f'buffer_load_dwordx4 {v(vXV + j)}, {s(S_X, 4)}, {s(so)} offen offset:{j * 1024}{OPT["ntx"]} lds')
    return out


def k1_adv_xread():
    return [f's_add_u32 {s(sXR)}, {s(sXR)}, 32768',
            f's_cmp_eq_u32 {s(sXR)}, 98304',
            f's_cselect_b32 {s(sXR)}, 0, {s(sXR)}',
            f'v_add_u32 {v(vXA0)}, {s(sXR)}, {v(vXA0c)}',
            f'v_add_u32 {v(vXA1)}, {s(sXR)}, {v(vXA1c)}']


def k1_mfmas(grp, typ, buf):
    nt = 7 if grp == 0 else 6
    out = []
    for n in range(nt):
        for m in (range(4) if (n % 2 == 0 or not OPT['snake']) else range(3, -1, -1)):
            d = v(acc(n, m), 4)
            W = v(wf(buf, n), 4)
            X = v(xf(buf, m), 4)
            if typ == 0 and n < 4:
                out.append(f'v_mfma_f32_16x16x32_bf16 {d}, {X}, {W}, {d}')
            else:
                out.append(f'v_mfma_f32_16x16x32_bf16 {d}, {W}, {X}, {d}')
    return out


def group_dma(lst):
    units = []
    cur = []
    for x in lst:
        cur.append(x)
        if x.startswith('buffer_'):
            units.append(cur)
            cur = []
    if cur:
        units[-1] = units[-1] + cur
    return units


_tn = [0]


def b2_touch():
    _tn[0] += 1
    L = f'PFs{_tn[0]}'
    return [[f's_sub_u32 {s(sPFu1)}, {s(sPFu1)}, 1',
             f's_cbranch_scc0 {L}',
             f'buffer_load_dword v3, {v(vPF)}, {s(S_PF, 4)}, {s(sPFo)} offen{OPT["ntp"]}',
             f's_mov_b32 {s(sPFu1)}, {s(sPFu)}',
             f's_add_u32 {s(sPFo)}, {s(sPFo)}, 8192',
             f's_mov_b32 {s(sPFu)}, 1000',
             f'{L}:']]


def pf_setup(a):
    srd(a, S_PF, 16, 3584 * 2048)
    a(f's_mov_b32 {s(sT0)}, {896 * 128}')
    a(f'v_mul_lo_u32 {v(vPF)}, v1, {s(sT0)}')
    a(f's_lshl_b32 {s(sT2)}, {s(sWave)}, 8')
    a(f's_add_u32 {s(sT2)}, {s(sT2)}, s2')
    a(f's_lshl_b32 {s(sPFo)}, {s(sT2)}, 7')
    a(f's_lshr_b32 {s(sT0)}, s2, 3')
    a(f's_mul_i32 {s(sT0)}, {s(sT0)}, 5')
    a(f's_mul_i32 {s(sT1)}, {s(sWave)}, 9')
    a(f's_add_u32 {s(sT0)}, {s(sT0)}, {s(sT1)}')
    a(f's_and_b32 {s(sT1)}, s2, 7')
    a(f's_mul_i32 {s(sT1)}, {s(sT1)}, 3')
    a(f's_add_u32 {s(sT0)}, {s(sT0)}, {s(sT1)}')
    a(f's_mul_i32 {s(sT1)}, {s(sT0)}, 2979')
    a(f's_lshr_b32 {s(sT1)}, {s(sT1)}, 16')
    a(f's_mul_i32 {s(sT1)}, {s(sT1)}, 22')
    a(f's_sub_u32 {s(sPFnr)}, {s(sT0)}, {s(sT1)}')
    a(f's_cmp_lt_u32 {s(sT2)}, 896')
    a(f's_cselect_b32 {s(sPFu1)}, {s(sPFnr)}, 1000')
    a(f's_cmp_lg_u32 {s(sWave)}, 4')
    a('s_cbranch_scc1 PF_done')
    srd(a, S_PF, 8, 1024 * 2048)
    a(f's_mov_b32 {s(sPFu1)}, {s(sPFnr)}')
    a(f's_mov_b32 {s(sPFo)}, 0')
    a('v_mul_u32_u24 v5, 5, v1')
    a('v_add_u32 v5, s2, v5')
    a('v_and_b32 v5, 255, v5')
    a('v_lshl_add_u32 v5, v1, 8, v5')
    a(f'v_lshlrev_b32 {v(vPF)}, 7, v5')
    a.label('PF_done')
    a(f's_mov_b32 {s(sPFu)}, 1000')
    if OPT['tlb']:
        G = OPT['tlb']
        a(f's_sub_u32 {s(sT0)}, {s(sWave)}, 5')
        a(f's_cmp_gt_u32 {s(sT0)}, 1')
        a('s_cbranch_scc1 PF_notlb')
        srd(a, S_PF, 24, 0x2540000)
        a(f's_cmp_eq_u32 {s(sT0)}, 1')
        a(f's_cselect_b32 {s(S_PF)}, s20, {s(S_PF)}')
        a(f's_cselect_b32 {s(S_PF + 1)}, s21, {s(S_PF + 1)}')
        a(f's_cselect_b32 {s(S_PF + 2)}, {2048 * 2048}, {s(S_PF + 2)}')
        a(f's_and_b32 {s(S_PF + 1)}, {s(S_PF + 1)}, 0xffff')
        a(f's_lshr_b32 {s(sT0)}, s2, 3')
        a(f's_mul_i32 {s(sPFo)}, {s(sT0)}, {G}')
        a(f's_mov_b32 {s(sT1)}, {32 * G}')
        a(f'v_mul_lo_u32 {v(vPF)}, v1, {s(sT1)}')
        a(f's_mov_b32 {s(sPFu1)}, {s(sPFnr)}')
        a.label('PF_notlb')
    if OPT['pfx']:
        lo, span = OPT['pfx']
        a(f'v_lshlrev_b32 {v(vPF)}, 7, v1')
        srd(a, S_PF, 16, 3584 * 2048)
        a(f's_lshr_b32 {s(sT0)}, s2, 3')
        a(f's_mul_i32 {s(sT1)}, {s(sT0)}, 7')
        a(f's_mul_i32 {s(sT2)}, {s(s2Kq)}, 224')
        a(f's_add_u32 {s(sT1)}, {s(sT1)}, {s(sT2)}')
        a(f's_add_u32 {s(sT1)}, {s(sT1)}, {s(sWave)}')
        a(f's_lshl_b32 {s(sPFo)}, {s(sT1)}, 13')
        a(f's_mul_i32 {s(sT1)}, {s(sWave)}, 3')
        a(f's_add_u32 {s(sT1)}, {s(sT1)}, {s(sT0)}')
        a(f's_and_b32 {s(sT1)}, {s(sT1)}, {span - 1}')
        a(f's_add_u32 {s(sPFu1)}, {s(sT1)}, {lo}')
        a(f's_cmp_lg_u32 {s(sWave)}, 7')
        a('s_cbranch_scc1 PF_done2')
        srd(a, S_PF, 8, 1024 * 2048)
        a(f's_lshl_b32 {s(sT1)}, {s(sT0)}, 1')
        a(f's_lshl_b32 {s(sT2)}, {s(s2Kq)}, 6')
        a(f's_add_u32 {s(sT1)}, {s(sT1)}, {s(sT2)}')
        a(f's_lshl_b32 {s(sPFo)}, {s(sT1)}, 13')
        a(f's_lshr_b32 {s(sPFu1)}, {s(sPFu1)}, 1')
        a(f's_mov_b32 {s(sPFu)}, 3')
        a.label('PF_done2')
    if OPT['b2all']:
        a(f's_mov_b32 {s(sPFu1)}, {OPT["b2all"]}')


def k1_substep(a, grp, typ, b, dma=True, reads=True, last=False, extra=None, fill=None, vm=None):
    cur, nxt = b & 1, (b + 1) & 1
    mf = k1_mfmas(grp, typ, cur)
    pre = []
    rd = []
    if reads:
        if b & 1:
            pre += k1_adv_xread()
        rd = k1_reads(grp, nxt, (b + 1) % 4, (b + 1) & 1)
    units = []
    if dma:
        units = group_dma(k1_dma_w(b) + k1_dma_x(0 if (b & 1) else 1))
        if 'D' in OPT['xp1']:
            units = [[y for y in u if not y.startswith('buffer')] for u in units]
    if extra:
        units = units + extra
    fill = list(fill or [])
    for x in pre:
        a(x)
    ri = ui = 0
    ev = OPT['dma_every']
    ph = 0 if grp == 0 else 1
    for k, mm in enumerate(mf):
        a(mm)
        if ri < len(rd):
            a(rd[ri])
            ri += 1
        if ui < len(units) and k % ev == ph:
            for x in units[ui]:
                a(x)
            ui += 1
        for _ in range(2):
            if fill:
                a(fill.pop(0))
    assert ri == len(rd) and ui == len(units), (ri, ui, len(units))
    for x in fill:
        a(x)
    if last:
        return
    a(f's_waitcnt vmcnt({vm}) lgkmcnt(0)')
    a('s_barrier')


def mish4(a, r, t):
    T, N2, W = t, t + 4, t + 8
    late(a)
    if OPT['fastmish'] and OPT['nopk']:
        for i in range(4):
            a(f'v_mul_f32 {v(T + i)}, {s(sL2E)}, {v(r + i)}')
        for i in range(4):
            a(f'v_exp_f32 {v(T + i)}, {v(T + i)}')
        for i in range(4):
            a(f'v_fma_f32 {v(N2 + i)}, {v(T + i)}, -0.5, -1.0')
        for i in range(4):
            a(f'v_fma_f32 {v(N2 + i)}, {v(T + i)}, {v(N2 + i)}, -1.0')
        for i in range(4):
            a(f'v_rcp_f32 {v(N2 + i)}, {v(N2 + i)}')
        for i in range(4):
            a(f'v_fmac_f32 {v(r + i)}, {v(r + i)}, {v(N2 + i)}')
        return
    if OPT['fastmish']:
        for h in (0, 2):
            a(f'v_pk_mul_f32 {v(T + h, 2)}, {v(r + h, 2)}, {s(sL2E, 2)} op_sel_hi:[1,0]')
        for i in range(4):
            a(f'v_exp_f32 {v(T + i)}, {v(T + i)}')
        for h in (0, 2):
            a(f'v_pk_fma_f32 {v(N2 + h, 2)}, {v(T + h, 2)}, -0.5, -1.0 op_sel_hi:[1,0,0]')
        for h in (0, 2):
            a(f'v_pk_fma_f32 {v(N2 + h, 2)}, {v(T + h, 2)}, {v(N2 + h, 2)}, -1.0 op_sel_hi:[1,1,0]')
        for i in range(4):
            a(f'v_rcp_f32 {v(N2 + i)}, {v(N2 + i)}')
        for h in (0, 2):
            a(f'v_pk_fma_f32 {v(r + h, 2)}, {v(r + h, 2)}, {v(N2 + h, 2)}, {v(r + h, 2)}')
        return
    for h in (0, 2):
        a(f'v_pk_mul_f32 {v(T + h, 2)}, {v(r + h, 2)}, {s(sL2E, 2)} op_sel_hi:[1,0]')
    for i in range(4):
        a(f'v_min_f32 {v(T + i)}, {s(sC60)}, {v(T + i)}')
    for i in range(4):
        a(f'v_exp_f32 {v(T + i)}, {v(T + i)}')
    for h in (0, 2):
        a(f'v_pk_add_f32 {v(N2 + h, 2)}, {v(T + h, 2)}, 2.0 op_sel_hi:[1,0]')
    for h in (0, 2):
        a(f'v_pk_mul_f32 {v(W + h, 2)}, {v(T + h, 2)}, {v(N2 + h, 2)}')
    for h in (0, 2):
        a(f'v_pk_fma_f32 {v(N2 + h, 2)}, {v(T + h, 2)}, {v(N2 + h, 2)}, 2.0 op_sel_hi:[1,1,0]')
    for i in range(4):
        a(f'v_rcp_f32 {v(N2 + i)}, {v(N2 + i)}')
    for h in (0, 2):
        a(f'v_pk_mul_f32 {v(W + h, 2)}, {v(W + h, 2)}, {v(N2 + h, 2)}')
    for h in (0, 2):
        a(f'v_pk_mul_f32 {v(r + h, 2)}, {v(r + h, 2)}, {v(W + h, 2)}')


LATE = []


def late(a, n=1):
    for _ in range(n):
        if LATE:
            for y in LATE.pop(0):
                a(y)


def phi4(a, r, t):
    late(a)
    if OPT['nopk']:
        for i in range(4):
            a(f'v_mul_f32 {v(t + i)}, {s(sL2E)}, {v(r + i)}')
        for i in range(4):
            a(f'v_min_f32 {v(t + i)}, 0, {v(t + i)}')
        for i in range(4):
            a(f'v_exp_f32 {v(t + i)}, {v(t + i)}')
        for i in range(4):
            a(f'v_max_f32 {v(r + i)}, 0, {v(r + i)}')
        for i in range(4):
            a(f'v_add_f32 {v(r + i)}, {s(sEps)}, {v(r + i)}')
        for i in range(4):
            a(f'v_add_f32 {v(r + i)}, {v(r + i)}, {v(t + i)}')
        return
    for h in (0, 2):
        a(f'v_pk_mul_f32 {v(t + h, 2)}, {v(r + h, 2)}, {s(sL2E, 2)} op_sel_hi:[1,0]')
    for i in range(4):
        a(f'v_min_f32 {v(t + i)}, 0, {v(t + i)}')
    for i in range(4):
        a(f'v_exp_f32 {v(t + i)}, {v(t + i)}')
    for i in range(4):
        a(f'v_max_f32 {v(r + i)}, 0, {v(r + i)}')
    for h in (0, 2):
        a(f'v_pk_add_f32 {v(r + h, 2)}, {v(r + h, 2)}, {v(t + h, 2)}')
    for i in range(4):
        a(f'v_add_f32 {v(r + i)}, {s(sEps)}, {v(r + i)}')


def cvt4(a, o, r):
    a(f'v_cvt_pk_bf16_f32 {v(o)}, {v(r)}, {v(r + 1)}')
    a(f'v_cvt_pk_bf16_f32 {v(o + 1)}, {v(r + 2)}, {v(r + 3)}')


def k1_store_pair(a, n0, s_tau, plus, outregs, hook=None):
    a(f's_add_u32 {s(sT2)}, {s(s_tau)}, {plus}')
    a(f's_lshr_b32 {s(sT2)}, {s(sT2)}, 1')
    a(f's_lshl_b32 {s(sT2)}, {s(sT2)}, 10')
    a(f's_add_u32 {s(sT2)}, {s(sT2)}, {s(sA2)}')
    for m in range(4):
        o = outregs + (m & 1) * 4
        mish4(a, acc(n0, m), vE)
        mish4(a, acc(n0 + 1, m), vT)
        cvt4(a, o, acc(n0, m))
        cvt4(a, o + 2, acc(n0 + 1, m))
        a(f'buffer_store_dwordx4 {v(o, 4)}, {v(vL16)}, {s(S_WS, 4)}, {s(sT2)} offen{OPT["nta"]}')
        if m < 3:
            a(f's_add_u32 {s(sT2)}, {s(sT2)}, {144 * 1024}')
        if hook and m == 1:
            hook()
    return 4


def k1_store_single(a, n0, outregs):
    a(f's_lshr_b32 {s(sT2)}, {s(sS)}, 1')
    a(f's_lshl_b32 {s(sT2)}, {s(sT2)}, 10')
    a(f's_add_u32 {s(sT2)}, {s(sT2)}, {s(sA2)}')
    a(f's_and_b32 {s(sT3)}, {s(sS)}, 1')
    a(f's_mul_i32 {s(sT3)}, {s(sT3)}, {144 * 1024}')
    a(f's_add_u32 {s(sT2)}, {s(sT2)}, {s(sT3)}')
    for mp in range(2):
        o = outregs + mp * 4
        mish4(a, acc(n0, 2 * mp), vE)
        mish4(a, acc(n0, 2 * mp + 1), vT)
        cvt4(a, o, acc(n0, 2 * mp))
        cvt4(a, o + 2, acc(n0, 2 * mp + 1))
        a(f'buffer_store_dwordx4 {v(o, 4)}, {v(vL16)}, {s(S_WS, 4)}, {s(sT2)} offen{OPT["nta"]}')
        if mp == 0:
            a(f's_add_u32 {s(sT2)}, {s(sT2)}, {2 * 144 * 1024}')
    return 2


def get_nonce(a, L):
    a(f's_mov_b32 {s(sC)}, 0')
    a.label(f'{L}_nchk')
    a(f'v_readfirstlane_b32 {s(sNon)}, {v(vNon)}')
    a(f's_cmp_lg_u32 {s(sNon)}, 0')
    a(f's_cbranch_scc1 {L}_nok')
    a('s_sleep 8')
    a(f'buffer_load_dword {v(vNon)}, off, {s(S_DBG, 4)}, 0 sc1')
    a(f's_add_u32 {s(sC)}, {s(sC)}, 1')
    a('s_waitcnt vmcnt(0)')
    a(f's_cmp_lt_u32 {s(sC)}, {SPIN_MAX}')
    a(f's_cbranch_scc1 {L}_nchk')
    a.label(f'{L}_nok')


def poll_line(a, L, soff, nlanes, vtmp, sleep=4):
    a(f'v_and_b32 {v(vtmp + 1)}, {nlanes - 1}, v1')
    a(f'v_lshlrev_b32 {v(vtmp + 1)}, 2, {v(vtmp + 1)}')
    a(f's_mov_b32 {s(sC)}, 0')
    a.label(f'{L}_poll')
    a(f'buffer_load_dword {v(vtmp)}, {v(vtmp + 1)}, {s(S_WS, 4)}, {s(soff)} offen sc1')
    a(f's_add_u32 {s(sC)}, {s(sC)}, 1')
    a('s_waitcnt vmcnt(0)')
    a(f'v_cmp_ne_u32 vcc, {s(sNon)}, {v(vtmp)}')
    a('s_nop 4')
    a(f's_cbranch_vccz {L}_polled')
    a(f's_sleep {sleep}')
    a(f's_cmp_lt_u32 {s(sC)}, {SPIN_MAX}')
    a(f's_cbranch_scc1 {L}_poll')
    a.label(f'{L}_polled')


KVL = 114688
KFL = 147456


def k1_epilogue_A(a, grp, L):
    PK, VV, ONES, KV = 8, 24, 40, 44
    a('s_nop 7')
    for n in range(2):
        for m in range(4):
            phi4(a, acc(n, m), vE + (m & 1) * 4)
    for i in range(4):
        a(f'v_mov_b32 {v(ONES + i)}, 0x3f803f80')
    for src, dst in ((2, VV), (0, PK)):
        for n in range(2):
            for c in range(2):
                d = dst + (n * 2 + c) * 4
                for hh in range(2):
                    cvt4(a, d + 2 * hh, acc(src + n, 2 * c + hh))
    for c in range(2):
        for b in range(3):
            for aa in range(2):
                d = v(KV + (b * 2 + aa) * 4, 4)
                B = v(VV + (b * 2 + c) * 4, 4) if b < 2 else v(ONES, 4)
                a(f'v_mfma_f32_16x16x32_bf16 {d}, {v(PK + (aa * 2 + c) * 4, 4)}, {B}, {d if c else "0"}')
    a(f's_mul_i32 {s(sT0)}, {s(sWave)}, 6144')
    a(f's_add_u32 {s(sT0)}, {s(sT0)}, {KVL}')
    a(f'v_add_u32 {v(vT)}, {s(sT0)}, {v(vL16)}')
    for q in range(6):
        a(f'ds_write_b128 {v(vT)}, {v(KV + q * 4, 4)} offset:{q * 1024}')
    a('s_waitcnt lgkmcnt(0)')
    a('s_barrier')
    stamp(a, 7)
    a(f's_cmp_lg_u32 {s(sW3)}, 0')
    a(f's_cbranch_scc1 {L}_nosum')
    bases = (68, 8, 128)
    for w in range(3):
        for q in range(6):
            a(f'ds_read_b128 {v(bases[w] + q * 4, 4)}, {v(vT)} offset:{(w + 1) * 6144 + q * 1024}')
    a(f's_lshl_b32 {s(sT0)}, {s(sH)}, 3')
    a(f's_add_u32 {s(sT0)}, {s(sT0)}, {s(sI)}')
    a(f's_mul_i32 {s(sT1)}, {s(sT0)}, 6144')
    a(f's_add_u32 {s(sT1)}, {s(sT1)}, {KVP_OFF}')
    a(f's_add_u32 {s(sT3)}, {s(sT1)}, 4096')
    for w in range(3):
        a(f's_waitcnt lgkmcnt({12 - 6 * w})')
        for q in range(12):
            a(f'v_pk_add_f32 {v(KV + q * 2, 2)}, {v(KV + q * 2, 2)}, {v(bases[w] + q * 2, 2)}')
    for q in range(6):
        so, off = (sT1, q * 1024) if q < 4 else (sT3, (q - 4) * 1024)
        a(f'buffer_store_dwordx4 {v(KV + q * 4, 4)}, {v(vL16)}, {s(S_WS, 4)}, {s(so)} offen offset:{off} sc1')
    a(f's_lshl_b32 {s(sT0)}, {s(sT)}, 7')
    a(f's_lshl_b32 {s(sT1)}, {s(sI)}, 2')
    a(f's_add_u32 {s(sT0)}, {s(sT0)}, {s(sT1)}')
    a(f's_add_u32 {s(sT0)}, {s(sT0)}, {F_KV + grp * 32}')
    a('s_waitcnt vmcnt(0)')
    get_nonce(a, L + 'a')
    a(f'buffer_store_dword {v(vNon)}, off, {s(S_WS, 4)}, {s(sT0)} sc1')
    stamp(a, 8)
    a.label(f'{L}_nosum')
    if grp == 0:
        k1_store_pair(a, 4, sP0, 0, 72)
        k1_store_single(a, 6, 72)
    else:
        k1_store_pair(a, 4, sP1, 0, 72)


def k1_epilogue_B(a, grp, L):
    OUT = 72
    a('s_setprio 3')
    get_nonce(a, L + 'b')
    a('s_nop 7')
    k1_store_pair(a, 2, sZ2, 2 * grp, OUT)
    a('s_setprio 2')
    if grp == 0:
        k1_store_pair(a, 4, sP0, 0, OUT)
        k1_store_single(a, 6, OUT)
    else:
        k1_store_pair(a, 4, sP1, 0, OUT)
    stamp(a, 7)
    if grp == 1:
        a('s_waitcnt vmcnt(4)')
        a('s_barrier')


def gate_code():
    GX, GW = vE, vE + 8
    o = ['v_mov_b32 v5, 0']
    for i in range(8):
        o.append(f'v_dot2_f32_bf16 v5, {v(GX + i)}, {v(GW + i)}, v5')
    o.append('s_nop 2')
    for sh in (1, 2, 4, 8):
        o.append(f'v_add_f32_dpp v5, v5, v5 row_shr:{sh} row_mask:0xf bank_mask:0xf bound_ctrl:0')
    o.append('v_add_f32_dpp v5, v5, v5 row_bcast:15 row_mask:0xa bank_mask:0xf')
    o.append('v_add_f32_dpp v5, v5, v5 row_bcast:31 row_mask:0xc bank_mask:0xf')
    o.append('v_mov_b32 v6, 0x42200000')
    o.append('v_med3_f32 v5, v5, -v6, v6')
    o.append(f'v_mul_f32 v5, {s(sL2E)}, v5')
    o.append('v_exp_f32 v5, v5')
    o.append(f'v_readlane_b32 {s(sT3)}, v5, 63')
    o.append(f'v_mov_b32 v5, {s(sT3)}')
    o.append(f'buffer_store_dword v5, off, {s(S_WS, 4)}, {s(sEoff)} sc1')
    return o


def k2acc(n, m):
    return k2ACC + (n * 2 + m) * 4


def k2_reads(buf, slot):
    out = []
    for n in range(8):
        addr = k2RA + (slot // 8) * 8 + n
        off = (slot % 8) * 8192
        d = k2BF + buf * 32 + n * 4
        out.append(f'ds_read_b64_tr_b16 {v(d, 2)}, {v(addr)} offset:{off}')
        out.append(f'ds_read_b64_tr_b16 {v(d + 2, 2)}, {v(addr)} offset:{off + 4096}')
    return out


def k2_read1(dst, slot, n):
    addr = k2RA + (slot // 8) * 8 + n
    off = (slot % 8) * 8192
    return [f'ds_read_b64_tr_b16 {v(dst, 2)}, {v(addr)} offset:{off}',
            f'ds_read_b64_tr_b16 {v(dst + 2, 2)}, {v(addr)} offset:{off + 4096}']


def p2_order():
    o = []
    for lst in ((4, 5, 8, 9), (3, 6, 7, 10), (0, 1, 12, 13), (2, 11)):
        for u in range(2):
            o += [('b', 14 * u + g) for g in lst]
    o += [('a', h) for h in range(8)]
    return o


ORDER = p2_order()


def k2_dma_b(j):
    kind, idx = ORDER[j]
    slot = j % RING
    out = [f's_add_u32 m0, {s(sM2)}, {slot * 8192}']
    base, srdn = (s2Boff, S2_B) if kind == 'b' else (s2Ba, S2_WO)
    out.append(f's_add_u32 {s(sT0)}, {s(base)}, {idx * 65536}')
    out.append(f'buffer_load_dwordx4 {v(vBV)}, {s(srdn, 4)}, {s(sT0)} offen{OPT["ntb"]} lds')
    return out


def aset(j):
    if OPT['sendfirst'] and j >= 34:
        return 40 + (j - 34) * 8
    return k2A + (j % NA) * 8


def k2_load_a(j):
    kind, idx = ORDER[j]
    base = s2Aoff if kind == 'b' else s2Aa
    out = [f's_add_u32 {s(sT1)}, {s(base)}, {idx * 1024}']
    for m in range(2):
        out.append(f'buffer_load_dwordx4 {v(aset(j) + m * 4, 4)}, {v(k2AV + m)}, {s(S_WS, 4)}, {s(sT1)} offen sc1')
    return out


def flag_check(a, L, vval, vaddr, sleep=4):
    a(f's_mov_b32 {s(sC)}, 0')
    a.label(f'{L}_c')
    a(f'v_cmp_ne_u32 vcc, {s(sNon)}, {v(vval)}')
    a('s_nop 4')
    a(f's_cbranch_vccz {L}_ok')
    if sleep:
        a(f's_sleep {sleep}')
    a(f'buffer_load_dword {v(vval)}, {v(vaddr)}, {s(S_WS, 4)}, 0 offen sc1')
    a(f's_add_u32 {s(sC)}, {s(sC)}, 1')
    a('s_waitcnt vmcnt(0)')
    a(f's_cmp_lt_u32 {s(sC)}, {SPIN_MAX}')
    a(f's_cbranch_scc1 {L}_c')
    a.label(f'{L}_ok')


def gen(a):
    a.label(KN)
    a('s_cmp_ge_u32 s2, 256')
    a('s_cbranch_scc1 K_end')
    a('s_load_dwordx16 s[4:19], s[0:1], 0')
    a('s_load_dwordx4 s[20:23], s[0:1], 64')
    a('s_load_dwordx2 s[24:25], s[0:1], 80')
    if OPT['codepf']:
        a('s_getpc_b64 s[26:27]')
        if OPT['cp1']:
            a('s_lshr_b32 s3, s2, 3')
            a('s_and_b32 s3, s3, 7')
            a('s_lshl_b32 s3, s3, 13')
            a('v_lshlrev_b32 v5, 7, v0')
            a('v_add_u32 v5, s3, v5')
            a('v_min_u32 v5, CODE_LAST, v5')
            a('v_cmp_gt_u32 vcc, 64, v0')
            a('s_and_saveexec_b64 s[30:31], vcc')
            a('s_cbranch_execz CP_skip')
            a('global_load_dword v3, v5, s[26:27]')
            a.label('CP_skip')
            a('s_mov_b64 exec, -1')
        else:
            a('s_lshr_b32 s3, s2, 3')
            a('s_and_b32 s3, s3, 1')
            a('s_lshl_b32 s3, s3, 16')
            a('v_lshlrev_b32 v5, 7, v0')
            a('v_add_u32 v5, s3, v5')
            a('v_min_u32 v5, CODE_LAST, v5')
            a('global_load_dword v3, v5, s[26:27]')
    stamp(a, 0)
    a('v_and_b32 v1, 63, v0')
    a('v_lshrrev_b32 v2, 6, v0')
    a(f'v_readfirstlane_b32 {s(sWave)}, v2')
    a(f's_and_b32 {s(sT0)}, s2, 7')
    a(f's_lshr_b32 {s(sT1)}, s2, 3')
    if OPT['map8']:
        a(f's_and_b32 {s(sI)}, {s(sT1)}, 7')
        a(f's_lshl_b32 {s(sC)}, {s(sT0)}, 2')
        a(f's_lshr_b32 {s(sT2)}, {s(sT1)}, 3')
        a(f's_add_u32 {s(sC)}, {s(sC)}, {s(sT2)}')
    else:
        a(f's_and_b32 {s(sI)}, {s(sT0)}, 1')
        a(f's_lshl_b32 {s(sI)}, {s(sI)}, 2')
        a(f's_and_b32 {s(sT2)}, {s(sT1)}, 3')
        a(f's_add_u32 {s(sI)}, {s(sI)}, {s(sT2)}')
        a(f's_lshr_b32 {s(sC)}, {s(sT0)}, 1')
        a(f's_lshl_b32 {s(sC)}, {s(sC)}, 3')
        a(f's_lshr_b32 {s(sT2)}, {s(sT1)}, 2')
        a(f's_add_u32 {s(sC)}, {s(sC)}, {s(sT2)}')
    a(f's_lshr_b32 {s(sT)}, {s(sC)}, 1')
    a(f's_and_b32 {s(sTyp)}, {s(sC)}, 1')
    a(f's_and_b32 {s(sW3)}, {s(sWave)}, 3')
    a(f's_lshr_b32 {s(sGrp)}, {s(sWave)}, 2')
    a(f's_cmp_eq_u32 {s(sTyp)}, 0')
    a(f's_mov_b32 {s(sT2)}, 0x286085C6')
    a(f's_cselect_b32 {s(sT2)}, 0x09CA0420, {s(sT2)}')
    a(f's_and_b32 {s(sT3)}, {s(sT)}, 1')
    a(f's_lshl_b32 {s(sT3)}, {s(sT3)}, 4')
    a(f's_lshr_b32 {s(sT2)}, {s(sT2)}, {s(sT3)}')
    a(f's_and_b32 {s(sP0)}, {s(sT2)}, 15')
    a(f's_bfe_u32 {s(sP1)}, {s(sT2)}, 0x40004')
    a(f's_bfe_u32 {s(sS)}, {s(sT2)}, 0x40008')
    a(f's_bfe_u32 {s(sZ2)}, {s(sT2)}, 0x4000c')
    a('v_lshrrev_b32 v2, 4, v1')
    a('v_lshrrev_b32 v6, 3, v1')
    a('v_and_b32 v7, 7, v1')
    a(f's_lshl_b32 {s(sT2)}, {s(sWave)}, 15')
    for j in range(2):
        a(f'v_xor_b32 v5, {4 * j}, v2')
        a('v_xor_b32 v5, v5, v7')
        a('v_lshlrev_b32 v5, 4, v5')
        a('v_lshl_add_u32 v5, v6, 11, v5')
        a(f's_add_u32 {s(sT3)}, {s(sT2)}, {j * (8 * 2048 - 1024)}')
        a(f'v_add_u32 {v(vXV + j)}, {s(sT3)}, v5')
    a(f's_lshl_b32 {s(sM0W)}, {s(sWave)}, 11')
    a(f's_add_u32 {s(sM0X)}, {s(sM0W)}, 65536')
    a(f's_lshl_b32 {s(sXK)}, {s(sI)}, 19')
    if OPT['xp_same']:
        a(f's_mov_b32 {s(sXK)}, 0')
    a(f's_sub_u32 {s(sXK)}, {s(sXK)}, 128')
    a(f's_mov_b32 {s(sXD)}, 65536')
    a(f's_mov_b32 {s(sWoff)}, 0')
    a(f's_mul_i32 {s(sA2)}, {s(sT)}, 448')
    if OPT['xp_same']:
        a(f's_and_b32 {s(sA2)}, {s(sT)}, 1')
        a(f's_mul_i32 {s(sA2)}, {s(sA2)}, 448')
    a(f's_cmp_ge_u32 {s(sWave)}, 4')
    a('s_cbranch_scc1 K1_setup_z3')
    a(f's_lshr_b32 {s(sT0)}, {s(sWave)}, 1')
    a(f's_lshl_b32 {s(sT2)}, {s(sT)}, 7')
    if OPT['xp_same']:
        a(f's_mov_b32 {s(sT2)}, 0')
    a(f's_add_u32 {s(sT3)}, {s(sT0)}, 1')
    a(f's_lshl_b32 {s(sT3)}, {s(sT3)}, 11')
    a(f's_cmp_eq_u32 {s(sTyp)}, 0')
    a(f's_cselect_b32 {s(sT3)}, {s(sT3)}, 0')
    a(f's_add_u32 {s(sT2)}, {s(sT2)}, {s(sT3)}')
    a(f's_lshl_b32 {s(sT3)}, {s(sZ2)}, 5')
    a(f's_add_u32 {s(sT3)}, {s(sT3)}, {s(sA2)}')
    a(f's_and_b32 {s(sT0)}, {s(sTyp)}, {s(sT0)}')
    a(f's_cselect_b32 {s(sT2)}, {s(sT3)}, {s(sT2)}')
    a(f's_movk_i32 {s(sWstr)}, 6144')
    a(f's_cselect_b32 {s(sWstr)}, 7168, {s(sWstr)}')
    a('v_lshrrev_b32 v5, 1, v7')
    a('v_and_b32 v7, 1, v2')
    a('v_xor_b32 v5, v5, v7')
    a('v_and_b32 v7, 1, v1')
    a(f'v_mul_lo_u32 v6, v6, {s(sWstr)}')
    a('v_lshl_add_u32 v6, v7, 4, v6')
    a(f's_and_b32 {s(sT3)}, {s(sWave)}, 1')
    a(f's_lshl_b32 {s(sT3)}, {s(sT3)}, 4')
    a(f's_mul_i32 {s(sT3)}, {s(sT3)}, {s(sWstr)}')
    a(f's_add_u32 {s(sT2)}, {s(sT2)}, {s(sT3)}')
    for j in range(2):
        a(f'v_xor_b32 v7, {2 * j}, v5')
        a(f'v_lshl_add_u32 v7, v7, 5, v6')
        if j:
            a(f's_lshl_b32 {s(sT3)}, {s(sWstr)}, 3')
            a(f's_add_u32 {s(sT2)}, {s(sT2)}, {s(sT3)}')
            a(f's_sub_u32 {s(sT2)}, {s(sT2)}, 1024')
        a(f'v_add_u32 {v(vWV + j)}, {s(sT2)}, v7')
    a('s_branch K1_setup_w_done')
    a.label('K1_setup_z3')
    a(f's_mov_b32 {s(sWstr)}, 7168')
    a(f's_mov_b32 {s(sT0)}, 1')
    a('v_bfe_u32 v5, v1, 1, 3')
    a('v_xor_b32 v5, v5, v2')
    a(f's_and_b32 {s(sT3)}, {s(sWave)}, 1')
    a(f's_lshl_b32 {s(sT3)}, {s(sT3)}, 2')
    a(f'v_xor_b32 v5, {s(sT3)}, v5')
    a('v_and_b32 v6, 1, v1')
    a('v_mul_u32_u24 v7, 7168, v2')
    a('v_lshl_add_u32 v7, v6, 4, v7')
    a(f's_mul_i32 {s(sT3)}, {s(sW3)}, {8 * 7168}')
    a(f's_add_u32 {s(sT2)}, {s(sA2)}, {s(sT3)}')
    a(f's_sub_u32 {s(sT3)}, {s(sP1)}, 2')
    a(f's_sub_u32 {s(sT1)}, {s(sS)}, 4')
    a(f'v_mov_b32 {v(vT + 1)}, {s(sP0)}')
    a(f'v_mov_b32 {v(vT + 2)}, {s(sT3)}')
    a('v_cmp_lt_u32 vcc, 1, v5')
    a(f'v_cndmask_b32 {v(vT + 1)}, {v(vT + 1)}, {v(vT + 2)}, vcc')
    a(f'v_mov_b32 {v(vT + 2)}, {s(sT1)}')
    a('v_cmp_lt_u32 vcc, 3, v5')
    a(f'v_cndmask_b32 {v(vT + 1)}, {v(vT + 1)}, {v(vT + 2)}, vcc')
    a(f'v_add_u32 {v(vT + 1)}, {v(vT + 1)}, v5')
    a(f'v_lshl_add_u32 {v(vT + 1)}, {v(vT + 1)}, 5, v7')
    a(f'v_add_u32 {v(vT + 1)}, {s(sT2)}, {v(vT + 1)}')
    a(f'v_mov_b32 {v(vT + 2)}, 0x40000000')
    a('v_cmp_lt_u32 vcc, 4, v5')
    a(f'v_cndmask_b32 {v(vWV)}, {v(vT + 1)}, {v(vT + 2)}, vcc')
    a(f'v_add_u32 {v(vWV + 1)}, {4 * 7168 - 1024}, {v(vWV)}')
    a.label('K1_setup_w_done')
    a(f's_lshl_b32 {s(sWstep)}, {s(sWstr)}, 5')
    a('v_lshlrev_b32 v5, 3, v2')
    a('s_waitcnt lgkmcnt(0)')
    srd(a, S_X, 4, 2048 * 1024 * 2)
    srd(a, S_W, 6, 1024 * 3072 * 2)
    a(f's_cmp_eq_u32 {s(sT0)}, 1')
    a(f's_cselect_b32 {s(S_W)}, s12, {s(S_W)}')
    a(f's_cselect_b32 {s(S_W + 1)}, s13, {s(S_W + 1)}')
    a(f's_cselect_b32 {s(S_W + 2)}, {1024 * 3584 * 2}, {s(S_W + 2)}')
    a(f's_and_b32 {s(S_W + 1)}, {s(S_W + 1)}, 0xffff')
    stamp(a, 11)
    for x in k1_dma_w(0) + k1_dma_x(0) + k1_dma_x(1):
        a(x)
    srd(a, S_B1, 14, 3584 * 2)
    srd(a, S_B1Z, 14, 3584 * 2)
    a(f's_cmp_eq_u32 {s(sTyp)}, 0')
    a(f's_cselect_b32 {s(S_B1Z + 2)}, 0, {s(S_B1Z + 2)}')
    BI = 36
    a(f's_lshl_b32 {s(sT3)}, {s(sGrp)}, 1')
    a(f's_add_u32 {s(sT3)}, {s(sT3)}, {s(sZ2)}')
    a(f's_lshl_b32 {s(sT3)}, {s(sT3)}, 5')
    a(f's_add_u32 {s(sT3)}, {s(sT3)}, {s(sA2)}')
    a(f'buffer_load_dwordx2 {v(BI, 2)}, v5, {s(S_B1Z, 4)}, {s(sT3)} offen')
    a(f'buffer_load_dwordx2 {v(BI + 2, 2)}, v5, {s(S_B1Z, 4)}, {s(sT3)} offen offset:32')
    a(f's_cmp_eq_u32 {s(sGrp)}, 0')
    a(f's_cselect_b32 {s(sT3)}, {s(sP0)}, {s(sP1)}')
    a(f's_lshl_b32 {s(sT3)}, {s(sT3)}, 5')
    a(f's_add_u32 {s(sT3)}, {s(sT3)}, {s(sA2)}')
    a(f'buffer_load_dwordx2 {v(BI + 4, 2)}, v5, {s(S_B1, 4)}, {s(sT3)} offen')
    a(f'buffer_load_dwordx2 {v(BI + 6, 2)}, v5, {s(S_B1, 4)}, {s(sT3)} offen offset:32')
    a(f's_lshl_b32 {s(sT3)}, {s(sS)}, 5')
    a(f's_add_u32 {s(sT3)}, {s(sT3)}, {s(sA2)}')
    a(f'buffer_load_dwordx2 {v(BI + 8, 2)}, v5, {s(S_B1, 4)}, {s(sT3)} offen')
    srd(a, S_WS, 24, WS_SIZE)
    srd(a, S_DBG, 22, 256)
    a(f's_lshl_b32 {s(sT3)}, s2, 3')
    a(f's_add_u32 {s(sT3)}, {s(sT3)}, {s(sWave)}')
    a(f's_cmp_lg_u32 {s(sT3)}, 7')
    a('s_cbranch_scc1 K1_noep')
    a(f's_mov_b32 {s(sT3)}, {EP_OFF}')
    a(f'buffer_load_dword {v(vNon)}, off, {s(S_WS, 4)}, {s(sT3)} sc1')
    a.label('K1_noep')
    if OPT['probar']:
        a('s_barrier')
    if not OPT['late2']:
        for x in k1_dma_w(1) + k1_dma_w(2) + k1_dma_x(0) + k1_dma_x(1):
            a(x)
    stamp(a, 12)
    srd(a, S_G, 18, 2048)
    a(f'v_lshlrev_b32 {v(vL16)}, 4, v1')
    a(f's_lshl_b32 {s(sRole)}, {s(sI)}, 5')
    a(f's_add_u32 {s(sRole)}, {s(sRole)}, {s(sC)}')
    a(f's_lshl_b32 {s(sFW)}, {s(sRole)}, 7')
    a(f's_add_u32 {s(sFW)}, {s(sFW)}, {F_WG}')
    a(f's_lshl_b32 {s(sT2)}, {s(sRole)}, 3')
    a(f's_add_u32 {s(sT2)}, {s(sT2)}, {s(sWave)}')
    if OPT['map8']:
        a(f's_bfe_u32 {s(s2Kq)}, s2, 0x20001')
        a(f's_bfe_u32 {s(s2Cb)}, s2, 0x10007')
        a(f's_lshl_b32 {s(s2Cb)}, {s(s2Cb)}, 1')
        a(f's_bfe_u32 {s(sT0)}, s2, 0x10005')
        a(f's_or_b32 {s(s2Cb)}, {s(s2Cb)}, {s(sT0)}')
        a(f's_lshl_b32 {s(s2Cb)}, {s(s2Cb)}, 1')
        a(f's_bfe_u32 {s(sT0)}, s2, 0x10006')
        a(f's_or_b32 {s(s2Cb)}, {s(s2Cb)}, {s(sT0)}')
        a(f's_and_b32 {s(sRole)}, s2, 1')
        a(f's_lshl_b32 {s(sRole)}, {s(sRole)}, 2')
        a(f's_bfe_u32 {s(sT0)}, s2, 0x20003')
        a(f's_or_b32 {s(sRole)}, {s(sRole)}, {s(sT0)}')
        a(f's_lshl_b32 {s(sRole)}, {s(sRole)}, 2')
        a(f's_or_b32 {s(sRole)}, {s(sRole)}, {s(s2Kq)}')
        a(f's_lshl_b32 {s(sRole)}, {s(sRole)}, 3')
        a(f's_or_b32 {s(sRole)}, {s(sRole)}, {s(s2Cb)}')
    else:
        a(f's_lshr_b32 {s(s2Kq)}, {s(sC)}, 3')
        a(f's_and_b32 {s(s2Cb)}, {s(sC)}, 7')
    a(f's_lshl_b32 {s(sEoff)}, {s(sT2)}, 2')
    a(f's_add_u32 {s(sEoff)}, {s(sEoff)}, {E_OFF}')
    a(f's_lshl_b32 {s(sGoff)}, {s(sT2)}, 11')
    a(f's_lshl_b32 {s(sH)}, {s(sT)}, 1')
    a(f's_add_u32 {s(sH)}, {s(sH)}, {s(sGrp)}')
    a(f's_mov_b32 {s(sL2E)}, {LOG2E}')
    a(f's_mov_b32 {s(sC60)}, 0x42700000')
    a(f's_mov_b32 {s(sEps)}, 0x358637bd')
    a(f's_lshl_b32 {s(sA2)}, {s(sI)}, 2')
    a(f's_add_u32 {s(sA2)}, {s(sA2)}, {s(sW3)}')
    a(f's_mul_i32 {s(sA2)}, {s(sA2)}, {4 * 144}')
    a(f's_mul_i32 {s(sT2)}, {s(sT)}, 7')
    a(f's_add_u32 {s(sA2)}, {s(sA2)}, {s(sT2)}')
    a(f's_add_u32 {s(sA2)}, {s(sA2)}, 32')
    a(f's_lshl_b32 {s(sA2)}, {s(sA2)}, 10')
    a(f'v_bfe_u32 {v(vT + 3)}, v1, 2, 2')
    a(f'v_and_b32 {v(vT + 4)}, 3, v1')
    a(f'v_lshl_add_u32 v5, v2, 3, {v(vT + 3)}')
    a(f'v_lshrrev_b32 v6, 1, {v(vT + 3)}')
    a('v_and_b32 v7, 1, v2')
    a('v_lshl_or_b32 v6, v7, 1, v6')
    a(f's_lshl_b32 {s(sT2)}, {s(sGrp)}, 1')
    for q in range(2):
        a(f's_add_u32 {s(sT3)}, {s(sT2)}, {q}')
        a(f'v_xor_b32 {v(vT)}, {s(sT3)}, v6')
        a(f'v_lshlrev_b32 {v(vT)}, 5, {v(vT)}')
        a(f'v_lshl_add_u32 {v(vT)}, v5, 7, {v(vT)}')
        a(f'v_lshl_add_u32 {v(vWZ12 + q)}, {v(vT + 4)}, 3, {v(vT)}')
    a(f'v_lshl_or_b32 v6, v7, 2, {v(vT + 3)}')
    for q in range(3):
        if q < 2:
            a(f's_add_u32 {s(sT3)}, {s(sT2)}, {q}')
        else:
            a(f's_mov_b32 {s(sT3)}, 4')
        a(f'v_xor_b32 {v(vT)}, {s(sT3)}, v6')
        a(f'v_lshlrev_b32 {v(vT)}, 5, {v(vT)}')
        a(f'v_lshl_add_u32 {v(vT)}, v5, 8, {v(vT)}')
        a(f'v_lshl_add_u32 {v(vT)}, {v(vT + 4)}, 3, {v(vT)}')
        a(f'v_add_u32 {v(vWZ3 + q)}, 8192, {v(vT)}')
    a('v_and_b32 v5, 15, v1')
    a('v_bfe_u32 v6, v1, 1, 3')
    a('v_xor_b32 v6, v6, v2')
    a(f's_lshl_b32 {s(sT3)}, {s(sW3)}, 13')
    a(f's_add_u32 {s(sT3)}, {s(sT3)}, 65536')
    a('v_lshlrev_b32 v5, 7, v5')
    a('v_lshl_add_u32 v5, v6, 4, v5')
    a(f'v_add_u32 {v(vXA0c)}, {s(sT3)}, v5')
    a(f'v_xor_b32 {v(vXA1c)}, 64, {v(vXA0c)}')
    a(f'v_mov_b32 {v(vXA0)}, {v(vXA0c)}')
    a(f'v_mov_b32 {v(vXA1)}, {v(vXA1c)}')
    a(f's_mov_b32 {s(sXR)}, 0')
    a('s_and_b32 s9, s9, 0xffff')
    pf_setup(a)
    a('v_and_b32 v5, 1, v1')
    a('v_lshlrev_b32 v5, 4, v5')
    a('v_lshl_add_u32 v5, v2, 11, v5')
    a(f's_lshl_b32 {s(sT3)}, {s(sWave)}, 13')
    a(f's_lshl_b32 {s(sT0)}, {s(s2Cb)}, 8')
    a(f's_add_u32 {s(sT3)}, {s(sT3)}, {s(sT0)}')
    a(f's_and_b32 {s(sT0)}, {s(sWave)}, 1')
    a(f's_lshl_b32 {s(sT0)}, {s(sT0)}, 2')
    a(f'v_xor_b32 v7, {s(sT0)}, v6')
    a('v_lshl_add_u32 v7, v7, 5, v5')
    a(f'v_add_u32 {v(vBV)}, {s(sT3)}, v7')
    a(f's_lshl_b32 {s(sM2)}, {s(sWave)}, 10')
    for n in range(2):
        for r in range(0, 16, 2):
            a(f'v_pk_mov_b32 {v(acc(n, 0) + r, 2)}, 0, 0')
    if OPT['late2']:
        for x in k1_dma_w(1) + k1_dma_w(2) + k1_dma_x(0) + k1_dma_x(1):
            a(x)
    stamp(a, 1)
    a('s_waitcnt vmcnt(8)')
    for n in range(2, 7):
        b = BI + (n - 2) * 2
        r0 = acc(n, 0)
        a(f'v_lshlrev_b32 {v(r0)}, 16, {v(b)}')
        a(f'v_and_b32 {v(r0 + 1)}, 0xffff0000, {v(b)}')
        a(f'v_lshlrev_b32 {v(r0 + 2)}, 16, {v(b + 1)}')
        a(f'v_and_b32 {v(r0 + 3)}, 0xffff0000, {v(b + 1)}')
        for m in range(1, 4):
            for h in (0, 2):
                a(f'v_pk_mov_b32 {v(acc(n, m) + h, 2)}, {v(r0 + h, 2)}, {v(r0 + h, 2)} op_sel:[0,1]')
    a(f's_lshl_b32 {s(sT2)}, s2, 3')
    a(f's_add_u32 {s(sT2)}, {s(sT2)}, {s(sWave)}')
    a(f's_cmp_lg_u32 {s(sT2)}, 7')
    a('s_cbranch_scc1 K1_nopub')
    a(f'v_add_u32 {v(vNon)}, 1, {v(vNon)}')
    a(f'v_or_b32 {v(vNon)}, 0x80000000, {v(vNon)}')
    a(f's_mov_b32 {s(sT3)}, {EP_OFF}')
    a(f'buffer_store_dword {v(vNon)}, off, {s(S_DBG, 4)}, 0 sc1')
    a(f'buffer_store_dword {v(vNon)}, off, {s(S_WS, 4)}, {s(sT3)} sc1')
    a('s_waitcnt vmcnt(0)')
    a.label('K1_nopub')
    srd(a, S2_B, 16, 3584 * 1024 * 2)
    a(f's_mul_i32 {s(s2Boff)}, {s(s2Kq)}, {28 * 65536}')
    a(f's_mul_i32 {s(s2Ba)}, {s(s2Kq)}, {8 * 65536}')
    a(f's_lshl_b32 {s(sT2)}, {s(sTyp)}, 1')
    a(f's_add_u32 {s(sT2)}, {s(sT2)}, {s(sGrp)}')
    a(f's_cmp_eq_u32 {s(sT2)}, 1')
    a('s_cbranch_scc1 K1_v01')
    a(f's_cmp_eq_u32 {s(sT2)}, 2')
    a('s_cbranch_scc1 K1_v10')
    a(f's_cmp_eq_u32 {s(sT2)}, 3')
    a('s_cbranch_scc1 K1_v11')
    for typ in range(2):
        for grp in range(2):
            L = f'K1_v{typ}{grp}'
            a.label(L)
            if OPT['yprio'] and grp == 1:
                a('s_setprio 1')
            stamp(a, 2)
            a('s_barrier')
            stamp(a, 3)
            for x in k1_reads(grp, 0, 0, 0):
                a(x)
            a(f's_mov_b32 {s(sCnt)}, 1')
            a('s_waitcnt vmcnt(6) lgkmcnt(0)')
            a('s_barrier')
            stamp(a, 4)
            k1_substep(a, grp, typ, 0, dma=False, vm=8,
                       extra=group_dma(k1_dma_w(3) + k1_dma_x(0) + k1_dma_w(0) + k1_dma_x(1)))
            for b in range(1, 4):
                k1_substep(a, grp, typ, b, vm=8)
            a.label(L + '_loop')
            if OPT['stamp']:
                a('s_memtime s[26:27]')
                a(f's_add_u32 m0, {s(sCnt)}, 20')
                a('s_waitcnt lgkmcnt(0)')
                a(f'v_writelane_b32 v{vSt}, s26, m0')
            pf = OPT['b2pf']
            for b in range(4):
                k1_substep(a, grp, typ, b, extra=b2_touch() if pf else None, vm=8)
            a(f's_add_u32 {s(sCnt)}, {s(sCnt)}, 1')
            a(f's_cmp_lt_u32 {s(sCnt)}, 7')
            a(f's_cbranch_scc1 {L}_loop')
            stamp(a, 5)
            nl = [[f'buffer_load_dword {v(vNon)}, off, {s(S_DBG, 4)}, 0 sc1']]
            gl = [[f'buffer_load_dwordx4 {v(vE, 4)}, {v(vL16)}, {s(S_X, 4)}, {s(sGoff)} offen'],
                  [f'buffer_load_dwordx4 {v(vE + 4, 4)}, {v(vL16)}, {s(S_X, 4)}, {s(sGoff)} offen offset:1024'],
                  [f'buffer_load_dwordx4 {v(vE + 8, 4)}, {v(vL16)}, {s(S_G, 4)}, 0 offen'],
                  [f'buffer_load_dwordx4 {v(vE + 12, 4)}, {v(vL16)}, {s(S_G, 4)}, 0 offen offset:1024']]
            if OPT['fwarm']:
                fw = [f's_lshl_b32 {s(sT2)}, {s(sRole)}, 3',
                      f's_add_u32 {s(sT2)}, {s(sT2)}, {s(sWave)}',
                      f's_lshl_b32 {s(sT2)}, {s(sT2)}, 7',
                      f's_add_u32 {s(sT2)}, {s(sT2)}, {F_X}',
                      f's_lshl_b32 {s(sT3)}, {s(sT)}, 7',
                      f's_add_u32 {s(sT3)}, {s(sT3)}, {F_KV}',
                      f'v_mov_b32 v6, {s(sT3)}',
                      f'v_writelane_b32 v6, {s(sT2)}, 0',
                      f'v_writelane_b32 v6, {s(sFW)}, 1',
                      f'v_writelane_b32 v6, {s(sEoff)}, 2',
                      f'buffer_load_dword v3, v6, {s(S_WS, 4)}, 0 offen sc1']
                nl = nl + [fw]
            k1_substep(a, grp, typ, 0, dma=False, vm=9 + (1 if OPT['fwarm'] else 0), extra=gl + nl)
            k1_substep(a, grp, typ, 1, dma=False, vm=0)
            k1_substep(a, grp, typ, 2, dma=False, vm=63, fill=gate_code())
            bd = []
            for j in range(14):
                bd += k2_dma_b(j)
            un = group_dma(bd)
            if OPT['lateb']:
                LATE[:] = un[4:]
                un = un[:4]
            else:
                un = [un[2 * q] + un[2 * q + 1] for q in range(7)]
            k1_substep(a, grp, typ, 3, dma=False, reads=False, last=True, extra=un)
            stamp(a, 6)
            if OPT['eprio']:
                a(f's_setprio {OPT["eprio"]}')
            if typ == 0:
                k1_epilogue_A(a, grp, L)
            else:
                k1_epilogue_B(a, grp, L)
            late(a, 99)
            a('s_branch P2_start')
    a.label('P2_start')
    if OPT['eprio']:
        a('s_setprio 0')
    stamp(a, 9)
    get_nonce(a, 'P2n')
    a(f's_and_b32 {s(sT0)}, {s(sRole)}, 0xf8')
    a(f's_lshl_b32 {s(sT0)}, {s(sT0)}, 7')
    a(f's_add_u32 {s(sT0)}, {s(sT0)}, {F_WG}')
    a('v_and_b32 v5, 3, v1')
    a('v_lshlrev_b32 v5, 8, v5')
    a(f'v_add_u32 {v(vF3)}, {s(sT0)}, v5')
    a(f'v_add_u32 {v(vFa)}, 128, {v(vF3)}')
    a(f'v_add_u32 {v(vOFa)}, 4, {v(vFa)}')
    a(f's_lshr_b32 {s(sI)}, {s(sRole)}, 5')
    a(f's_lshl_b32 {s(sT0)}, {s(sI)}, 12')
    a(f's_add_u32 {s(sT0)}, {s(sT0)}, {F_WG}')
    a('v_lshlrev_b32 v5, 7, v1')
    a(f'v_add_u32 v6, {s(sT0)}, v5')
    a('v_cmp_gt_u32 vcc, 32, v1')
    a(f'v_cndmask_b32 {v(vOFa)}, {v(vOFa)}, v6, vcc')
    a(f's_lshl_b32 {s(sT2)}, {s(sI)}, 4')
    a(f's_lshl_b32 {s(sT3)}, {s(sWave)}, 1')
    a(f's_add_u32 {s(sT2)}, {s(sT2)}, {s(sT3)}')
    a(f's_and_b32 {s(sT3)}, {s(s2Kq)}, 1')
    a(f's_add_u32 {s(sT3)}, {s(sT2)}, {s(sT3)}')
    a(f's_mul_i32 {s(sT0)}, {s(sT3)}, {144 * 1024}')
    a(f'v_add_u32 {v(k2AV)}, {s(sT0)}, {v(vL16)}')
    a(f's_xor_b32 {s(sT1)}, {s(sT3)}, 1')
    a(f's_mul_i32 {s(sT0)}, {s(sT1)}, {144 * 1024}')
    a(f'v_add_u32 {v(k2AV + 1)}, {s(sT0)}, {v(vL16)}')
    a('v_and_b32 v5, 15, v1')
    a('v_lshlrev_b32 v5, 2, v5')
    for m, sr in ((0, sT3), (1, sT1)):
        a(f's_lshl_b32 {s(sT0)}, {s(sr)}, 6')
        a(f's_add_u32 {s(sT0)}, {s(sT0)}, {E_OFF}')
        a(f'v_add_u32 {v(k2E + m)}, {s(sT0)}, v5')
    a(f's_lshl_b32 {s(sEoff)}, {s(sT3)}, 4')
    a(f's_mul_i32 {s(s2Aoff)}, {s(s2Kq)}, {28 * 1024}')
    a(f's_add_u32 {s(s2Aoff)}, {s(s2Aoff)}, {32 * 1024}')
    a(f's_lshl_b32 {s(s2Aa)}, {s(s2Kq)}, 13')
    a(f's_lshl_b32 {s(sT0)}, {s(sT)}, 7')
    a(f's_add_u32 {s(sT0)}, {s(sT0)}, {F_KV}')
    a(f'v_add_u32 {v(vKa)}, {s(sT0)}, v5')
    def noncrit(tag):
        a(f'v_bfe_u32 v3, v1, 2, 2')
        a(f'v_lshl_add_u32 v5, v2, 2, v3')
        a('v_and_b32 v6, 7, v5')
        a(f's_lshr_b32 {s(sT2)}, {s(s2Kq)}, 1')
        a(f's_lshl_b32 {s(sT2)}, {s(sT2)}, 2')
        a(f'v_xor_b32 v6, {s(sT2)}, v6')
        a('v_lshlrev_b32 v5, 8, v5')
        a('v_and_b32 v3, 3, v1')
        a('v_lshl_add_u32 v5, v3, 3, v5')
        for n in range(8):
            a(f'v_xor_b32 v7, {n}, v6')
            a(f'v_lshl_add_u32 {v(k2RA + n)}, v7, 5, v5')
            a(f'v_add_u32 {v(k2RA + 8 + n)}, 65536, {v(k2RA + n)}')
            a(f'v_add_u32 {v(k2RA + 16 + n)}, 131072, {v(k2RA + n)}')
        srd(a, S2_OUT, 20, 2048 * 1024 * 2)
        srd(a, S2_WO, 8, 1024 * 2048)
        srd(a, S2_KV, 24, WS_SIZE)
        a(f's_cmp_ge_u32 {s(sWave)}, 6')
        a(f's_cselect_b32 {s(S2_KV + 2)}, 0, {s(S2_KV + 2)}')
        a(f's_mul_i32 {s(sKVo)}, {s(sT)}, {2 * 49152}')
        a(f's_add_u32 {s(sKVo)}, {s(sKVo)}, {KVP_OFF}')
        a(f's_lshl_b32 {s(sT3)}, {s(sWave)}, 11')
        a(f's_add_u32 {s(sKVo)}, {s(sKVo)}, {s(sT3)}')
        a(f's_cmp_ge_u32 {s(sWave)}, 3')
        a(f's_cselect_b32 {s(sT3)}, {49152 - 6144}, 0')
        a(f's_add_u32 {s(sKVo)}, {s(sKVo)}, {s(sT3)}')
        a(f's_cmp_eq_u32 {s(sTyp)}, 0')
        a('s_cbranch_scc1 P2_noq' + tag)
        for n in range(2):
            for m in range(4):
                phi4(a, acc(n, m), CH + (m & 1) * 4)
        for m in range(4):
            for n in range(2):
                cvt4(a, PQ + m * 4 + 2 * n, acc(n, m))
        a.label('P2_noq' + tag)


    a(f's_cmp_eq_u32 {s(sGrp)}, 1')
    a('s_cbranch_scc1 P2_g1skip')
    a(f's_cmp_eq_u32 {s(sTyp)}, 0')
    a('s_cbranch_scc1 P2_nobA')
    a('s_waitcnt vmcnt(6)')
    a('s_barrier')
    a(f's_cmp_lg_u32 {s(sWave)}, 3')
    a('s_cbranch_scc1 P2_nobA')
    a(f'buffer_store_dword {v(vNon)}, off, {s(S_WS, 4)}, {s(sFW)} offset:8 sc1')
    a.label('P2_nobA')
    stamp(a, 8)
    noncrit('a')
    a(f's_cmp_lg_u32 {s(sWave)}, 3')
    a('s_cbranch_scc1 P2_g1skip')
    a(f'v_add_u32 {v(k2T)}, 8, {v(vFa)}')
    a(f'v_mov_b32 {v(vFv)}, 0')
    flag_check(a, 'P2c1', vFv, k2T, sleep=0)
    a.label('P2_g1skip')
    a('s_waitcnt vmcnt(0)')
    a('s_barrier')
    stamp(a, 10)
    a(f's_cmp_lg_u32 {s(sWave)}, 3')
    a('s_cbranch_scc1 P2_noflag')
    a(f'buffer_store_dword {v(vNon)}, off, {s(S_WS, 4)}, {s(sFW)} sc1')
    a.label('P2_noflag')
    stamp(a, 13)
    vmc, vmb, vm7 = VM(), VM(), VM()

    def emit(lst, tag, only=None):
        for x in lst:
            a(x)
            if x.startswith('buffer_'):
                if only is None:
                    for t in (vmc, vmb, vm7):
                        t.issue(tag)
                else:
                    only.issue(tag)
    for j in range(3):
        emit(k2_load_a(j), f'A{j}')
    if not OPT['g1mid']:
        a(f's_cmp_eq_u32 {s(sGrp)}, 0')
        a('s_cbranch_scc1 P2_g0skip2')
        noncrit('b')
        a.label('P2_g0skip2')
    for x in k2_reads(0, 0):
        a(x)

    def bblock(j):
        L = f'P2b{j}'
        if j == 0:
            a(f's_cmp_eq_u32 {s(sTyp)}, 0')
            a(f's_cbranch_scc1 {L}')
            emit([f'buffer_load_dword {v(vFv)}, {v(vKa)}, {s(S_WS, 4)}, 0 offen sc1'], 'kvf', vmb)
            a.label(L)
        if j in (2, 4, 6, 8, 10):
            c = j // 2 - 1
            a(f's_cmp_eq_u32 {s(sTyp)}, 0')
            a(f's_cbranch_scc1 {L}')
            if c == 0:
                a(f's_waitcnt vmcnt({vmb.count("kvf")})')
                flag_check(a, 'P2kv', vFv, vKa)
            if c > 0:
                a(f's_waitcnt vmcnt({vmb.count(f"C{c - 1}")})')
                for q in range(4):
                    if c == 1:
                        a(f'v_pk_add_f32 {v(SUM + q * 2, 2)}, {v(CH + q * 2, 2)}, {v(CH + 8 + q * 2, 2)}')
                    else:
                        a(f'v_pk_add_f32 {v(SUM + q * 2, 2)}, {v(SUM + q * 2, 2)}, {v(CH + q * 2, 2)}')
                        a(f'v_pk_add_f32 {v(SUM + q * 2, 2)}, {v(SUM + q * 2, 2)}, {v(CH + 8 + q * 2, 2)}')
            if c < 4:
                for i in range(2):
                    a(f's_add_u32 {s(sT2)}, {s(sKVo)}, {(2 * c + i) * 6144}')
                    emit([f'buffer_load_dwordx4 {v(CH + (i * 2 + hh) * 4, 4)}, {v(vL16)}, {s(S2_KV, 4)}, {s(sT2)} offen offset:{hh * 1024} sc1'
                          for hh in range(2)], f'C{c}', vmb)
            else:
                for q in range(4):
                    a(f'v_cvt_pk_bf16_f32 {v(CH + q)}, {v(SUM + 2 * q)}, {v(SUM + 2 * q + 1)}')
                a(f's_lshl_b32 {s(sT3)}, {s(sWave)}, 10')
                a(f's_add_u32 {s(sT3)}, {s(sT3)}, {KFL}')
                a(f'v_add_u32 {v(k2T)}, {s(sT3)}, {v(vL16)}')
                a(f'ds_write_b128 {v(k2T)}, {v(CH, 4)}')
            a.label(L)
        if j == 12:
            a(f's_cmp_eq_u32 {s(sTyp)}, 0')
            a(f's_cbranch_scc1 {L}')
            a(f's_mul_i32 {s(sT3)}, {s(sGrp)}, 3072')
            a(f's_add_u32 {s(sT3)}, {s(sT3)}, {KFL}')
            a(f'v_add_u32 {v(k2T)}, {s(sT3)}, {v(vL16)}')
            for f in range(3):
                a(f'ds_read_b128 {v(KF + f * 4, 4)}, {v(k2T)} offset:{f * 1024}')
            a(f's_mul_i32 {s(sKVo)}, {s(sT)}, 7')
            a(f's_add_u32 {s(sKVo)}, {s(sKVo)}, 32')
            a(f's_sub_u32 {s(sKVo)}, {s(sH)}, {s(sKVo)}')
            a(f's_lshl_b32 {s(sKVo)}, {s(sKVo)}, 10')
            a(f's_add_u32 {s(sKVo)}, {s(sKVo)}, {s(sA2)}')
            a.label(L)
        if j in (13, 14, 15, 16):
            m = j - 13
            a(f's_cmp_eq_u32 {s(sTyp)}, 0')
            a(f's_cbranch_scc1 {L}')
            for b in (2, 0, 1):
                a(f'v_mfma_f32_16x16x32_bf16 {v(NUM + b * 4, 4)}, {v(KF + b * 4, 4)}, {v(PQ + m * 4, 4)}, 0')
            dn = NUM + 8
            a(f'v_add_f32 {v(dn)}, {s(sEps)}, {v(dn)}')
            a(f'v_rcp_f32 {v(dn)}, {v(dn)}')
            for b in range(2):
                r = NUM + b * 4
                for h in (0, 2):
                    a(f'v_pk_mul_f32 {v(r + h, 2)}, {v(r + h, 2)}, {v(dn, 2)} op_sel_hi:[1,0]')
                cvt4(a, OOUT + 2 * b, r)
            emit([f'buffer_store_dwordx4 {v(OOUT, 4)}, {v(vL16)}, {s(S_WS, 4)}, {s(sKVo)} offen{OPT["nta"]}'], 'O', vmb)
            a(f's_add_u32 {s(sKVo)}, {s(sKVo)}, {144 * 1024}')
            a.label(L)
        if j == 18:
            a(f's_lshl_b32 {s(sT0)}, {s(sWave)}, 1')
            a(f's_or_b32 {s(sT0)}, {s(sT0)}, {s(sTyp)}')
            a(f's_cmp_eq_u32 {s(sT0)}, 13')
            a(f's_cbranch_scc0 {L}')
            a(f'buffer_store_dword {v(vNon)}, off, {s(S_WS, 4)}, {s(sFW)} offset:4 sc1')
            a.label(L)

    CHK = {3: (5, vFa, 'c1b'), 8: (11, vF3, 'c2'), 21: (23, vOFa, 'c3')}
    SF = OPT['sendfirst']
    for j in range(33 if SF else 36):
        cur, nxt = j & 1, (j + 1) & 1
        kind, idx = ORDER[j]
        if j == 0:
            a(f's_waitcnt vmcnt({vmc.count("A0")}) lgkmcnt(0)')
            stamp(a, 14)
        bblock(j)
        if j in CHK:
            a(f's_cmp_lg_u32 {s(sWave)}, 7')
            a(f's_cbranch_scc1 P2_nl{j}')
            emit([f'buffer_load_dword {v(vOF)}, {v(CHK[j][1])}, {s(S_WS, 4)}, 0 offen sc1'], CHK[j][2], vm7)
            a.label(f'P2_nl{j}')
        if j == 24:
            emit([f'buffer_load_dword {v(k2E + m)}, {v(k2E + m)}, {s(S_WS, 4)}, 0 offen sc1' for m in range(2)], 'E')
        if j == 28:
            a(f's_waitcnt vmcnt({vmc.count("E")})')
            for m in range(2):
                a(f'v_rcp_f32 {v(k2E + m)}, {v(k2E + m)}')
            for q in range(2):
                for h in range(4):
                    a(f'v_mul_f32 {v(k2ACC + q * 4 + h)}, {v(k2E + (q & 1))}, {v(k2ACC + q * 4 + h)}')
        A0 = k2A + (j % NA) * 8
        if kind == 'b' and idx % 14 in (2, 11):
            a(f's_bitcmp0_b32 {s(s2Kq)}, 0')
            a(f's_cbranch_scc0 K2_sp1_{j}')
            a(f'v_swap_b32 {v(A0 + 2)}, {v(A0 + 4)}')
            a(f'v_swap_b32 {v(A0 + 3)}, {v(A0 + 5)}')
            a(f's_branch K2_spd_{j}')
            a.label(f'K2_sp1_{j}')
            a(f'v_swap_b32 {v(A0)}, {v(A0 + 6)}')
            a(f'v_swap_b32 {v(A0 + 1)}, {v(A0 + 7)}')
            a.label(f'K2_spd_{j}')
            a('s_nop 1')
        units = []
        sched = {5: [], 6: [8, 9]}
        if SF:
            sched.update({30: [33, 34], 31: [35], 32: []})
        for ja in sched.get(j, [j + 3]):
            if ja < 36:
                units += [(u, f'A{ja}') for u in group_dma(k2_load_a(ja))]
        bs = {4: [], 5: [], 6: [], 7: [18, 19], 8: [20, 21]}.get(j, [j + 14 if j < 4 else j + 13])
        for jb in bs:
            if jb < 36:
                units += [(k2_dma_b(jb), f'B{jb}')]
        rd = k2_reads(nxt, (j + 1) % RING) if j < 35 else []
        if SF and j == 32:
            rd = []
            for q, st in enumerate((33, 34)):
                for n in range(4):
                    rd += k2_read1(k2BF + 32 + (q * 4 + n) * 4, st % RING, 4 + n)
        k = ui = 0
        for n in range(8):
            for m in ((0, 1) if (n % 2 == 0 or not OPT['snake'] or j == 28) else (1, 0)):
                d = v(k2acc(n, m), 4)
                if j == 28 and k + 2 < 16:
                    for h in range(4):
                        a(f'v_mul_f32 {v(k2ACC + (k + 2) * 4 + h)}, {v(k2E + (k & 1))}, {v(k2ACC + (k + 2) * 4 + h)}')
                a(f'v_mfma_f32_16x16x32_bf16 {d}, {v(k2BF + cur * 32 + n * 4, 4)}, {v(A0 + m * 4, 4)}, {d if j else "0"}')
                for _ in range(OPT['p2rd']):
                    if rd:
                        a(rd.pop(0))
                if k in OPT['p2pos'] and ui < len(units):
                    emit(units[ui][0], units[ui][1])
                    ui += 1
                k += 1
        assert ui == len(units)
        if j == 35:
            break
        for jl, (jc, va, nm) in CHK.items():
            if j == jc:
                a(f's_cmp_lg_u32 {s(sWave)}, 7')
                a(f's_cbranch_scc1 P2_nc{j}')
                a(f's_waitcnt vmcnt({vm7.count(nm)})')
                flag_check(a, 'P2' + nm, vOF, va)
                a.label(f'P2_nc{j}')
        def need(t):
            n = t.count(f'A{j + 1}')
            if SF and j == 32:
                n = min(n, t.count('A34'))
            if j % 6 == 5:
                for jb in range(j + 2, j + 8):
                    if 14 <= jb < 36:
                        n = min(n, t.count(f'B{jb}'))
                if j == 17 and t is vmb:
                    n = min(n, t.count('O'))
            return n
        nc, nb_ = need(vmc), need(vmb)
        if nc != nb_:
            a(f's_cmp_eq_u32 {s(sTyp)}, {1 if nc < nb_ else 0}')
            a(f's_cbranch_scc1 P2_w{j}')
            a(f's_waitcnt vmcnt({min(nc, nb_)})')
            a.label(f'P2_w{j}')
        a(f's_waitcnt vmcnt({max(nc, nb_)}) lgkmcnt(0)')
        if j % 6 == 5:
            a('s_barrier')
    PK = 56 if SF else 8

    def send(t, d):
        t(f's_xor_b32 {s(sT3)}, {s(sRole)}, {d << 3}')
        t(f's_mul_i32 {s(sT3)}, {s(sT3)}, 49152')
        t(f's_add_u32 {s(sT3)}, {s(sT3)}, {s(sT2)}')
        t(f's_add_u32 {s(sT3)}, {s(sT3)}, {XCH_OFF + (d - 1) * 16384}')
        m, nb = d & 1, (d >> 1) * 4
        p = PK + (d - 1) * 8
        for n in range(4):
            cvt4(t, p + n * 2, k2acc(nb + n, m))
            if n & 1:
                q = n >> 1
                t(f'buffer_store_dwordx4 {v(p + q * 4, 4)}, {v(vL16)}, {s(S_WS, 4)}, {s(sT3)} offen offset:{q * 1024} sc1')

    def addr(a):
        a(f'v_add_f32 {v(k2E)}, 1.0, {v(k2E)}')
        a(f'v_rcp_f32 {v(k2E)}, {v(k2E)}')
        a(f's_lshl_b32 {s(sT0)}, {s(sRole)}, 3')
        a(f's_add_u32 {s(sT0)}, {s(sT0)}, {s(sWave)}')
        a(f's_lshl_b32 {s(sT0)}, {s(sT0)}, 7')
        a('v_and_b32 v5, 3, v1')
        a('v_max_u32 v5, 1, v5')
        a('v_lshlrev_b32 v5, 13, v5')
        a(f'v_xor_b32 v5, {s(sT0)}, v5')
        a(f'v_add_u32 {v(vFa)}, {F_X}, v5')
        a(f's_add_u32 {s(sT0)}, {s(sT0)}, {F_X}')
        a(f's_mul_i32 {s(sT1)}, {s(sRole)}, 49152')
        a(f's_add_u32 {s(sT1)}, {s(sT1)}, {s(sT2)}')
        a(f's_add_u32 {s(sT1)}, {s(sT1)}, {XCH_OFF}')
        a('v_and_b32 v5, 15, v1')
        a('v_and_b32 v6, 7, v1')
        a('v_lshrrev_b32 v7, 1, v2')
        a('v_xor_b32 v6, v6, v7')
        a('v_lshlrev_b32 v5, 7, v5')
        a('v_and_b32 v7, 1, v2')
        a('v_lshl_add_u32 v5, v7, 3, v5')
        a(f's_add_u32 {s(sC)}, {s(sT2)}, {KFL}')
        a(f'v_add_u32 v5, {s(sC)}, v5')
        for n in range(4):
            a(f'v_xor_b32 v7, {2 * n}, v6')
            a(f'v_lshl_add_u32 {v(k2RA + n)}, v7, 4, v5')
        a('v_lshrrev_b32 v6, 3, v1')
        a('v_and_b32 v7, 7, v1')
        a(f'v_xor_b32 {v(k2T)}, v6, v7')
        a(f'v_lshlrev_b32 {v(k2T)}, 4, {v(k2T)}')
        a(f'v_lshl_add_u32 {v(k2T)}, v6, 7, {v(k2T)}')
        a(f'v_add_u32 {v(k2T)}, {s(sC)}, {v(k2T)}')
        a('v_lshlrev_b32 v7, 4, v7')
        a('v_lshl_add_u32 v7, v6, 11, v7')
        a(f'v_mov_b32 {v(vFv)}, 0')

    a(f's_lshl_b32 {s(sT2)}, {s(sWave)}, 11')
    if SF:
        def mm(n, m, bf, st):
            d = v(k2acc(n, m), 4)
            return f'v_mfma_f32_16x16x32_bf16 {d}, {v(bf, 4)}, {v(aset(st) + m * 4, 4)}, {d}'

        def collect(fn):
            t = Asm()
            fn(t)
            return t.lines

        def run(mf, fill, per, delay=0):
            fill = list(fill)
            for k, x in enumerate(mf):
                a(x)
                if k >= delay:
                    for _ in range(per):
                        if fill:
                            a(fill.pop(0))
            for y in fill:
                a(y)
        B0, B1 = k2BF, k2BF + 32
        rd = []
        for n in range(4):
            rd += k2_read1(B0 + n * 4, 35 % RING, 4 + n)
        for n in range(4):
            rd += k2_read1(B0 + 16 + n * 4, 33 % RING, n)
        run([mm(4 + n, m, B1 + (q * 4 + n) * 4, st) for q, st in enumerate((33, 34)) for n in range(4) for m in range(2)], rd, 2)
        a(f's_waitcnt vmcnt({vmc.count("A35")}) lgkmcnt(0)')
        rd = []
        for q, st in enumerate((34, 35)):
            for n in range(4):
                rd += k2_read1(B1 + (q * 4 + n) * 4, st % RING, n)
        run([mm(4 + n, m, B0 + n * 4, 35) for n in range(4) for m in range(2)], rd, 2)

        def low(m):
            o = [mm(n, m, B0 + 16 + n * 4, 33) for n in range(4)]
            for q, st in enumerate((34, 35)):
                o += [mm(n, m, B1 + (q * 4 + n) * 4, st) for n in range(4)]
            return o
        y = low(1)
        run(y[:4], collect(lambda t: send(t, 2))[:4], 1)
        a('s_waitcnt lgkmcnt(0)')
        run(y[4:], collect(lambda t: send(t, 2))[4:] + collect(lambda t: send(t, 3)), 3)
        run(low(0), collect(lambda t: send(t, 1)) + collect(addr), 4, delay=2)
        stamp(a, 16)
    else:
        stamp(a, 16)
        for d in (1, 2, 3):
            send(a, d)
        addr(a)
    stamp(a, 17)
    a('s_waitcnt vmcnt(0)')
    a(f'buffer_store_dword {v(vNon)}, off, {s(S_WS, 4)}, {s(sT0)} sc1')
    stamp(a, 18)
    flag_check(a, 'K2x', vFv, vFa, sleep=OPT['xsleep'])
    stamp(a, 19)
    RX = 40
    for d in range(3):
        for q in range(2):
            a(f'buffer_load_dwordx4 {v(RX + d * 8 + q * 4, 4)}, {v(vL16)}, {s(S_WS, 4)}, {s(sT1)} offen offset:{q * 1024} sc1')
        if d < 2:
            a(f's_add_u32 {s(sT1)}, {s(sT1)}, 16384')
    a(f's_lshl_b32 {s(sT0)}, {s(sEoff)}, 11')
    a(f's_lshl_b32 {s(sT2)}, {s(s2Cb)}, 8')
    a(f's_add_u32 {s(sT0)}, {s(sT0)}, {s(sT2)}')
    a(f's_lshr_b32 {s(sT2)}, {s(s2Kq)}, 1')
    a(f's_lshl_b32 {s(sT2)}, {s(sT2)}, 7')
    a(f's_add_u32 {s(sT0)}, {s(sT0)}, {s(sT2)}')
    a(f's_add_u32 {s(sT2)}, {s(sT0)}, {8 * 2048}')
    UP = 64
    for d in range(3):
        a(f's_waitcnt vmcnt({4 - 2 * d})')
        for n in range(4):
            r = k2acc(n, 0)
            u = UP + (n & 1) * 4
            for h in range(2):
                src = RX + d * 8 + n * 2 + h
                a(f'v_lshlrev_b32 {v(u + 2 * h)}, 16, {v(src)}')
                a(f'v_and_b32 {v(u + 2 * h + 1)}, 0xffff0000, {v(src)}')
            for h in (0, 2):
                a(f'v_pk_add_f32 {v(r + h, 2)}, {v(r + h, 2)}, {v(u + h, 2)}')
    for n in range(4):
        r = k2acc(n, 0)
        for h in (0, 2):
            a(f'v_pk_mul_f32 {v(r + h, 2)}, {v(r + h, 2)}, {v(k2E, 2)} op_sel_hi:[1,0]')
        cvt4(a, 8 + n * 2, r)
        a(f'ds_write_b64 {v(k2RA + n)}, {v(8 + n * 2, 2)}')
    a('s_waitcnt lgkmcnt(0)')
    a(f'ds_read_b128 v[16:19], {v(k2T)}')
    a(f'ds_read_b128 v[20:23], {v(k2T)} offset:1024')
    a('s_waitcnt lgkmcnt(1)')
    a(f'buffer_store_dwordx4 v[16:19], v7, {s(S2_OUT, 4)}, {s(sT0)} offen{OPT["nto"]}')
    a('s_waitcnt lgkmcnt(0)')
    a(f'buffer_store_dwordx4 v[20:23], v7, {s(S2_OUT, 4)}, {s(sT2)} offen{OPT["nto"]}')
    if OPT['stamp']:
        a('s_waitcnt vmcnt(0)')
        stamp(a, 20)
        a(f's_lshl_b32 {s(sT0)}, s2, 3')
        a(f's_add_u32 {s(sT0)}, {s(sT0)}, {s(sWave)}')
        a(f's_lshl_b32 {s(sT0)}, {s(sT0)}, 8')
        a(f's_add_u32 {s(sT0)}, {s(sT0)}, {STAMP_OFF}')
        a('v_lshlrev_b32 v0, 2, v1')
        a(f'buffer_store_dword v{vSt}, v0, {s(S_WS, 4)}, {s(sT0)} offen')
        if OPT['dbgout']:
            a(f's_lshl_b32 {s(sT0)}, s2, 3')
            a(f's_add_u32 {s(sT0)}, {s(sT0)}, {s(sWave)}')
            a(f's_cmp_lg_u32 {s(sT0)}, {OPT["dbgout"]}')
            a('s_cbranch_scc1 K_end')
            a(f'v_readlane_b32 {s(sT1)}, v{vSt}, 32')
            for k, idx in enumerate([11, 12, 1, 3, 4, 5, 6, 7, 10, 13, 14, 16, 18, 19, 20]):
                a(f'v_readlane_b32 {s(sT2)}, v{vSt}, {32 + idx}')
                a(f's_sub_u32 {s(sT2)}, {s(sT2)}, {s(sT1)}')
                a(f'v_mov_b32 v5, {s(sT2)}')
                a(f'buffer_store_dword v5, off, {s(S_DBG, 4)}, 0 offset:{4 * (k + 1)}')
    a.label('K_end')
    a('s_endpgm')
    a.label('K_code_end')


HEADER = open('cdna_kernels/%s.s.ref' % NAME).read().split('; Override launch')[0]


def build():
    out = HEADER
    out += '; @launch grid=(256,1,1) block=(512,1,1) lds=163840\n'
    out += '.amdgcn_target "amdgcn-amd-amdhsa--gfx950"\n.text\n'
    a = Asm()
    gen(a)
    out += f'.globl {KN}\n.p2align 8\n.type {KN},@function\n'
    out += f'.set CODE_LAST, K_code_end - {KN} - 64\n'
    out += a.finalize()
    out += f'''.section .rodata,"a"
.p2align 6
.amdhsa_kernel {KN}
  .amdhsa_next_free_vgpr 256
  .amdhsa_next_free_sgpr 102
  .amdhsa_accum_offset 256
  .amdhsa_group_segment_fixed_size 0
  .amdhsa_kernarg_size 88
  .amdhsa_user_sgpr_count 2
  .amdhsa_user_sgpr_kernarg_segment_ptr 1
  .amdhsa_system_sgpr_workgroup_id_x 1
.end_amdhsa_kernel
'''
    return out


if __name__ == '__main__':
    path = sys.argv[1] if len(sys.argv) > 1 else f'cdna_kernels/{NAME}.s'
    for kv in sys.argv[2:]:
        k, val = kv.split('=', 1)
        if val in ('True', 'False'):
            val = val == 'True'
        elif val.lstrip('-').isdigit():
            val = int(val)
        elif ',' in val:
            val = tuple(int(x) for x in val.split(','))
        if k.startswith('nt'):
            val = ' ' + val.replace('_', ' ')
        OPT[k] = val
    open(path, 'w').write(build())
```

```python
import sys
from asmlib import Asm, v, s

NAME = 'gated_mix__linear_attn_block__dense_activation_mish__prompt'
KN = NAME + '_kernel'

A2_OFF = 0
E_OFF = 0x1300000
FLG_OFF = 0x1310000
F_KV = FLG_OFF
F_WG = FLG_OFF + 0x2000
F_X = 0x2500000
F_W = FLG_OFF + 0xA000
EP_OFF = FLG_OFF + 0xF000
KVP_OFF = 0x1400000
XCH_OFF = 0x1800000
STAMP_OFF = 0x3000000
WS_SIZE = 268435456
LOG2E = 0x3fb8aa3b
SPIN_MAX = 100000

OPT = dict(stamp=False, dma_every=3, b2pf=True, codepf=True, b2u=1, b2all=0, pfx=None, padto=0, cp1=True, late2=True, map8=True, fwarm=True, tlb=0, xsleep=0, sendfirst=True, snake=True, lateb=False, nta=' sc1', dbgout=0, nto=' nt', xp1='', g1mid=False, eprio=2, yprio=False, yprio2=False, nopk=False, ntw='', ntx='', ntb='', ntp='', probar=False, xp_same=False, u1=(0,0,0,1,1,2,2,2), p2pos=(3,7,10,13), xp2='', asc=' sc1', fastmish=True, p2rd=2, b0=2)

S_X, S_W, S_WS, S_DBG, S_B1, S_B1Z, S_G, S_PF = 28, 32, 36, 40, 44, 48, 52, 88
S2_B, S2_OUT, S2_AL = 44, 48, 52
sI, sT, sTyp, sWave, sW3, sGrp = 56, 57, 58, 59, 60, 61
sP0, sP1, sS, sZ2 = 62, 63, 64, 65
sWstr, sWoff, sWstep = 66, 67, 68
sXK, sXD, sXR, sCnt = 69, 70, 71, 72
sT0, sT1, sT2, sT3 = 73, 74, 75, 76
sM0W, sM0X = 77, 78
sC, sL2E = 79, 80
sH, sNon = 82, 83
sPFo = 84
sPFu, sPFu1, sPFnr = 3, 10, 11
sPF2b, sPF2nr, sPF2o = 14, 4, 5
sC60, sEps, sEoff = 85, 86, 87
sA2 = 92
s2Cb, s2Kq = 94, 95
s2Aoff, s2Boff, sGoff, sKVo, sFW = 96, 97, 98, 99, 100
sM2, sRole = 101, 93
s2Asw = 81
s2Aa, s2Ba = 18, 19
vOF = 111
vOFa = 112
vSt = 4
WF, XF = 8, 64
vXA0c, vXA1c, vXA0, vXA1 = 96, 97, 98, 99
vWZ12, vWZ3 = 100, 102
vXV, vWV = 105, 107
vPF = 109
vNon = 110
vL16 = 113
vBV = 114
vT = 116
ACC = 128
vE = 240
RING = 18
NA = 4
k2A = 8
PQ = 40
CH = 56
SUM = 72
KF, NUM, OOUT = 56, 68, 116
k2RA = 80
k2AV = 104
k2E = 106
vFa, vFv, vKa, vF3 = 120, 121, 122, 123
k2T = 124
k2ACC = 128
k2BF = 192
S2_WO = 88
S2_KV = 28


class VM:
    def __init__(self):
        self.ops = []

    def issue(self, tag):
        self.ops.append(tag)

    def count(self, tag):
        idx = max(i for i, t in enumerate(self.ops) if t == tag)
        return min(63, len(self.ops) - 1 - idx)


def stamp(a, idx):
    if not OPT['stamp']:
        return
    a('s_memtime s[26:27]')
    a('s_waitcnt lgkmcnt(0)')
    a(f'v_writelane_b32 v{vSt}, s26, {idx}')
    a('s_memrealtime s[26:27]')
    a('s_waitcnt lgkmcnt(0)')
    a(f'v_writelane_b32 v{vSt}, s26, {idx + 32}')


def srd(a, base, ptr, nbytes):
    a(f's_mov_b32 {s(base)}, {s(ptr)}')
    a(f's_and_b32 {s(base+1)}, {s(ptr+1)}, 0xffff')
    a(f's_mov_b32 {s(base+2)}, {nbytes}')
    a(f's_mov_b32 {s(base+3)}, 0x00020000')


def acc(n, m):
    return ACC + (n * 4 + m) * 4


def wf(buf, n):
    return WF + buf * 28 + n * 4


def xf(buf, m):
    return XF + buf * 16 + m * 4


def k1_reads(grp, buf, wslot, kk):
    nt = 7 if grp == 0 else 6
    xa = vXA0 if kk == 0 else vXA1
    xs = [f'ds_read_b128 {v(xf(buf, m), 4)}, {v(xa)} offset:{m * 2048}' for m in range(4)]
    ws = []
    for n in range(nt):
        if n < 4:
            addr = vWZ12 + (n & 1)
            off = wslot * 16384 + (4096 if n >= 2 else 0)
            d2 = 512
        else:
            addr = vWZ3 + (n - 4)
            off = wslot * 16384
            d2 = 1024
        ws.append(f'ds_read_b64_tr_b16 {v(wf(buf, n), 2)}, {v(addr)} offset:{off}')
        ws.append(f'ds_read_b64_tr_b16 {v(wf(buf, n) + 2, 2)}, {v(addr)} offset:{off + d2}')
    if 'w' in OPT['xp1']:
        ws = ws[:len(ws) // 2]
    if 'W' in OPT['xp1']:
        ws = ws[:2]
    if 'X' in OPT['xp1']:
        xs = xs[:1]
    return ws[:2] + xs + ws[2:]


def k1_dma_w(slot):
    out = [f's_add_u32 m0, {s(sM0W)}, {slot * 16384}']
    for j in range(2):
        out.append(f'buffer_load_dwordx4 {v(vWV + j)}, {s(S_W, 4)}, {s(sWoff)} offen offset:{j * 1024}{OPT["ntw"]} lds')
    out.append(f's_add_u32 {s(sWoff)}, {s(sWoff)}, {s(sWstep)}')
    return out


def k1_dma_x(par):
    out = []
    if par == 0:
        out.append(f's_add_u32 {s(sXK)}, {s(sXK)}, 128')
        out.append(f's_add_u32 {s(sXD)}, {s(sXD)}, 32768')
        out.append(f's_cmp_eq_u32 {s(sXD)}, 98304')
        out.append(f's_cselect_b32 {s(sXD)}, 0, {s(sXD)}')
        out.append(f's_add_u32 m0, {s(sXD)}, {s(sM0X)}')
        so = sXK
    else:
        out.append(f's_add_u32 {s(sT0)}, {s(sXK)}, 262144')
        out.append(f's_add_u32 {s(sT1)}, {s(sXD)}, {s(sM0X)}')
        out.append(f's_add_u32 m0, {s(sT1)}, 16384')
        so = sT0
    for j in range(2):
        out.append(f'buffer_load_dwordx4 {v(vXV + j)}, {s(S_X, 4)}, {s(so)} offen offset:{j * 1024}{OPT["ntx"]} lds')
    return out


def k1_adv_xread():
    return [f's_add_u32 {s(sXR)}, {s(sXR)}, 32768',
            f's_cmp_eq_u32 {s(sXR)}, 98304',
            f's_cselect_b32 {s(sXR)}, 0, {s(sXR)}',
            f'v_add_u32 {v(vXA0)}, {s(sXR)}, {v(vXA0c)}',
            f'v_add_u32 {v(vXA1)}, {s(sXR)}, {v(vXA1c)}']


def k1_mfmas(grp, typ, buf):
    nt = 7 if grp == 0 else 6
    out = []
    for n in range(nt):
        for m in (range(4) if (n % 2 == 0 or not OPT['snake']) else range(3, -1, -1)):
            d = v(acc(n, m), 4)
            W = v(wf(buf, n), 4)
            X = v(xf(buf, m), 4)
            if typ == 0 and n < 4:
                out.append(f'v_mfma_f32_16x16x32_bf16 {d}, {X}, {W}, {d}')
            else:
                out.append(f'v_mfma_f32_16x16x32_bf16 {d}, {W}, {X}, {d}')
    return out


def group_dma(lst):
    units = []
    cur = []
    for x in lst:
        cur.append(x)
        if x.startswith('buffer_'):
            units.append(cur)
            cur = []
    if cur:
        units[-1] = units[-1] + cur
    return units


_tn = [0]


def b2_touch():
    _tn[0] += 1
    L = f'PFs{_tn[0]}'
    return [[f's_sub_u32 {s(sPFu1)}, {s(sPFu1)}, 1',
             f's_cbranch_scc0 {L}',
             f'buffer_load_dword v3, {v(vPF)}, {s(S_PF, 4)}, {s(sPFo)} offen{OPT["ntp"]}',
             f's_mov_b32 {s(sPFu1)}, {s(sPFu)}',
             f's_add_u32 {s(sPFo)}, {s(sPFo)}, 8192',
             f's_mov_b32 {s(sPFu)}, 1000',
             f'{L}:']]


def pf_setup(a):
    srd(a, S_PF, 16, 3584 * 2048)
    a(f's_mov_b32 {s(sT0)}, {896 * 128}')
    a(f'v_mul_lo_u32 {v(vPF)}, v1, {s(sT0)}')
    a(f's_lshl_b32 {s(sT2)}, {s(sWave)}, 8')
    a(f's_add_u32 {s(sT2)}, {s(sT2)}, s2')
    a(f's_lshl_b32 {s(sPFo)}, {s(sT2)}, 7')
    a(f's_lshr_b32 {s(sT0)}, s2, 3')
    a(f's_mul_i32 {s(sT0)}, {s(sT0)}, 5')
    a(f's_mul_i32 {s(sT1)}, {s(sWave)}, 9')
    a(f's_add_u32 {s(sT0)}, {s(sT0)}, {s(sT1)}')
    a(f's_and_b32 {s(sT1)}, s2, 7')
    a(f's_mul_i32 {s(sT1)}, {s(sT1)}, 3')
    a(f's_add_u32 {s(sT0)}, {s(sT0)}, {s(sT1)}')
    a(f's_mul_i32 {s(sT1)}, {s(sT0)}, 2979')
    a(f's_lshr_b32 {s(sT1)}, {s(sT1)}, 16')
    a(f's_mul_i32 {s(sT1)}, {s(sT1)}, 22')
    a(f's_sub_u32 {s(sPFnr)}, {s(sT0)}, {s(sT1)}')
    a(f's_cmp_lt_u32 {s(sT2)}, 896')
    a(f's_cselect_b32 {s(sPFu1)}, {s(sPFnr)}, 1000')
    a(f's_cmp_lg_u32 {s(sWave)}, 4')
    a('s_cbranch_scc1 PF_done')
    srd(a, S_PF, 8, 1024 * 2048)
    a(f's_mov_b32 {s(sPFu1)}, {s(sPFnr)}')
    a(f's_mov_b32 {s(sPFo)}, 0')
    a('v_mul_u32_u24 v5, 5, v1')
    a('v_add_u32 v5, s2, v5')
    a('v_and_b32 v5, 255, v5')
    a('v_lshl_add_u32 v5, v1, 8, v5')
    a(f'v_lshlrev_b32 {v(vPF)}, 7, v5')
    a.label('PF_done')
    a(f's_mov_b32 {s(sPFu)}, 1000')
    if OPT['tlb']:
        G = OPT['tlb']
        a(f's_sub_u32 {s(sT0)}, {s(sWave)}, 5')
        a(f's_cmp_gt_u32 {s(sT0)}, 1')
        a('s_cbranch_scc1 PF_notlb')
        srd(a, S_PF, 24, 0x2540000)
        a(f's_cmp_eq_u32 {s(sT0)}, 1')
        a(f's_cselect_b32 {s(S_PF)}, s20, {s(S_PF)}')
        a(f's_cselect_b32 {s(S_PF + 1)}, s21, {s(S_PF + 1)}')
        a(f's_cselect_b32 {s(S_PF + 2)}, {2048 * 2048}, {s(S_PF + 2)}')
        a(f's_and_b32 {s(S_PF + 1)}, {s(S_PF + 1)}, 0xffff')
        a(f's_lshr_b32 {s(sT0)}, s2, 3')
        a(f's_mul_i32 {s(sPFo)}, {s(sT0)}, {G}')
        a(f's_mov_b32 {s(sT1)}, {32 * G}')
        a(f'v_mul_lo_u32 {v(vPF)}, v1, {s(sT1)}')
        a(f's_mov_b32 {s(sPFu1)}, {s(sPFnr)}')
        a.label('PF_notlb')
    if OPT['pfx']:
        lo, span = OPT['pfx']
        a(f'v_lshlrev_b32 {v(vPF)}, 7, v1')
        srd(a, S_PF, 16, 3584 * 2048)
        a(f's_lshr_b32 {s(sT0)}, s2, 3')
        a(f's_mul_i32 {s(sT1)}, {s(sT0)}, 7')
        a(f's_mul_i32 {s(sT2)}, {s(s2Kq)}, 224')
        a(f's_add_u32 {s(sT1)}, {s(sT1)}, {s(sT2)}')
        a(f's_add_u32 {s(sT1)}, {s(sT1)}, {s(sWave)}')
        a(f's_lshl_b32 {s(sPFo)}, {s(sT1)}, 13')
        a(f's_mul_i32 {s(sT1)}, {s(sWave)}, 3')
        a(f's_add_u32 {s(sT1)}, {s(sT1)}, {s(sT0)}')
        a(f's_and_b32 {s(sT1)}, {s(sT1)}, {span - 1}')
        a(f's_add_u32 {s(sPFu1)}, {s(sT1)}, {lo}')
        a(f's_cmp_lg_u32 {s(sWave)}, 7')
        a('s_cbranch_scc1 PF_done2')
        srd(a, S_PF, 8, 1024 * 2048)
        a(f's_lshl_b32 {s(sT1)}, {s(sT0)}, 1')
        a(f's_lshl_b32 {s(sT2)}, {s(s2Kq)}, 6')
        a(f's_add_u32 {s(sT1)}, {s(sT1)}, {s(sT2)}')
        a(f's_lshl_b32 {s(sPFo)}, {s(sT1)}, 13')
        a(f's_lshr_b32 {s(sPFu1)}, {s(sPFu1)}, 1')
        a(f's_mov_b32 {s(sPFu)}, 3')
        a.label('PF_done2')
    if OPT['b2all']:
        a(f's_mov_b32 {s(sPFu1)}, {OPT["b2all"]}')


def k1_substep(a, grp, typ, b, dma=True, reads=True, last=False, extra=None, fill=None, vm=None):
    cur, nxt = b & 1, (b + 1) & 1
    mf = k1_mfmas(grp, typ, cur)
    pre = []
    rd = []
    if reads:
        if b & 1:
            pre += k1_adv_xread()
        rd = k1_reads(grp, nxt, (b + 1) % 4, (b + 1) & 1)
    units = []
    if dma:
        units = group_dma(k1_dma_w(b) + k1_dma_x(0 if (b & 1) else 1))
        if 'D' in OPT['xp1']:
            units = [[y for y in u if not y.startswith('buffer')] for u in units]
    if extra:
        units = units + extra
    fill = list(fill or [])
    for x in pre:
        a(x)
    ri = ui = 0
    ev = OPT['dma_every']
    ph = 0 if grp == 0 else 1
    for k, mm in enumerate(mf):
        a(mm)
        if ri < len(rd):
            a(rd[ri])
            ri += 1
        if ui < len(units) and k % ev == ph:
            for x in units[ui]:
                a(x)
            ui += 1
        for _ in range(2):
            if fill:
                a(fill.pop(0))
    assert ri == len(rd) and ui == len(units), (ri, ui, len(units))
    for x in fill:
        a(x)
    if last:
        return
    a(f's_waitcnt vmcnt({vm}) lgkmcnt(0)')
    a('s_barrier')


def mish4(a, r, t):
    T, N2, W = t, t + 4, t + 8
    late(a)
    if OPT['fastmish'] and OPT['nopk']:
        for i in range(4):
            a(f'v_mul_f32 {v(T + i)}, {s(sL2E)}, {v(r + i)}')
        for i in range(4):
            a(f'v_exp_f32 {v(T + i)}, {v(T + i)}')
        for i in range(4):
            a(f'v_fma_f32 {v(N2 + i)}, {v(T + i)}, -0.5, -1.0')
        for i in range(4):
            a(f'v_fma_f32 {v(N2 + i)}, {v(T + i)}, {v(N2 + i)}, -1.0')
        for i in range(4):
            a(f'v_rcp_f32 {v(N2 + i)}, {v(N2 + i)}')
        for i in range(4):
            a(f'v_fmac_f32 {v(r + i)}, {v(r + i)}, {v(N2 + i)}')
        return
    if OPT['fastmish']:
        for h in (0, 2):
            a(f'v_pk_mul_f32 {v(T + h, 2)}, {v(r + h, 2)}, {s(sL2E, 2)} op_sel_hi:[1,0]')
        for i in range(4):
            a(f'v_exp_f32 {v(T + i)}, {v(T + i)}')
        for h in (0, 2):
            a(f'v_pk_fma_f32 {v(N2 + h, 2)}, {v(T + h, 2)}, -0.5, -1.0 op_sel_hi:[1,0,0]')
        for h in (0, 2):
            a(f'v_pk_fma_f32 {v(N2 + h, 2)}, {v(T + h, 2)}, {v(N2 + h, 2)}, -1.0 op_sel_hi:[1,1,0]')
        for i in range(4):
            a(f'v_rcp_f32 {v(N2 + i)}, {v(N2 + i)}')
        for h in (0, 2):
            a(f'v_pk_fma_f32 {v(r + h, 2)}, {v(r + h, 2)}, {v(N2 + h, 2)}, {v(r + h, 2)}')
        return
    for h in (0, 2):
        a(f'v_pk_mul_f32 {v(T + h, 2)}, {v(r + h, 2)}, {s(sL2E, 2)} op_sel_hi:[1,0]')
    for i in range(4):
        a(f'v_min_f32 {v(T + i)}, {s(sC60)}, {v(T + i)}')
    for i in range(4):
        a(f'v_exp_f32 {v(T + i)}, {v(T + i)}')
    for h in (0, 2):
        a(f'v_pk_add_f32 {v(N2 + h, 2)}, {v(T + h, 2)}, 2.0 op_sel_hi:[1,0]')
    for h in (0, 2):
        a(f'v_pk_mul_f32 {v(W + h, 2)}, {v(T + h, 2)}, {v(N2 + h, 2)}')
    for h in (0, 2):
        a(f'v_pk_fma_f32 {v(N2 + h, 2)}, {v(T + h, 2)}, {v(N2 + h, 2)}, 2.0 op_sel_hi:[1,1,0]')
    for i in range(4):
        a(f'v_rcp_f32 {v(N2 + i)}, {v(N2 + i)}')
    for h in (0, 2):
        a(f'v_pk_mul_f32 {v(W + h, 2)}, {v(W + h, 2)}, {v(N2 + h, 2)}')
    for h in (0, 2):
        a(f'v_pk_mul_f32 {v(r + h, 2)}, {v(r + h, 2)}, {v(W + h, 2)}')


LATE = []


def late(a, n=1):
    for _ in range(n):
        if LATE:
            for y in LATE.pop(0):
                a(y)


def phi4(a, r, t):
    late(a)
    if OPT['nopk']:
        for i in range(4):
            a(f'v_mul_f32 {v(t + i)}, {s(sL2E)}, {v(r + i)}')
        for i in range(4):
            a(f'v_min_f32 {v(t + i)}, 0, {v(t + i)}')
        for i in range(4):
            a(f'v_exp_f32 {v(t + i)}, {v(t + i)}')
        for i in range(4):
            a(f'v_max_f32 {v(r + i)}, 0, {v(r + i)}')
        for i in range(4):
            a(f'v_add_f32 {v(r + i)}, {s(sEps)}, {v(r + i)}')
        for i in range(4):
            a(f'v_add_f32 {v(r + i)}, {v(r + i)}, {v(t + i)}')
        return
    for h in (0, 2):
        a(f'v_pk_mul_f32 {v(t + h, 2)}, {v(r + h, 2)}, {s(sL2E, 2)} op_sel_hi:[1,0]')
    for i in range(4):
        a(f'v_min_f32 {v(t + i)}, 0, {v(t + i)}')
    for i in range(4):
        a(f'v_exp_f32 {v(t + i)}, {v(t + i)}')
    for i in range(4):
        a(f'v_max_f32 {v(r + i)}, 0, {v(r + i)}')
    for h in (0, 2):
        a(f'v_pk_add_f32 {v(r + h, 2)}, {v(r + h, 2)}, {v(t + h, 2)}')
    for i in range(4):
        a(f'v_add_f32 {v(r + i)}, {s(sEps)}, {v(r + i)}')


def cvt4(a, o, r):
    a(f'v_cvt_pk_bf16_f32 {v(o)}, {v(r)}, {v(r + 1)}')
    a(f'v_cvt_pk_bf16_f32 {v(o + 1)}, {v(r + 2)}, {v(r + 3)}')


def k1_store_pair(a, n0, s_tau, plus, outregs, hook=None):
    a(f's_add_u32 {s(sT2)}, {s(s_tau)}, {plus}')
    a(f's_lshr_b32 {s(sT2)}, {s(sT2)}, 1')
    a(f's_lshl_b32 {s(sT2)}, {s(sT2)}, 10')
    a(f's_add_u32 {s(sT2)}, {s(sT2)}, {s(sA2)}')
    for m in range(4):
        o = outregs + (m & 1) * 4
        mish4(a, acc(n0, m), vE)
        mish4(a, acc(n0 + 1, m), vT)
        cvt4(a, o, acc(n0, m))
        cvt4(a, o + 2, acc(n0 + 1, m))
        a(f'buffer_store_dwordx4 {v(o, 4)}, {v(vL16)}, {s(S_WS, 4)}, {s(sT2)} offen{OPT["nta"]}')
        if m < 3:
            a(f's_add_u32 {s(sT2)}, {s(sT2)}, {144 * 1024}')
        if hook and m == 1:
            hook()
    return 4


def k1_store_single(a, n0, outregs):
    a(f's_lshr_b32 {s(sT2)}, {s(sS)}, 1')
    a(f's_lshl_b32 {s(sT2)}, {s(sT2)}, 10')
    a(f's_add_u32 {s(sT2)}, {s(sT2)}, {s(sA2)}')
    a(f's_and_b32 {s(sT3)}, {s(sS)}, 1')
    a(f's_mul_i32 {s(sT3)}, {s(sT3)}, {144 * 1024}')
    a(f's_add_u32 {s(sT2)}, {s(sT2)}, {s(sT3)}')
    for mp in range(2):
        o = outregs + mp * 4
        mish4(a, acc(n0, 2 * mp), vE)
        mish4(a, acc(n0, 2 * mp + 1), vT)
        cvt4(a, o, acc(n0, 2 * mp))
        cvt4(a, o + 2, acc(n0, 2 * mp + 1))
        a(f'buffer_store_dwordx4 {v(o, 4)}, {v(vL16)}, {s(S_WS, 4)}, {s(sT2)} offen{OPT["nta"]}')
        if mp == 0:
            a(f's_add_u32 {s(sT2)}, {s(sT2)}, {2 * 144 * 1024}')
    return 2


def get_nonce(a, L):
    a(f's_mov_b32 {s(sC)}, 0')
    a.label(f'{L}_nchk')
    a(f'v_readfirstlane_b32 {s(sNon)}, {v(vNon)}')
    a(f's_cmp_lg_u32 {s(sNon)}, 0')
    a(f's_cbranch_scc1 {L}_nok')
    a('s_sleep 8')
    a(f'buffer_load_dword {v(vNon)}, off, {s(S_DBG, 4)}, 0 sc1')
    a(f's_add_u32 {s(sC)}, {s(sC)}, 1')
    a('s_waitcnt vmcnt(0)')
    a(f's_cmp_lt_u32 {s(sC)}, {SPIN_MAX}')
    a(f's_cbranch_scc1 {L}_nchk')
    a.label(f'{L}_nok')


def poll_line(a, L, soff, nlanes, vtmp, sleep=4):
    a(f'v_and_b32 {v(vtmp + 1)}, {nlanes - 1}, v1')
    a(f'v_lshlrev_b32 {v(vtmp + 1)}, 2, {v(vtmp + 1)}')
    a(f's_mov_b32 {s(sC)}, 0')
    a.label(f'{L}_poll')
    a(f'buffer_load_dword {v(vtmp)}, {v(vtmp + 1)}, {s(S_WS, 4)}, {s(soff)} offen sc1')
    a(f's_add_u32 {s(sC)}, {s(sC)}, 1')
    a('s_waitcnt vmcnt(0)')
    a(f'v_cmp_ne_u32 vcc, {s(sNon)}, {v(vtmp)}')
    a('s_nop 4')
    a(f's_cbranch_vccz {L}_polled')
    a(f's_sleep {sleep}')
    a(f's_cmp_lt_u32 {s(sC)}, {SPIN_MAX}')
    a(f's_cbranch_scc1 {L}_poll')
    a.label(f'{L}_polled')


KVL = 114688
KFL = 147456


def k1_epilogue_A(a, grp, L):
    PK, VV, ONES, KV = 8, 24, 40, 44
    a('s_nop 7')
    for n in range(2):
        for m in range(4):
            phi4(a, acc(n, m), vE + (m & 1) * 4)
    for i in range(4):
        a(f'v_mov_b32 {v(ONES + i)}, 0x3f803f80')
    for src, dst in ((2, VV), (0, PK)):
        for n in range(2):
            for c in range(2):
                d = dst + (n * 2 + c) * 4
                for hh in range(2):
                    cvt4(a, d + 2 * hh, acc(src + n, 2 * c + hh))
    for c in range(2):
        for b in range(3):
            for aa in range(2):
                d = v(KV + (b * 2 + aa) * 4, 4)
                B = v(VV + (b * 2 + c) * 4, 4) if b < 2 else v(ONES, 4)
                a(f'v_mfma_f32_16x16x32_bf16 {d}, {v(PK + (aa * 2 + c) * 4, 4)}, {B}, {d if c else "0"}')
    a(f's_mul_i32 {s(sT0)}, {s(sWave)}, 6144')
    a(f's_add_u32 {s(sT0)}, {s(sT0)}, {KVL}')
    a(f'v_add_u32 {v(vT)}, {s(sT0)}, {v(vL16)}')
    for q in range(6):
        a(f'ds_write_b128 {v(vT)}, {v(KV + q * 4, 4)} offset:{q * 1024}')
    a('s_waitcnt lgkmcnt(0)')
    a('s_barrier')
    stamp(a, 7)
    a(f's_cmp_lg_u32 {s(sW3)}, 0')
    a(f's_cbranch_scc1 {L}_nosum')
    bases = (68, 8, 128)
    for w in range(3):
        for q in range(6):
            a(f'ds_read_b128 {v(bases[w] + q * 4, 4)}, {v(vT)} offset:{(w + 1) * 6144 + q * 1024}')
    a(f's_lshl_b32 {s(sT0)}, {s(sH)}, 3')
    a(f's_add_u32 {s(sT0)}, {s(sT0)}, {s(sI)}')
    a(f's_mul_i32 {s(sT1)}, {s(sT0)}, 6144')
    a(f's_add_u32 {s(sT1)}, {s(sT1)}, {KVP_OFF}')
    a(f's_add_u32 {s(sT3)}, {s(sT1)}, 4096')
    for w in range(3):
        a(f's_waitcnt lgkmcnt({12 - 6 * w})')
        for q in range(12):
            a(f'v_pk_add_f32 {v(KV + q * 2, 2)}, {v(KV + q * 2, 2)}, {v(bases[w] + q * 2, 2)}')
    for q in range(6):
        so, off = (sT1, q * 1024) if q < 4 else (sT3, (q - 4) * 1024)
        a(f'buffer_store_dwordx4 {v(KV + q * 4, 4)}, {v(vL16)}, {s(S_WS, 4)}, {s(so)} offen offset:{off} sc1')
    a(f's_lshl_b32 {s(sT0)}, {s(sT)}, 7')
    a(f's_lshl_b32 {s(sT1)}, {s(sI)}, 2')
    a(f's_add_u32 {s(sT0)}, {s(sT0)}, {s(sT1)}')
    a(f's_add_u32 {s(sT0)}, {s(sT0)}, {F_KV + grp * 32}')
    a('s_waitcnt vmcnt(0)')
    get_nonce(a, L + 'a')
    a(f'buffer_store_dword {v(vNon)}, off, {s(S_WS, 4)}, {s(sT0)} sc1')
    stamp(a, 8)
    a.label(f'{L}_nosum')
    if grp == 0:
        k1_store_pair(a, 4, sP0, 0, 72)
        k1_store_single(a, 6, 72)
    else:
        k1_store_pair(a, 4, sP1, 0, 72)


def k1_epilogue_B(a, grp, L):
    OUT = 72
    a('s_setprio 3')
    get_nonce(a, L + 'b')
    a('s_nop 7')
    k1_store_pair(a, 2, sZ2, 2 * grp, OUT)
    a('s_setprio 2')
    if grp == 0:
        k1_store_pair(a, 4, sP0, 0, OUT)
        k1_store_single(a, 6, OUT)
    else:
        k1_store_pair(a, 4, sP1, 0, OUT)
    stamp(a, 7)
    if grp == 1:
        a('s_waitcnt vmcnt(4)')
        a('s_barrier')


def gate_code():
    GX, GW = vE, vE + 8
    o = ['v_mov_b32 v5, 0']
    for i in range(8):
        o.append(f'v_dot2_f32_bf16 v5, {v(GX + i)}, {v(GW + i)}, v5')
    o.append('s_nop 2')
    for sh in (1, 2, 4, 8):
        o.append(f'v_add_f32_dpp v5, v5, v5 row_shr:{sh} row_mask:0xf bank_mask:0xf bound_ctrl:0')
    o.append('v_add_f32_dpp v5, v5, v5 row_bcast:15 row_mask:0xa bank_mask:0xf')
    o.append('v_add_f32_dpp v5, v5, v5 row_bcast:31 row_mask:0xc bank_mask:0xf')
    o.append('v_mov_b32 v6, 0x42200000')
    o.append('v_med3_f32 v5, v5, -v6, v6')
    o.append(f'v_mul_f32 v5, {s(sL2E)}, v5')
    o.append('v_exp_f32 v5, v5')
    o.append(f'v_readlane_b32 {s(sT3)}, v5, 63')
    o.append(f'v_mov_b32 v5, {s(sT3)}')
    o.append(f'buffer_store_dword v5, off, {s(S_WS, 4)}, {s(sEoff)} sc1')
    return o


def k2acc(n, m):
    return k2ACC + (n * 2 + m) * 4


def k2_reads(buf, slot):
    out = []
    for n in range(8):
        addr = k2RA + (slot // 8) * 8 + n
        off = (slot % 8) * 8192
        d = k2BF + buf * 32 + n * 4
        out.append(f'ds_read_b64_tr_b16 {v(d, 2)}, {v(addr)} offset:{off}')
        out.append(f'ds_read_b64_tr_b16 {v(d + 2, 2)}, {v(addr)} offset:{off + 4096}')
    return out


def k2_read1(dst, slot, n):
    addr = k2RA + (slot // 8) * 8 + n
    off = (slot % 8) * 8192
    return [f'ds_read_b64_tr_b16 {v(dst, 2)}, {v(addr)} offset:{off}',
            f'ds_read_b64_tr_b16 {v(dst + 2, 2)}, {v(addr)} offset:{off + 4096}']


def p2_order():
    o = []
    for lst in ((4, 5, 8, 9), (3, 6, 7, 10), (0, 1, 12, 13), (2, 11)):
        for u in range(2):
            o += [('b', 14 * u + g) for g in lst]
    o += [('a', h) for h in range(8)]
    return o


ORDER = p2_order()


def k2_dma_b(j):
    kind, idx = ORDER[j]
    slot = j % RING
    out = [f's_add_u32 m0, {s(sM2)}, {slot * 8192}']
    base, srdn = (s2Boff, S2_B) if kind == 'b' else (s2Ba, S2_WO)
    out.append(f's_add_u32 {s(sT0)}, {s(base)}, {idx * 65536}')
    out.append(f'buffer_load_dwordx4 {v(vBV)}, {s(srdn, 4)}, {s(sT0)} offen{OPT["ntb"]} lds')
    return out


def aset(j):
    if OPT['sendfirst'] and j >= 34:
        return 40 + (j - 34) * 8
    return k2A + (j % NA) * 8


def k2_load_a(j):
    kind, idx = ORDER[j]
    base = s2Aoff if kind == 'b' else s2Aa
    out = [f's_add_u32 {s(sT1)}, {s(base)}, {idx * 1024}']
    for m in range(2):
        out.append(f'buffer_load_dwordx4 {v(aset(j) + m * 4, 4)}, {v(k2AV + m)}, {s(S_WS, 4)}, {s(sT1)} offen sc1')
    return out


def flag_check(a, L, vval, vaddr, sleep=4):
    a(f's_mov_b32 {s(sC)}, 0')
    a.label(f'{L}_c')
    a(f'v_cmp_ne_u32 vcc, {s(sNon)}, {v(vval)}')
    a('s_nop 4')
    a(f's_cbranch_vccz {L}_ok')
    if sleep:
        a(f's_sleep {sleep}')
    a(f'buffer_load_dword {v(vval)}, {v(vaddr)}, {s(S_WS, 4)}, 0 offen sc1')
    a(f's_add_u32 {s(sC)}, {s(sC)}, 1')
    a('s_waitcnt vmcnt(0)')
    a(f's_cmp_lt_u32 {s(sC)}, {SPIN_MAX}')
    a(f's_cbranch_scc1 {L}_c')
    a.label(f'{L}_ok')


def gen(a):
    a.label(KN)
    a('s_cmp_ge_u32 s2, 256')
    a('s_cbranch_scc1 K_end')
    a('s_load_dwordx16 s[4:19], s[0:1], 0')
    a('s_load_dwordx4 s[20:23], s[0:1], 64')
    a('s_load_dwordx2 s[24:25], s[0:1], 80')
    if OPT['codepf']:
        a('s_getpc_b64 s[26:27]')
        if OPT['cp1']:
            a('s_lshr_b32 s3, s2, 3')
            a('s_and_b32 s3, s3, 7')
            a('s_lshl_b32 s3, s3, 13')
            a('v_lshlrev_b32 v5, 7, v0')
            a('v_add_u32 v5, s3, v5')
            a('v_min_u32 v5, CODE_LAST, v5')
            a('v_cmp_gt_u32 vcc, 64, v0')
            a('s_and_saveexec_b64 s[30:31], vcc')
            a('s_cbranch_execz CP_skip')
            a('global_load_dword v3, v5, s[26:27]')
            a.label('CP_skip')
            a('s_mov_b64 exec, -1')
        else:
            a('s_lshr_b32 s3, s2, 3')
            a('s_and_b32 s3, s3, 1')
            a('s_lshl_b32 s3, s3, 16')
            a('v_lshlrev_b32 v5, 7, v0')
            a('v_add_u32 v5, s3, v5')
            a('v_min_u32 v5, CODE_LAST, v5')
            a('global_load_dword v3, v5, s[26:27]')
    stamp(a, 0)
    if OPT['padto']:
        a('s_memrealtime s[26:27]')
    a('v_and_b32 v1, 63, v0')
    a('v_lshrrev_b32 v2, 6, v0')
    a(f'v_readfirstlane_b32 {s(sWave)}, v2')
    a(f's_and_b32 {s(sT0)}, s2, 7')
    a(f's_lshr_b32 {s(sT1)}, s2, 3')
    if OPT['map8']:
        a(f's_and_b32 {s(sI)}, {s(sT1)}, 7')
        a(f's_lshl_b32 {s(sC)}, {s(sT0)}, 2')
        a(f's_lshr_b32 {s(sT2)}, {s(sT1)}, 3')
        a(f's_add_u32 {s(sC)}, {s(sC)}, {s(sT2)}')
    else:
        a(f's_and_b32 {s(sI)}, {s(sT0)}, 1')
        a(f's_lshl_b32 {s(sI)}, {s(sI)}, 2')
        a(f's_and_b32 {s(sT2)}, {s(sT1)}, 3')
        a(f's_add_u32 {s(sI)}, {s(sI)}, {s(sT2)}')
        a(f's_lshr_b32 {s(sC)}, {s(sT0)}, 1')
        a(f's_lshl_b32 {s(sC)}, {s(sC)}, 3')
        a(f's_lshr_b32 {s(sT2)}, {s(sT1)}, 2')
        a(f's_add_u32 {s(sC)}, {s(sC)}, {s(sT2)}')
    a(f's_lshr_b32 {s(sT)}, {s(sC)}, 1')
    a(f's_and_b32 {s(sTyp)}, {s(sC)}, 1')
    a(f's_and_b32 {s(sW3)}, {s(sWave)}, 3')
    a(f's_lshr_b32 {s(sGrp)}, {s(sWave)}, 2')
    a(f's_cmp_eq_u32 {s(sTyp)}, 0')
    a(f's_mov_b32 {s(sT2)}, 0x286085C6')
    a(f's_cselect_b32 {s(sT2)}, 0x09CA0420, {s(sT2)}')
    a(f's_and_b32 {s(sT3)}, {s(sT)}, 1')
    a(f's_lshl_b32 {s(sT3)}, {s(sT3)}, 4')
    a(f's_lshr_b32 {s(sT2)}, {s(sT2)}, {s(sT3)}')
    a(f's_and_b32 {s(sP0)}, {s(sT2)}, 15')
    a(f's_bfe_u32 {s(sP1)}, {s(sT2)}, 0x40004')
    a(f's_bfe_u32 {s(sS)}, {s(sT2)}, 0x40008')
    a(f's_bfe_u32 {s(sZ2)}, {s(sT2)}, 0x4000c')
    a('v_lshrrev_b32 v2, 4, v1')
    a('v_lshrrev_b32 v6, 3, v1')
    a('v_and_b32 v7, 7, v1')
    a(f's_lshl_b32 {s(sT2)}, {s(sWave)}, 15')
    for j in range(2):
        a(f'v_xor_b32 v5, {4 * j}, v2')
        a('v_xor_b32 v5, v5, v7')
        a('v_lshlrev_b32 v5, 4, v5')
        a('v_lshl_add_u32 v5, v6, 11, v5')
        a(f's_add_u32 {s(sT3)}, {s(sT2)}, {j * (8 * 2048 - 1024)}')
        a(f'v_add_u32 {v(vXV + j)}, {s(sT3)}, v5')
    a(f's_lshl_b32 {s(sM0W)}, {s(sWave)}, 11')
    a(f's_add_u32 {s(sM0X)}, {s(sM0W)}, 65536')
    a(f's_lshl_b32 {s(sXK)}, {s(sI)}, 19')
    if OPT['xp_same']:
        a(f's_mov_b32 {s(sXK)}, 0')
    a(f's_sub_u32 {s(sXK)}, {s(sXK)}, 128')
    a(f's_mov_b32 {s(sXD)}, 65536')
    a(f's_mov_b32 {s(sWoff)}, 0')
    a(f's_mul_i32 {s(sA2)}, {s(sT)}, 448')
    if OPT['xp_same']:
        a(f's_and_b32 {s(sA2)}, {s(sT)}, 1')
        a(f's_mul_i32 {s(sA2)}, {s(sA2)}, 448')
    a(f's_cmp_ge_u32 {s(sWave)}, 4')
    a('s_cbranch_scc1 K1_setup_z3')
    a(f's_lshr_b32 {s(sT0)}, {s(sWave)}, 1')
    a(f's_lshl_b32 {s(sT2)}, {s(sT)}, 7')
    if OPT['xp_same']:
        a(f's_mov_b32 {s(sT2)}, 0')
    a(f's_add_u32 {s(sT3)}, {s(sT0)}, 1')
    a(f's_lshl_b32 {s(sT3)}, {s(sT3)}, 11')
    a(f's_cmp_eq_u32 {s(sTyp)}, 0')
    a(f's_cselect_b32 {s(sT3)}, {s(sT3)}, 0')
    a(f's_add_u32 {s(sT2)}, {s(sT2)}, {s(sT3)}')
    a(f's_lshl_b32 {s(sT3)}, {s(sZ2)}, 5')
    a(f's_add_u32 {s(sT3)}, {s(sT3)}, {s(sA2)}')
    a(f's_and_b32 {s(sT0)}, {s(sTyp)}, {s(sT0)}')
    a(f's_cselect_b32 {s(sT2)}, {s(sT3)}, {s(sT2)}')
    a(f's_movk_i32 {s(sWstr)}, 6144')
    a(f's_cselect_b32 {s(sWstr)}, 7168, {s(sWstr)}')
    a('v_lshrrev_b32 v5, 1, v7')
    a('v_and_b32 v7, 1, v2')
    a('v_xor_b32 v5, v5, v7')
    a('v_and_b32 v7, 1, v1')
    a(f'v_mul_lo_u32 v6, v6, {s(sWstr)}')
    a('v_lshl_add_u32 v6, v7, 4, v6')
    a(f's_and_b32 {s(sT3)}, {s(sWave)}, 1')
    a(f's_lshl_b32 {s(sT3)}, {s(sT3)}, 4')
    a(f's_mul_i32 {s(sT3)}, {s(sT3)}, {s(sWstr)}')
    a(f's_add_u32 {s(sT2)}, {s(sT2)}, {s(sT3)}')
    for j in range(2):
        a(f'v_xor_b32 v7, {2 * j}, v5')
        a(f'v_lshl_add_u32 v7, v7, 5, v6')
        if j:
            a(f's_lshl_b32 {s(sT3)}, {s(sWstr)}, 3')
            a(f's_add_u32 {s(sT2)}, {s(sT2)}, {s(sT3)}')
            a(f's_sub_u32 {s(sT2)}, {s(sT2)}, 1024')
        a(f'v_add_u32 {v(vWV + j)}, {s(sT2)}, v7')
    a('s_branch K1_setup_w_done')
    a.label('K1_setup_z3')
    a(f's_mov_b32 {s(sWstr)}, 7168')
    a(f's_mov_b32 {s(sT0)}, 1')
    a('v_bfe_u32 v5, v1, 1, 3')
    a('v_xor_b32 v5, v5, v2')
    a(f's_and_b32 {s(sT3)}, {s(sWave)}, 1')
    a(f's_lshl_b32 {s(sT3)}, {s(sT3)}, 2')
    a(f'v_xor_b32 v5, {s(sT3)}, v5')
    a('v_and_b32 v6, 1, v1')
    a('v_mul_u32_u24 v7, 7168, v2')
    a('v_lshl_add_u32 v7, v6, 4, v7')
    a(f's_mul_i32 {s(sT3)}, {s(sW3)}, {8 * 7168}')
    a(f's_add_u32 {s(sT2)}, {s(sA2)}, {s(sT3)}')
    a(f's_sub_u32 {s(sT3)}, {s(sP1)}, 2')
    a(f's_sub_u32 {s(sT1)}, {s(sS)}, 4')
    a(f'v_mov_b32 {v(vT + 1)}, {s(sP0)}')
    a(f'v_mov_b32 {v(vT + 2)}, {s(sT3)}')
    a('v_cmp_lt_u32 vcc, 1, v5')
    a(f'v_cndmask_b32 {v(vT + 1)}, {v(vT + 1)}, {v(vT + 2)}, vcc')
    a(f'v_mov_b32 {v(vT + 2)}, {s(sT1)}')
    a('v_cmp_lt_u32 vcc, 3, v5')
    a(f'v_cndmask_b32 {v(vT + 1)}, {v(vT + 1)}, {v(vT + 2)}, vcc')
    a(f'v_add_u32 {v(vT + 1)}, {v(vT + 1)}, v5')
    a(f'v_lshl_add_u32 {v(vT + 1)}, {v(vT + 1)}, 5, v7')
    a(f'v_add_u32 {v(vT + 1)}, {s(sT2)}, {v(vT + 1)}')
    a(f'v_mov_b32 {v(vT + 2)}, 0x40000000')
    a('v_cmp_lt_u32 vcc, 4, v5')
    a(f'v_cndmask_b32 {v(vWV)}, {v(vT + 1)}, {v(vT + 2)}, vcc')
    a(f'v_add_u32 {v(vWV + 1)}, {4 * 7168 - 1024}, {v(vWV)}')
    a.label('K1_setup_w_done')
    a(f's_lshl_b32 {s(sWstep)}, {s(sWstr)}, 5')
    a('v_lshlrev_b32 v5, 3, v2')
    a('s_waitcnt lgkmcnt(0)')
    srd(a, S_X, 4, 2048 * 1024 * 2)
    srd(a, S_W, 6, 1024 * 3072 * 2)
    a(f's_cmp_eq_u32 {s(sT0)}, 1')
    a(f's_cselect_b32 {s(S_W)}, s12, {s(S_W)}')
    a(f's_cselect_b32 {s(S_W + 1)}, s13, {s(S_W + 1)}')
    a(f's_cselect_b32 {s(S_W + 2)}, {1024 * 3584 * 2}, {s(S_W + 2)}')
    a(f's_and_b32 {s(S_W + 1)}, {s(S_W + 1)}, 0xffff')
    stamp(a, 11)
    for x in k1_dma_w(0) + k1_dma_x(0) + k1_dma_x(1):
        a(x)
    srd(a, S_B1, 14, 3584 * 2)
    srd(a, S_B1Z, 14, 3584 * 2)
    a(f's_cmp_eq_u32 {s(sTyp)}, 0')
    a(f's_cselect_b32 {s(S_B1Z + 2)}, 0, {s(S_B1Z + 2)}')
    BI = 36
    a(f's_lshl_b32 {s(sT3)}, {s(sGrp)}, 1')
    a(f's_add_u32 {s(sT3)}, {s(sT3)}, {s(sZ2)}')
    a(f's_lshl_b32 {s(sT3)}, {s(sT3)}, 5')
    a(f's_add_u32 {s(sT3)}, {s(sT3)}, {s(sA2)}')
    a(f'buffer_load_dwordx2 {v(BI, 2)}, v5, {s(S_B1Z, 4)}, {s(sT3)} offen')
    a(f'buffer_load_dwordx2 {v(BI + 2, 2)}, v5, {s(S_B1Z, 4)}, {s(sT3)} offen offset:32')
    a(f's_cmp_eq_u32 {s(sGrp)}, 0')
    a(f's_cselect_b32 {s(sT3)}, {s(sP0)}, {s(sP1)}')
    a(f's_lshl_b32 {s(sT3)}, {s(sT3)}, 5')
    a(f's_add_u32 {s(sT3)}, {s(sT3)}, {s(sA2)}')
    a(f'buffer_load_dwordx2 {v(BI + 4, 2)}, v5, {s(S_B1, 4)}, {s(sT3)} offen')
    a(f'buffer_load_dwordx2 {v(BI + 6, 2)}, v5, {s(S_B1, 4)}, {s(sT3)} offen offset:32')
    a(f's_lshl_b32 {s(sT3)}, {s(sS)}, 5')
    a(f's_add_u32 {s(sT3)}, {s(sT3)}, {s(sA2)}')
    a(f'buffer_load_dwordx2 {v(BI + 8, 2)}, v5, {s(S_B1, 4)}, {s(sT3)} offen')
    srd(a, S_WS, 24, WS_SIZE)
    srd(a, S_DBG, 22, 256)
    a(f's_lshl_b32 {s(sT3)}, s2, 3')
    a(f's_add_u32 {s(sT3)}, {s(sT3)}, {s(sWave)}')
    a(f's_cmp_lg_u32 {s(sT3)}, 7')
    a('s_cbranch_scc1 K1_noep')
    a(f's_mov_b32 {s(sT3)}, {EP_OFF}')
    a(f'buffer_load_dword {v(vNon)}, off, {s(S_WS, 4)}, {s(sT3)} sc1')
    a.label('K1_noep')
    if OPT['probar']:
        a('s_barrier')
    if not OPT['late2']:
        for x in k1_dma_w(1) + k1_dma_w(2) + k1_dma_x(0) + k1_dma_x(1):
            a(x)
    stamp(a, 12)
    srd(a, S_G, 18, 2048)
    a(f'v_lshlrev_b32 {v(vL16)}, 4, v1')
    a(f's_lshl_b32 {s(sRole)}, {s(sI)}, 5')
    a(f's_add_u32 {s(sRole)}, {s(sRole)}, {s(sC)}')
    a(f's_lshl_b32 {s(sFW)}, {s(sRole)}, 7')
    a(f's_add_u32 {s(sFW)}, {s(sFW)}, {F_WG}')
    a(f's_lshl_b32 {s(sT2)}, {s(sRole)}, 3')
    a(f's_add_u32 {s(sT2)}, {s(sT2)}, {s(sWave)}')
    if OPT['map8']:
        a(f's_bfe_u32 {s(s2Kq)}, s2, 0x20001')
        a(f's_bfe_u32 {s(s2Cb)}, s2, 0x10007')
        a(f's_lshl_b32 {s(s2Cb)}, {s(s2Cb)}, 1')
        a(f's_bfe_u32 {s(sT0)}, s2, 0x10005')
        a(f's_or_b32 {s(s2Cb)}, {s(s2Cb)}, {s(sT0)}')
        a(f's_lshl_b32 {s(s2Cb)}, {s(s2Cb)}, 1')
        a(f's_bfe_u32 {s(sT0)}, s2, 0x10006')
        a(f's_or_b32 {s(s2Cb)}, {s(s2Cb)}, {s(sT0)}')
        a(f's_and_b32 {s(sRole)}, s2, 1')
        a(f's_lshl_b32 {s(sRole)}, {s(sRole)}, 2')
        a(f's_bfe_u32 {s(sT0)}, s2, 0x20003')
        a(f's_or_b32 {s(sRole)}, {s(sRole)}, {s(sT0)}')
        a(f's_lshl_b32 {s(sRole)}, {s(sRole)}, 2')
        a(f's_or_b32 {s(sRole)}, {s(sRole)}, {s(s2Kq)}')
        a(f's_lshl_b32 {s(sRole)}, {s(sRole)}, 3')
        a(f's_or_b32 {s(sRole)}, {s(sRole)}, {s(s2Cb)}')
    else:
        a(f's_lshr_b32 {s(s2Kq)}, {s(sC)}, 3')
        a(f's_and_b32 {s(s2Cb)}, {s(sC)}, 7')
    a(f's_lshl_b32 {s(sEoff)}, {s(sT2)}, 2')
    a(f's_add_u32 {s(sEoff)}, {s(sEoff)}, {E_OFF}')
    a(f's_lshl_b32 {s(sGoff)}, {s(sT2)}, 11')
    a(f's_lshl_b32 {s(sH)}, {s(sT)}, 1')
    a(f's_add_u32 {s(sH)}, {s(sH)}, {s(sGrp)}')
    a(f's_mov_b32 {s(sL2E)}, {LOG2E}')
    a(f's_mov_b32 {s(sC60)}, 0x42700000')
    a(f's_mov_b32 {s(sEps)}, 0x358637bd')
    a(f's_lshl_b32 {s(sA2)}, {s(sI)}, 2')
    a(f's_add_u32 {s(sA2)}, {s(sA2)}, {s(sW3)}')
    a(f's_mul_i32 {s(sA2)}, {s(sA2)}, {4 * 144}')
    a(f's_mul_i32 {s(sT2)}, {s(sT)}, 7')
    a(f's_add_u32 {s(sA2)}, {s(sA2)}, {s(sT2)}')
    a(f's_add_u32 {s(sA2)}, {s(sA2)}, 32')
    a(f's_lshl_b32 {s(sA2)}, {s(sA2)}, 10')
    a(f'v_bfe_u32 {v(vT + 3)}, v1, 2, 2')
    a(f'v_and_b32 {v(vT + 4)}, 3, v1')
    a(f'v_lshl_add_u32 v5, v2, 3, {v(vT + 3)}')
    a(f'v_lshrrev_b32 v6, 1, {v(vT + 3)}')
    a('v_and_b32 v7, 1, v2')
    a('v_lshl_or_b32 v6, v7, 1, v6')
    a(f's_lshl_b32 {s(sT2)}, {s(sGrp)}, 1')
    for q in range(2):
        a(f's_add_u32 {s(sT3)}, {s(sT2)}, {q}')
        a(f'v_xor_b32 {v(vT)}, {s(sT3)}, v6')
        a(f'v_lshlrev_b32 {v(vT)}, 5, {v(vT)}')
        a(f'v_lshl_add_u32 {v(vT)}, v5, 7, {v(vT)}')
        a(f'v_lshl_add_u32 {v(vWZ12 + q)}, {v(vT + 4)}, 3, {v(vT)}')
    a(f'v_lshl_or_b32 v6, v7, 2, {v(vT + 3)}')
    for q in range(3):
        if q < 2:
            a(f's_add_u32 {s(sT3)}, {s(sT2)}, {q}')
        else:
            a(f's_mov_b32 {s(sT3)}, 4')
        a(f'v_xor_b32 {v(vT)}, {s(sT3)}, v6')
        a(f'v_lshlrev_b32 {v(vT)}, 5, {v(vT)}')
        a(f'v_lshl_add_u32 {v(vT)}, v5, 8, {v(vT)}')
        a(f'v_lshl_add_u32 {v(vT)}, {v(vT + 4)}, 3, {v(vT)}')
        a(f'v_add_u32 {v(vWZ3 + q)}, 8192, {v(vT)}')
    a('v_and_b32 v5, 15, v1')
    a('v_bfe_u32 v6, v1, 1, 3')
    a('v_xor_b32 v6, v6, v2')
    a(f's_lshl_b32 {s(sT3)}, {s(sW3)}, 13')
    a(f's_add_u32 {s(sT3)}, {s(sT3)}, 65536')
    a('v_lshlrev_b32 v5, 7, v5')
    a('v_lshl_add_u32 v5, v6, 4, v5')
    a(f'v_add_u32 {v(vXA0c)}, {s(sT3)}, v5')
    a(f'v_xor_b32 {v(vXA1c)}, 64, {v(vXA0c)}')
    a(f'v_mov_b32 {v(vXA0)}, {v(vXA0c)}')
    a(f'v_mov_b32 {v(vXA1)}, {v(vXA1c)}')
    a(f's_mov_b32 {s(sXR)}, 0')
    a('s_and_b32 s9, s9, 0xffff')
    pf_setup(a)
    a('v_and_b32 v5, 1, v1')
    a('v_lshlrev_b32 v5, 4, v5')
    a('v_lshl_add_u32 v5, v2, 11, v5')
    a(f's_lshl_b32 {s(sT3)}, {s(sWave)}, 13')
    a(f's_lshl_b32 {s(sT0)}, {s(s2Cb)}, 8')
    a(f's_add_u32 {s(sT3)}, {s(sT3)}, {s(sT0)}')
    a(f's_and_b32 {s(sT0)}, {s(sWave)}, 1')
    a(f's_lshl_b32 {s(sT0)}, {s(sT0)}, 2')
    a(f'v_xor_b32 v7, {s(sT0)}, v6')
    a('v_lshl_add_u32 v7, v7, 5, v5')
    a(f'v_add_u32 {v(vBV)}, {s(sT3)}, v7')
    a(f's_lshl_b32 {s(sM2)}, {s(sWave)}, 10')
    for n in range(2):
        for r in range(0, 16, 2):
            a(f'v_pk_mov_b32 {v(acc(n, 0) + r, 2)}, 0, 0')
    if OPT['late2']:
        for x in k1_dma_w(1) + k1_dma_w(2) + k1_dma_x(0) + k1_dma_x(1):
            a(x)
    stamp(a, 1)
    a('s_waitcnt vmcnt(8)')
    for n in range(2, 7):
        b = BI + (n - 2) * 2
        r0 = acc(n, 0)
        a(f'v_lshlrev_b32 {v(r0)}, 16, {v(b)}')
        a(f'v_and_b32 {v(r0 + 1)}, 0xffff0000, {v(b)}')
        a(f'v_lshlrev_b32 {v(r0 + 2)}, 16, {v(b + 1)}')
        a(f'v_and_b32 {v(r0 + 3)}, 0xffff0000, {v(b + 1)}')
        for m in range(1, 4):
            for h in (0, 2):
                a(f'v_pk_mov_b32 {v(acc(n, m) + h, 2)}, {v(r0 + h, 2)}, {v(r0 + h, 2)} op_sel:[0,1]')
    a(f's_lshl_b32 {s(sT2)}, s2, 3')
    a(f's_add_u32 {s(sT2)}, {s(sT2)}, {s(sWave)}')
    a(f's_cmp_lg_u32 {s(sT2)}, 7')
    a('s_cbranch_scc1 K1_nopub')
    a(f'v_add_u32 {v(vNon)}, 1, {v(vNon)}')
    a(f'v_or_b32 {v(vNon)}, 0x80000000, {v(vNon)}')
    a(f's_mov_b32 {s(sT3)}, {EP_OFF}')
    a(f'buffer_store_dword {v(vNon)}, off, {s(S_DBG, 4)}, 0 sc1')
    a(f'buffer_store_dword {v(vNon)}, off, {s(S_WS, 4)}, {s(sT3)} sc1')
    a('s_waitcnt vmcnt(0)')
    a.label('K1_nopub')
    srd(a, S2_B, 16, 3584 * 1024 * 2)
    a(f's_mul_i32 {s(s2Boff)}, {s(s2Kq)}, {28 * 65536}')
    a(f's_mul_i32 {s(s2Ba)}, {s(s2Kq)}, {8 * 65536}')
    a(f's_lshl_b32 {s(sT2)}, {s(sTyp)}, 1')
    a(f's_add_u32 {s(sT2)}, {s(sT2)}, {s(sGrp)}')
    a(f's_cmp_eq_u32 {s(sT2)}, 1')
    a('s_cbranch_scc1 K1_v01')
    a(f's_cmp_eq_u32 {s(sT2)}, 2')
    a('s_cbranch_scc1 K1_v10')
    a(f's_cmp_eq_u32 {s(sT2)}, 3')
    a('s_cbranch_scc1 K1_v11')
    for typ in range(2):
        for grp in range(2):
            L = f'K1_v{typ}{grp}'
            a.label(L)
            if OPT['yprio'] and grp == 1:
                a('s_setprio 1')
            stamp(a, 2)
            a('s_barrier')
            stamp(a, 3)
            for x in k1_reads(grp, 0, 0, 0):
                a(x)
            a(f's_mov_b32 {s(sCnt)}, 1')
            a('s_waitcnt vmcnt(6) lgkmcnt(0)')
            a('s_barrier')
            stamp(a, 4)
            k1_substep(a, grp, typ, 0, dma=False, vm=8,
                       extra=group_dma(k1_dma_w(3) + k1_dma_x(0) + k1_dma_w(0) + k1_dma_x(1)))
            for b in range(1, 4):
                k1_substep(a, grp, typ, b, vm=8)
            a.label(L + '_loop')
            if OPT['stamp']:
                a('s_memtime s[26:27]')
                a(f's_add_u32 m0, {s(sCnt)}, 20')
                a('s_waitcnt lgkmcnt(0)')
                a(f'v_writelane_b32 v{vSt}, s26, m0')
            pf = OPT['b2pf']
            for b in range(4):
                k1_substep(a, grp, typ, b, extra=b2_touch() if pf else None, vm=8)
            a(f's_add_u32 {s(sCnt)}, {s(sCnt)}, 1')
            a(f's_cmp_lt_u32 {s(sCnt)}, 7')
            a(f's_cbranch_scc1 {L}_loop')
            stamp(a, 5)
            nl = [[f'buffer_load_dword {v(vNon)}, off, {s(S_DBG, 4)}, 0 sc1']]
            gl = [[f'buffer_load_dwordx4 {v(vE, 4)}, {v(vL16)}, {s(S_X, 4)}, {s(sGoff)} offen'],
                  [f'buffer_load_dwordx4 {v(vE + 4, 4)}, {v(vL16)}, {s(S_X, 4)}, {s(sGoff)} offen offset:1024'],
                  [f'buffer_load_dwordx4 {v(vE + 8, 4)}, {v(vL16)}, {s(S_G, 4)}, 0 offen'],
                  [f'buffer_load_dwordx4 {v(vE + 12, 4)}, {v(vL16)}, {s(S_G, 4)}, 0 offen offset:1024']]
            if OPT['fwarm']:
                fw = [f's_lshl_b32 {s(sT2)}, {s(sRole)}, 3',
                      f's_add_u32 {s(sT2)}, {s(sT2)}, {s(sWave)}',
                      f's_lshl_b32 {s(sT2)}, {s(sT2)}, 7',
                      f's_add_u32 {s(sT2)}, {s(sT2)}, {F_X}',
                      f's_lshl_b32 {s(sT3)}, {s(sT)}, 7',
                      f's_add_u32 {s(sT3)}, {s(sT3)}, {F_KV}',
                      f'v_mov_b32 v6, {s(sT3)}',
                      f'v_writelane_b32 v6, {s(sT2)}, 0',
                      f'v_writelane_b32 v6, {s(sFW)}, 1',
                      f'v_writelane_b32 v6, {s(sEoff)}, 2',
                      f'buffer_load_dword v3, v6, {s(S_WS, 4)}, 0 offen sc1']
                nl = nl + [fw]
            k1_substep(a, grp, typ, 0, dma=False, vm=9 + (1 if OPT['fwarm'] else 0), extra=gl + nl)
            k1_substep(a, grp, typ, 1, dma=False, vm=0)
            k1_substep(a, grp, typ, 2, dma=False, vm=63, fill=gate_code())
            bd = []
            for j in range(14):
                bd += k2_dma_b(j)
            un = group_dma(bd)
            if OPT['lateb']:
                LATE[:] = un[4:]
                un = un[:4]
            else:
                un = [un[2 * q] + un[2 * q + 1] for q in range(7)]
            k1_substep(a, grp, typ, 3, dma=False, reads=False, last=True, extra=un)
            stamp(a, 6)
            if OPT['eprio']:
                a(f's_setprio {OPT["eprio"]}')
            if typ == 0:
                k1_epilogue_A(a, grp, L)
            else:
                k1_epilogue_B(a, grp, L)
            late(a, 99)
            a('s_branch P2_start')
    a.label('P2_start')
    if OPT['eprio']:
        a('s_setprio 0')
    stamp(a, 9)
    get_nonce(a, 'P2n')
    a(f's_and_b32 {s(sT0)}, {s(sRole)}, 0xf8')
    a(f's_lshl_b32 {s(sT0)}, {s(sT0)}, 7')
    a(f's_add_u32 {s(sT0)}, {s(sT0)}, {F_WG}')
    a('v_and_b32 v5, 3, v1')
    a('v_lshlrev_b32 v5, 8, v5')
    a(f'v_add_u32 {v(vF3)}, {s(sT0)}, v5')
    a(f'v_add_u32 {v(vFa)}, 128, {v(vF3)}')
    a(f'v_add_u32 {v(vOFa)}, 4, {v(vFa)}')
    a(f's_lshr_b32 {s(sI)}, {s(sRole)}, 5')
    a(f's_lshl_b32 {s(sT0)}, {s(sI)}, 12')
    a(f's_add_u32 {s(sT0)}, {s(sT0)}, {F_WG}')
    a('v_lshlrev_b32 v5, 7, v1')
    a(f'v_add_u32 v6, {s(sT0)}, v5')
    a('v_cmp_gt_u32 vcc, 32, v1')
    a(f'v_cndmask_b32 {v(vOFa)}, {v(vOFa)}, v6, vcc')
    a(f's_lshl_b32 {s(sT2)}, {s(sI)}, 4')
    a(f's_lshl_b32 {s(sT3)}, {s(sWave)}, 1')
    a(f's_add_u32 {s(sT2)}, {s(sT2)}, {s(sT3)}')
    a(f's_and_b32 {s(sT3)}, {s(s2Kq)}, 1')
    a(f's_add_u32 {s(sT3)}, {s(sT2)}, {s(sT3)}')
    a(f's_mul_i32 {s(sT0)}, {s(sT3)}, {144 * 1024}')
    a(f'v_add_u32 {v(k2AV)}, {s(sT0)}, {v(vL16)}')
    a(f's_xor_b32 {s(sT1)}, {s(sT3)}, 1')
    a(f's_mul_i32 {s(sT0)}, {s(sT1)}, {144 * 1024}')
    a(f'v_add_u32 {v(k2AV + 1)}, {s(sT0)}, {v(vL16)}')
    a('v_and_b32 v5, 15, v1')
    a('v_lshlrev_b32 v5, 2, v5')
    for m, sr in ((0, sT3), (1, sT1)):
        a(f's_lshl_b32 {s(sT0)}, {s(sr)}, 6')
        a(f's_add_u32 {s(sT0)}, {s(sT0)}, {E_OFF}')
        a(f'v_add_u32 {v(k2E + m)}, {s(sT0)}, v5')
    a(f's_lshl_b32 {s(sEoff)}, {s(sT3)}, 4')
    a(f's_mul_i32 {s(s2Aoff)}, {s(s2Kq)}, {28 * 1024}')
    a(f's_add_u32 {s(s2Aoff)}, {s(s2Aoff)}, {32 * 1024}')
    a(f's_lshl_b32 {s(s2Aa)}, {s(s2Kq)}, 13')
    a(f's_lshl_b32 {s(sT0)}, {s(sT)}, 7')
    a(f's_add_u32 {s(sT0)}, {s(sT0)}, {F_KV}')
    a(f'v_add_u32 {v(vKa)}, {s(sT0)}, v5')
    def noncrit(tag):
        a(f'v_bfe_u32 v3, v1, 2, 2')
        a(f'v_lshl_add_u32 v5, v2, 2, v3')
        a('v_and_b32 v6, 7, v5')
        a(f's_lshr_b32 {s(sT2)}, {s(s2Kq)}, 1')
        a(f's_lshl_b32 {s(sT2)}, {s(sT2)}, 2')
        a(f'v_xor_b32 v6, {s(sT2)}, v6')
        a('v_lshlrev_b32 v5, 8, v5')
        a('v_and_b32 v3, 3, v1')
        a('v_lshl_add_u32 v5, v3, 3, v5')
        for n in range(8):
            a(f'v_xor_b32 v7, {n}, v6')
            a(f'v_lshl_add_u32 {v(k2RA + n)}, v7, 5, v5')
            a(f'v_add_u32 {v(k2RA + 8 + n)}, 65536, {v(k2RA + n)}')
            a(f'v_add_u32 {v(k2RA + 16 + n)}, 131072, {v(k2RA + n)}')
        srd(a, S2_OUT, 20, 2048 * 1024 * 2)
        srd(a, S2_WO, 8, 1024 * 2048)
        srd(a, S2_KV, 24, WS_SIZE)
        a(f's_cmp_ge_u32 {s(sWave)}, 6')
        a(f's_cselect_b32 {s(S2_KV + 2)}, 0, {s(S2_KV + 2)}')
        a(f's_mul_i32 {s(sKVo)}, {s(sT)}, {2 * 49152}')
        a(f's_add_u32 {s(sKVo)}, {s(sKVo)}, {KVP_OFF}')
        a(f's_lshl_b32 {s(sT3)}, {s(sWave)}, 11')
        a(f's_add_u32 {s(sKVo)}, {s(sKVo)}, {s(sT3)}')
        a(f's_cmp_ge_u32 {s(sWave)}, 3')
        a(f's_cselect_b32 {s(sT3)}, {49152 - 6144}, 0')
        a(f's_add_u32 {s(sKVo)}, {s(sKVo)}, {s(sT3)}')
        a(f's_cmp_eq_u32 {s(sTyp)}, 0')
        a('s_cbranch_scc1 P2_noq' + tag)
        for n in range(2):
            for m in range(4):
                phi4(a, acc(n, m), CH + (m & 1) * 4)
        for m in range(4):
            for n in range(2):
                cvt4(a, PQ + m * 4 + 2 * n, acc(n, m))
        a.label('P2_noq' + tag)


    a(f's_cmp_eq_u32 {s(sGrp)}, 1')
    a('s_cbranch_scc1 P2_g1skip')
    a(f's_cmp_eq_u32 {s(sTyp)}, 0')
    a('s_cbranch_scc1 P2_nobA')
    a('s_waitcnt vmcnt(6)')
    a('s_barrier')
    a(f's_cmp_lg_u32 {s(sWave)}, 3')
    a('s_cbranch_scc1 P2_nobA')
    a(f'buffer_store_dword {v(vNon)}, off, {s(S_WS, 4)}, {s(sFW)} offset:8 sc1')
    a.label('P2_nobA')
    stamp(a, 8)
    noncrit('a')
    a(f's_cmp_lg_u32 {s(sWave)}, 3')
    a('s_cbranch_scc1 P2_g1skip')
    a(f'v_add_u32 {v(k2T)}, 8, {v(vFa)}')
    a(f'v_mov_b32 {v(vFv)}, 0')
    flag_check(a, 'P2c1', vFv, k2T, sleep=0)
    a.label('P2_g1skip')
    a('s_waitcnt vmcnt(0)')
    a('s_barrier')
    stamp(a, 10)
    a(f's_cmp_lg_u32 {s(sWave)}, 3')
    a('s_cbranch_scc1 P2_noflag')
    a(f'buffer_store_dword {v(vNon)}, off, {s(S_WS, 4)}, {s(sFW)} sc1')
    a.label('P2_noflag')
    stamp(a, 13)
    vmc, vmb, vm7 = VM(), VM(), VM()

    def emit(lst, tag, only=None):
        for x in lst:
            a(x)
            if x.startswith('buffer_'):
                if only is None:
                    for t in (vmc, vmb, vm7):
                        t.issue(tag)
                else:
                    only.issue(tag)
    for j in range(3):
        emit(k2_load_a(j), f'A{j}')
    if not OPT['g1mid']:
        a(f's_cmp_eq_u32 {s(sGrp)}, 0')
        a('s_cbranch_scc1 P2_g0skip2')
        noncrit('b')
        a.label('P2_g0skip2')
    for x in k2_reads(0, 0):
        a(x)

    def bblock(j):
        L = f'P2b{j}'
        if j == 0:
            a(f's_cmp_eq_u32 {s(sTyp)}, 0')
            a(f's_cbranch_scc1 {L}')
            emit([f'buffer_load_dword {v(vFv)}, {v(vKa)}, {s(S_WS, 4)}, 0 offen sc1'], 'kvf', vmb)
            a.label(L)
        if j in (2, 4, 6, 8, 10):
            c = j // 2 - 1
            a(f's_cmp_eq_u32 {s(sTyp)}, 0')
            a(f's_cbranch_scc1 {L}')
            if c == 0:
                a(f's_waitcnt vmcnt({vmb.count("kvf")})')
                flag_check(a, 'P2kv', vFv, vKa)
            if c > 0:
                a(f's_waitcnt vmcnt({vmb.count(f"C{c - 1}")})')
                for q in range(4):
                    if c == 1:
                        a(f'v_pk_add_f32 {v(SUM + q * 2, 2)}, {v(CH + q * 2, 2)}, {v(CH + 8 + q * 2, 2)}')
                    else:
                        a(f'v_pk_add_f32 {v(SUM + q * 2, 2)}, {v(SUM + q * 2, 2)}, {v(CH + q * 2, 2)}')
                        a(f'v_pk_add_f32 {v(SUM + q * 2, 2)}, {v(SUM + q * 2, 2)}, {v(CH + 8 + q * 2, 2)}')
            if c < 4:
                for i in range(2):
                    a(f's_add_u32 {s(sT2)}, {s(sKVo)}, {(2 * c + i) * 6144}')
                    emit([f'buffer_load_dwordx4 {v(CH + (i * 2 + hh) * 4, 4)}, {v(vL16)}, {s(S2_KV, 4)}, {s(sT2)} offen offset:{hh * 1024} sc1'
                          for hh in range(2)], f'C{c}', vmb)
            else:
                for q in range(4):
                    a(f'v_cvt_pk_bf16_f32 {v(CH + q)}, {v(SUM + 2 * q)}, {v(SUM + 2 * q + 1)}')
                a(f's_lshl_b32 {s(sT3)}, {s(sWave)}, 10')
                a(f's_add_u32 {s(sT3)}, {s(sT3)}, {KFL}')
                a(f'v_add_u32 {v(k2T)}, {s(sT3)}, {v(vL16)}')
                a(f'ds_write_b128 {v(k2T)}, {v(CH, 4)}')
            a.label(L)
        if j == 12:
            a(f's_cmp_eq_u32 {s(sTyp)}, 0')
            a(f's_cbranch_scc1 {L}')
            a(f's_mul_i32 {s(sT3)}, {s(sGrp)}, 3072')
            a(f's_add_u32 {s(sT3)}, {s(sT3)}, {KFL}')
            a(f'v_add_u32 {v(k2T)}, {s(sT3)}, {v(vL16)}')
            for f in range(3):
                a(f'ds_read_b128 {v(KF + f * 4, 4)}, {v(k2T)} offset:{f * 1024}')
            a(f's_mul_i32 {s(sKVo)}, {s(sT)}, 7')
            a(f's_add_u32 {s(sKVo)}, {s(sKVo)}, 32')
            a(f's_sub_u32 {s(sKVo)}, {s(sH)}, {s(sKVo)}')
            a(f's_lshl_b32 {s(sKVo)}, {s(sKVo)}, 10')
            a(f's_add_u32 {s(sKVo)}, {s(sKVo)}, {s(sA2)}')
            a.label(L)
        if j in (13, 14, 15, 16):
            m = j - 13
            a(f's_cmp_eq_u32 {s(sTyp)}, 0')
            a(f's_cbranch_scc1 {L}')
            for b in (2, 0, 1):
                a(f'v_mfma_f32_16x16x32_bf16 {v(NUM + b * 4, 4)}, {v(KF + b * 4, 4)}, {v(PQ + m * 4, 4)}, 0')
            dn = NUM + 8
            a(f'v_add_f32 {v(dn)}, {s(sEps)}, {v(dn)}')
            a(f'v_rcp_f32 {v(dn)}, {v(dn)}')
            for b in range(2):
                r = NUM + b * 4
                for h in (0, 2):
                    a(f'v_pk_mul_f32 {v(r + h, 2)}, {v(r + h, 2)}, {v(dn, 2)} op_sel_hi:[1,0]')
                cvt4(a, OOUT + 2 * b, r)
            emit([f'buffer_store_dwordx4 {v(OOUT, 4)}, {v(vL16)}, {s(S_WS, 4)}, {s(sKVo)} offen{OPT["nta"]}'], 'O', vmb)
            a(f's_add_u32 {s(sKVo)}, {s(sKVo)}, {144 * 1024}')
            a.label(L)
        if j == 18:
            a(f's_lshl_b32 {s(sT0)}, {s(sWave)}, 1')
            a(f's_or_b32 {s(sT0)}, {s(sT0)}, {s(sTyp)}')
            a(f's_cmp_eq_u32 {s(sT0)}, 13')
            a(f's_cbranch_scc0 {L}')
            a(f'buffer_store_dword {v(vNon)}, off, {s(S_WS, 4)}, {s(sFW)} offset:4 sc1')
            a.label(L)

    CHK = {3: (5, vFa, 'c1b'), 8: (11, vF3, 'c2'), 21: (23, vOFa, 'c3')}
    SF = OPT['sendfirst']
    for j in range(33 if SF else 36):
        cur, nxt = j & 1, (j + 1) & 1
        kind, idx = ORDER[j]
        if j == 0:
            a(f's_waitcnt vmcnt({vmc.count("A0")}) lgkmcnt(0)')
            stamp(a, 14)
        bblock(j)
        if j in CHK:
            a(f's_cmp_lg_u32 {s(sWave)}, 7')
            a(f's_cbranch_scc1 P2_nl{j}')
            emit([f'buffer_load_dword {v(vOF)}, {v(CHK[j][1])}, {s(S_WS, 4)}, 0 offen sc1'], CHK[j][2], vm7)
            a.label(f'P2_nl{j}')
        if j == 24:
            emit([f'buffer_load_dword {v(k2E + m)}, {v(k2E + m)}, {s(S_WS, 4)}, 0 offen sc1' for m in range(2)], 'E')
        if j == 28:
            a(f's_waitcnt vmcnt({vmc.count("E")})')
            for m in range(2):
                a(f'v_rcp_f32 {v(k2E + m)}, {v(k2E + m)}')
            for q in range(2):
                for h in range(4):
                    a(f'v_mul_f32 {v(k2ACC + q * 4 + h)}, {v(k2E + (q & 1))}, {v(k2ACC + q * 4 + h)}')
        A0 = k2A + (j % NA) * 8
        if kind == 'b' and idx % 14 in (2, 11):
            a(f's_bitcmp0_b32 {s(s2Kq)}, 0')
            a(f's_cbranch_scc0 K2_sp1_{j}')
            a(f'v_swap_b32 {v(A0 + 2)}, {v(A0 + 4)}')
            a(f'v_swap_b32 {v(A0 + 3)}, {v(A0 + 5)}')
            a(f's_branch K2_spd_{j}')
            a.label(f'K2_sp1_{j}')
            a(f'v_swap_b32 {v(A0)}, {v(A0 + 6)}')
            a(f'v_swap_b32 {v(A0 + 1)}, {v(A0 + 7)}')
            a.label(f'K2_spd_{j}')
            a('s_nop 1')
        units = []
        sched = {5: [], 6: [8, 9]}
        if SF:
            sched.update({30: [33, 34], 31: [35], 32: []})
        for ja in sched.get(j, [j + 3]):
            if ja < 36:
                units += [(u, f'A{ja}') for u in group_dma(k2_load_a(ja))]
        bs = {4: [], 5: [], 6: [], 7: [18, 19], 8: [20, 21]}.get(j, [j + 14 if j < 4 else j + 13])
        for jb in bs:
            if jb < 36:
                units += [(k2_dma_b(jb), f'B{jb}')]
        rd = k2_reads(nxt, (j + 1) % RING) if j < 35 else []
        if SF and j == 32:
            rd = []
            for q, st in enumerate((33, 34)):
                for n in range(4):
                    rd += k2_read1(k2BF + 32 + (q * 4 + n) * 4, st % RING, 4 + n)
        k = ui = 0
        for n in range(8):
            for m in ((0, 1) if (n % 2 == 0 or not OPT['snake'] or j == 28) else (1, 0)):
                d = v(k2acc(n, m), 4)
                if j == 28 and k + 2 < 16:
                    for h in range(4):
                        a(f'v_mul_f32 {v(k2ACC + (k + 2) * 4 + h)}, {v(k2E + (k & 1))}, {v(k2ACC + (k + 2) * 4 + h)}')
                a(f'v_mfma_f32_16x16x32_bf16 {d}, {v(k2BF + cur * 32 + n * 4, 4)}, {v(A0 + m * 4, 4)}, {d if j else "0"}')
                for _ in range(OPT['p2rd']):
                    if rd:
                        a(rd.pop(0))
                if k in OPT['p2pos'] and ui < len(units):
                    emit(units[ui][0], units[ui][1])
                    ui += 1
                k += 1
        assert ui == len(units)
        if j == 35:
            break
        for jl, (jc, va, nm) in CHK.items():
            if j == jc:
                a(f's_cmp_lg_u32 {s(sWave)}, 7')
                a(f's_cbranch_scc1 P2_nc{j}')
                a(f's_waitcnt vmcnt({vm7.count(nm)})')
                flag_check(a, 'P2' + nm, vOF, va)
                a.label(f'P2_nc{j}')
        def need(t):
            n = t.count(f'A{j + 1}')
            if SF and j == 32:
                n = min(n, t.count('A34'))
            if j % 6 == 5:
                for jb in range(j + 2, j + 8):
                    if 14 <= jb < 36:
                        n = min(n, t.count(f'B{jb}'))
                if j == 17 and t is vmb:
                    n = min(n, t.count('O'))
            return n
        nc, nb_ = need(vmc), need(vmb)
        if nc != nb_:
            a(f's_cmp_eq_u32 {s(sTyp)}, {1 if nc < nb_ else 0}')
            a(f's_cbranch_scc1 P2_w{j}')
            a(f's_waitcnt vmcnt({min(nc, nb_)})')
            a.label(f'P2_w{j}')
        a(f's_waitcnt vmcnt({max(nc, nb_)}) lgkmcnt(0)')
        if j % 6 == 5:
            a('s_barrier')
    PK = 56 if SF else 8

    def send(t, d):
        t(f's_xor_b32 {s(sT3)}, {s(sRole)}, {d << 3}')
        t(f's_mul_i32 {s(sT3)}, {s(sT3)}, 49152')
        t(f's_add_u32 {s(sT3)}, {s(sT3)}, {s(sT2)}')
        t(f's_add_u32 {s(sT3)}, {s(sT3)}, {XCH_OFF + (d - 1) * 16384}')
        m, nb = d & 1, (d >> 1) * 4
        p = PK + (d - 1) * 8
        for n in range(4):
            cvt4(t, p + n * 2, k2acc(nb + n, m))
            if n & 1:
                q = n >> 1
                t(f'buffer_store_dwordx4 {v(p + q * 4, 4)}, {v(vL16)}, {s(S_WS, 4)}, {s(sT3)} offen offset:{q * 1024} sc1')

    def addr(a):
        a(f'v_add_f32 {v(k2E)}, 1.0, {v(k2E)}')
        a(f'v_rcp_f32 {v(k2E)}, {v(k2E)}')
        a(f's_lshl_b32 {s(sT0)}, {s(sRole)}, 3')
        a(f's_add_u32 {s(sT0)}, {s(sT0)}, {s(sWave)}')
        a(f's_lshl_b32 {s(sT0)}, {s(sT0)}, 7')
        a('v_and_b32 v5, 3, v1')
        a('v_max_u32 v5, 1, v5')
        a('v_lshlrev_b32 v5, 13, v5')
        a(f'v_xor_b32 v5, {s(sT0)}, v5')
        a(f'v_add_u32 {v(vFa)}, {F_X}, v5')
        a(f's_add_u32 {s(sT0)}, {s(sT0)}, {F_X}')
        a(f's_mul_i32 {s(sT1)}, {s(sRole)}, 49152')
        a(f's_add_u32 {s(sT1)}, {s(sT1)}, {s(sT2)}')
        a(f's_add_u32 {s(sT1)}, {s(sT1)}, {XCH_OFF}')
        a('v_and_b32 v5, 15, v1')
        a('v_and_b32 v6, 7, v1')
        a('v_lshrrev_b32 v7, 1, v2')
        a('v_xor_b32 v6, v6, v7')
        a('v_lshlrev_b32 v5, 7, v5')
        a('v_and_b32 v7, 1, v2')
        a('v_lshl_add_u32 v5, v7, 3, v5')
        a(f's_add_u32 {s(sC)}, {s(sT2)}, {KFL}')
        a(f'v_add_u32 v5, {s(sC)}, v5')
        for n in range(4):
            a(f'v_xor_b32 v7, {2 * n}, v6')
            a(f'v_lshl_add_u32 {v(k2RA + n)}, v7, 4, v5')
        a('v_lshrrev_b32 v6, 3, v1')
        a('v_and_b32 v7, 7, v1')
        a(f'v_xor_b32 {v(k2T)}, v6, v7')
        a(f'v_lshlrev_b32 {v(k2T)}, 4, {v(k2T)}')
        a(f'v_lshl_add_u32 {v(k2T)}, v6, 7, {v(k2T)}')
        a(f'v_add_u32 {v(k2T)}, {s(sC)}, {v(k2T)}')
        a('v_lshlrev_b32 v7, 4, v7')
        a('v_lshl_add_u32 v7, v6, 11, v7')
        a(f'v_mov_b32 {v(vFv)}, 0')

    a(f's_lshl_b32 {s(sT2)}, {s(sWave)}, 11')
    if SF:
        def mm(n, m, bf, st):
            d = v(k2acc(n, m), 4)
            return f'v_mfma_f32_16x16x32_bf16 {d}, {v(bf, 4)}, {v(aset(st) + m * 4, 4)}, {d}'

        def collect(fn):
            t = Asm()
            fn(t)
            return t.lines

        def run(mf, fill, per, delay=0):
            fill = list(fill)
            for k, x in enumerate(mf):
                a(x)
                if k >= delay:
                    for _ in range(per):
                        if fill:
                            a(fill.pop(0))
            for y in fill:
                a(y)
        B0, B1 = k2BF, k2BF + 32
        rd = []
        for n in range(4):
            rd += k2_read1(B0 + n * 4, 35 % RING, 4 + n)
        for n in range(4):
            rd += k2_read1(B0 + 16 + n * 4, 33 % RING, n)
        run([mm(4 + n, m, B1 + (q * 4 + n) * 4, st) for q, st in enumerate((33, 34)) for n in range(4) for m in range(2)], rd, 2)
        a(f's_waitcnt vmcnt({vmc.count("A35")}) lgkmcnt(0)')
        rd = []
        for q, st in enumerate((34, 35)):
            for n in range(4):
                rd += k2_read1(B1 + (q * 4 + n) * 4, st % RING, n)
        run([mm(4 + n, m, B0 + n * 4, 35) for n in range(4) for m in range(2)], rd, 2)

        def low(m):
            o = [mm(n, m, B0 + 16 + n * 4, 33) for n in range(4)]
            for q, st in enumerate((34, 35)):
                o += [mm(n, m, B1 + (q * 4 + n) * 4, st) for n in range(4)]
            return o
        y = low(1)
        run(y[:4], collect(lambda t: send(t, 2))[:4], 1)
        a('s_waitcnt lgkmcnt(0)')
        run(y[4:], collect(lambda t: send(t, 2))[4:] + collect(lambda t: send(t, 3)), 3)
        run(low(0), collect(lambda t: send(t, 1)) + collect(addr), 4, delay=2)
        stamp(a, 16)
    else:
        stamp(a, 16)
        for d in (1, 2, 3):
            send(a, d)
        addr(a)
    stamp(a, 17)
    a('s_waitcnt vmcnt(0)')
    a(f'buffer_store_dword {v(vNon)}, off, {s(S_WS, 4)}, {s(sT0)} sc1')
    stamp(a, 18)
    flag_check(a, 'K2x', vFv, vFa, sleep=OPT['xsleep'])
    stamp(a, 19)
    RX = 40
    for d in range(3):
        for q in range(2):
            a(f'buffer_load_dwordx4 {v(RX + d * 8 + q * 4, 4)}, {v(vL16)}, {s(S_WS, 4)}, {s(sT1)} offen offset:{q * 1024} sc1')
        if d < 2:
            a(f's_add_u32 {s(sT1)}, {s(sT1)}, 16384')
    a(f's_lshl_b32 {s(sT0)}, {s(sEoff)}, 11')
    a(f's_lshl_b32 {s(sT2)}, {s(s2Cb)}, 8')
    a(f's_add_u32 {s(sT0)}, {s(sT0)}, {s(sT2)}')
    a(f's_lshr_b32 {s(sT2)}, {s(s2Kq)}, 1')
    a(f's_lshl_b32 {s(sT2)}, {s(sT2)}, 7')
    a(f's_add_u32 {s(sT0)}, {s(sT0)}, {s(sT2)}')
    a(f's_add_u32 {s(sT2)}, {s(sT0)}, {8 * 2048}')
    UP = 64
    for d in range(3):
        a(f's_waitcnt vmcnt({4 - 2 * d})')
        for n in range(4):
            r = k2acc(n, 0)
            u = UP + (n & 1) * 4
            for h in range(2):
                src = RX + d * 8 + n * 2 + h
                a(f'v_lshlrev_b32 {v(u + 2 * h)}, 16, {v(src)}')
                a(f'v_and_b32 {v(u + 2 * h + 1)}, 0xffff0000, {v(src)}')
            for h in (0, 2):
                a(f'v_pk_add_f32 {v(r + h, 2)}, {v(r + h, 2)}, {v(u + h, 2)}')
    for n in range(4):
        r = k2acc(n, 0)
        for h in (0, 2):
            a(f'v_pk_mul_f32 {v(r + h, 2)}, {v(r + h, 2)}, {v(k2E, 2)} op_sel_hi:[1,0]')
        cvt4(a, 8 + n * 2, r)
        a(f'ds_write_b64 {v(k2RA + n)}, {v(8 + n * 2, 2)}')
    a('s_waitcnt lgkmcnt(0)')
    a(f'ds_read_b128 v[16:19], {v(k2T)}')
    a(f'ds_read_b128 v[20:23], {v(k2T)} offset:1024')
    a('s_waitcnt lgkmcnt(1)')
    a(f'buffer_store_dwordx4 v[16:19], v7, {s(S2_OUT, 4)}, {s(sT0)} offen{OPT["nto"]}')
    a('s_waitcnt lgkmcnt(0)')
    a(f'buffer_store_dwordx4 v[20:23], v7, {s(S2_OUT, 4)}, {s(sT2)} offen{OPT["nto"]}')
    if OPT['stamp']:
        a('s_waitcnt vmcnt(0)')
        stamp(a, 20)
        a(f's_lshl_b32 {s(sT0)}, s2, 3')
        a(f's_add_u32 {s(sT0)}, {s(sT0)}, {s(sWave)}')
        a(f's_lshl_b32 {s(sT0)}, {s(sT0)}, 8')
        a(f's_add_u32 {s(sT0)}, {s(sT0)}, {STAMP_OFF}')
        a('v_lshlrev_b32 v0, 2, v1')
        a(f'buffer_store_dword v{vSt}, v0, {s(S_WS, 4)}, {s(sT0)} offen')
        if OPT['dbgout']:
            a(f's_lshl_b32 {s(sT0)}, s2, 3')
            a(f's_add_u32 {s(sT0)}, {s(sT0)}, {s(sWave)}')
            a(f's_cmp_lg_u32 {s(sT0)}, {OPT["dbgout"]}')
            a('s_cbranch_scc1 K_end')
            a(f'v_readlane_b32 {s(sT1)}, v{vSt}, 32')
            for k, idx in enumerate([11, 12, 1, 3, 4, 5, 6, 7, 10, 13, 14, 16, 18, 19, 20]):
                a(f'v_readlane_b32 {s(sT2)}, v{vSt}, {32 + idx}')
                a(f's_sub_u32 {s(sT2)}, {s(sT2)}, {s(sT1)}')
                a(f'v_mov_b32 v5, {s(sT2)}')
                a(f'buffer_store_dword v5, off, {s(S_DBG, 4)}, 0 offset:{4 * (k + 1)}')
    if OPT['padto']:
        a.label('PAD_l')
        a('s_memrealtime s[30:31]')
        a('s_waitcnt lgkmcnt(0)')
        a('s_sub_u32 s30, s30, s26')
        a(f's_cmp_lt_u32 s30, {OPT["padto"]}')
        a('s_cbranch_scc1 PAD_l')
    a.label('K_end')
    a('s_endpgm')
    a.label('K_code_end')


HEADER = open('cdna_kernels/%s.s.ref' % NAME).read().split('; Override launch')[0]


DESC = """; ---------------------------------------------------------------------------------------------
; Single persistent kernel, 256 workgroups x 8 waves (one per CU), generated by a hand-written script.
;          fragments in the workspace, gate logit per row.
; ---------------------------------------------------------------------------------------------
"""


def build():
    out = HEADER
    out += '; @launch grid=(256,1,1) block=(512,1,1) lds=163840\n'
    out += '.amdgcn_target "amdgcn-amd-amdhsa--gfx950"\n.text\n'
    out += DESC
    a = Asm()
    gen(a)
    out += f'.globl {KN}\n.p2align 8\n.type {KN},@function\n'
    out += f'.set CODE_LAST, K_code_end - {KN} - 64\n'
    out += a.finalize()
    out += f'''.section .rodata,"a"
.p2align 6
.amdhsa_kernel {KN}
  .amdhsa_next_free_vgpr 256
  .amdhsa_next_free_sgpr 102
  .amdhsa_accum_offset 256
  .amdhsa_group_segment_fixed_size 0
  .amdhsa_kernarg_size 88
  .amdhsa_user_sgpr_count 2
  .amdhsa_user_sgpr_kernarg_segment_ptr 1
  .amdhsa_system_sgpr_workgroup_id_x 1
.end_amdhsa_kernel
'''
    return out


if __name__ == '__main__':
    path = sys.argv[1] if len(sys.argv) > 1 else f'cdna_kernels/{NAME}.s'
    for kv in sys.argv[2:]:
        k, val = kv.split('=', 1)
        if val in ('True', 'False'):
            val = val == 'True'
        elif val.lstrip('-').isdigit():
            val = int(val)
        elif ',' in val:
            val = tuple(int(x) for x in val.split(','))
        if k.startswith('nt'):
            val = ' ' + val.replace('_', ' ')
        OPT[k] = val
    open(path, 'w').write(build())
```
